```python
import torch

def _softmax(x, axis=-1):
    return torch.softmax(x, dim=axis)
def _gelu(x):
    return torch.nn.functional.gelu(x, approximate="tanh")
def _silu(x):
    return torch.nn.functional.silu(x)
def _sigmoid(x):
    return torch.sigmoid(x)
def _layernorm(x, axis=-1, eps=1e-5):
    m = x.mean(dim=axis, keepdim=True)
    v = x.var(dim=axis, keepdim=True, unbiased=False)
    return (x - m) / torch.sqrt(v + eps)
def _scatter_add(tgt, idx, src, axis=0):
    return tgt.clone().index_add_(axis, idx, src)
def _segment_sum(src, seg, n):
    out = torch.zeros((n,) + src.shape[1:], dtype=src.dtype)
    return out.index_add_(0, seg, src)
def _pad(x, pw):
    flat = tuple(v for pair in reversed(pw) for v in pair)
    return torch.nn.functional.pad(x, flat)

kernel_name = 'sequential_preLN__gqa_block_cached__mixer_token_mlp__decode'

def setup_inputs():

    _w = (lambda a: (lambda t: t.to(torch.bfloat16) if t.is_floating_point() else t)(torch.as_tensor(a)))
    def _A_setup():
        B, Sq, D = 1, 1, 512
        Hq, Hkv, Sk, Dh = 32, 8, 65536, 128
        assert Hq % Hkv == 0, (Hq, Hkv)
        return {
            "x": _w((lambda *s: torch.randn(*s, dtype=torch.bfloat16) * 0.1)(B, Sq, D)),
            "k_cache": _w((lambda *s: torch.randn(*s, dtype=torch.bfloat16) * 1.6)(B, Hkv, Sk, Dh)),
            "v_cache": _w((lambda *s: torch.randn(*s, dtype=torch.bfloat16) * 1.6)(B, Hkv, Sk, Dh)),
            "wq": _w((lambda *s: torch.randn(*s, dtype=torch.bfloat16) * 1.6)(D, Hq * Dh) * (D ** -0.5)),
            "wo": _w((lambda *s: torch.randn(*s, dtype=torch.bfloat16) * 1.6)(Hq * Dh, D) * ((Hq * Dh) ** -0.5)),
        }
    _A_in = _A_setup()

    def _B_setup():
        B, S, D, F = 1, 1, 512, 1792
        return {
            "x": _w((lambda *s: torch.randn(*s, dtype=torch.bfloat16) * 0.1)(B, S, D)),
            "w1": _w((lambda *s: torch.randn(*s, dtype=torch.bfloat16) * 1.6)(S, F) * (S ** -0.5)),
            "b1": _w((lambda *s: torch.randn(*s, dtype=torch.bfloat16) * 1.6)(F) * 0.02),
            "w2": _w((lambda *s: torch.randn(*s, dtype=torch.bfloat16) * 1.6)(F, S) * (F ** -0.5)),
            "b2": _w((lambda *s: torch.randn(*s, dtype=torch.bfloat16) * 1.6)(S) * 0.02),
        }
    _B_in = _B_setup()

    return {
        "A_x": _A_in["x"],
        "A_k_cache": _A_in["k_cache"],
        "A_v_cache": _A_in["v_cache"],
        "A_wq": _A_in["wq"],
        "A_wo": _A_in["wo"],
        "B_x": _B_in["x"],
        "B_w1": _B_in["w1"],
        "B_b1": _B_in["b1"],
        "B_w2": _B_in["w2"],
        "B_b2": _B_in["b2"],
    }

def reference(A_x, A_k_cache, A_v_cache, A_wq, A_wo, B_x, B_w1, B_b1, B_w2, B_b2):
    def _A_ref(x, k_cache, v_cache, wq, wo):
        B, Sq, D = x.shape
        Hq, Dh = 32, 128
        Hkv = k_cache.shape[1]
        rep = Hq // Hkv
        q = (lambda x, *d: x.permute(*d))((x @ wq).reshape(B, Sq, Hq, Dh), 0, 2, 1, 3)
        k = (lambda x, n, axis: torch.repeat_interleave(x, n, dim=axis))(k_cache, rep, axis=1)
        v = (lambda x, n, axis: torch.repeat_interleave(x, n, dim=axis))(v_cache, rep, axis=1)
        scores = torch.einsum("bhqd,bhkd->bhqk", q, k) * (Dh ** -0.5)
        p = _softmax(scores, axis=-1)
        o = torch.einsum("bhqk,bhkd->bhqd", p, v)
        return (lambda x, *d: x.permute(*d))(o, 0, 2, 1, 3).reshape(B, Sq, Hq * Dh) @ wo

    def _B_ref(x, w1, b1, w2, b2):
        B, S, D = x.shape
        h = _layernorm(x, axis=-1)
        u = torch.einsum("bsd,sf->bdf", h, w1) + b1
        u = _gelu(u)
        y = torch.einsum("bdf,fs->bds", u, w2) + b2
        return (lambda x, *d: x.permute(*d))(y, 0, 2, 1)

    x = A_x
    h = x + _A_ref(_layernorm(x, axis=-1), A_k_cache, A_v_cache, A_wq, A_wo)
    h2 = h + _B_ref(_layernorm(h, axis=-1), B_w1, B_b1, B_w2, B_b2)
    return h2
```

```python
import sys, json, struct

KN = 'sequential_preLN__gqa_block_cached__mixer_token_mlp__decode'
HEADER = open('cdna_kernels/' + KN + '.s.ref').read().split('; Override launch')[0]


def f2u(x):
    return struct.unpack('<I', struct.pack('<f', x))[0]


LOG2E = 1.4426950408889634
SCALE = 128 ** -0.5
GC0 = -2.0 * (2.0 / 3.141592653589793) ** 0.5 * LOG2E
GC1 = GC0 * 0.044715

WS_QP = 0x0
WS_P1 = 0x20000
WS_P2 = 0x100000
WS_SIZE = 0x20000000
STAMP_OFF = 0x10000000
LDS_Q = 0
LDS_O = 1024
LDS_ML = LDS_O + 8192
LDS_W = LDS_ML + 128
LDS_H = LDS_W + 1024
LDS_Y = LDS_H + 2048
LDS_TOTAL = LDS_Y + 64

SPIN_MAX = 20000


class Gen:
    def __init__(self, **kw):
        self.L = []
        self.o = dict(ring=12, pre=4, pre0=1, stamps=False, nt='nt', headmap='mod')
        self.o.update(kw)
        self.lab = 0

    def A(self, s):
        self.L.append(s)

    def nop(self, n):
        if n > 0:
            self.A(f's_nop {n-1}')

    def label(self, base):
        self.lab += 1
        return f'L_{base}_{self.lab}'

    def srd(self, r, ptr, size):
        A = self.A
        A(f's_mov_b32 s{r}, s{ptr}')
        A(f's_and_b32 s{r+1}, s{ptr+1}, 0xffff')
        A(f's_mov_b32 s{r+2}, {size:#x}')
        A(f's_mov_b32 s{r+3}, 0x20000')

    def stamp(self, idx):
        if self.o['stamps']:
            self.A(f's_memrealtime s[{80+2*idx}:{81+2*idx}]')

    def dpp(self, op, regs, ctrl, rm='0xf'):
        A = self.A
        n = len(regs)
        if n < 3:
            self.nop(3 - n)
        for r in regs:
            A(f'{op}_dpp v{r}, v{r}, v{r} {ctrl} row_mask:{rm} bank_mask:0xf')

    def swap_red(self, op, regs, tmps, width):
        A = self.A
        for r, t in zip(regs, tmps):
            A(f'v_mov_b32 v{t}, v{r}')
        self.nop(2)
        for r, t in zip(regs, tmps):
            A(f'v_permlane{width}_swap_b32 v{r}, v{t}')
        self.nop(2)
        for r, t in zip(regs, tmps):
            A(f'{op} v{r}, v{r}, v{t}')

    def wave_sum_to_sgpr(self, regs, sregs):
        A = self.A
        self.dpp('v_add_f32', regs, 'quad_perm:[1,0,3,2]')
        self.dpp('v_add_f32', regs, 'quad_perm:[2,3,0,1]')
        self.dpp('v_add_f32', regs, 'row_half_mirror')
        self.dpp('v_add_f32', regs, 'row_mirror')
        self.dpp('v_add_f32', regs, 'row_bcast:15', '0xa')
        self.dpp('v_add_f32', regs, 'row_bcast:31', '0xc')
        self.nop(1)
        for r, s in zip(regs, sregs):
            A(f'v_readlane_b32 s{s}, v{r}, 63')
        self.nop(2)

    def rnd_bf16(self, dst, src):
        self.A(f'v_cvt_pk_bf16_f32 v{dst}, v{src}, v{src}')
        self.A(f'v_lshlrev_b32 v{dst}, 16, v{dst}')

    def rnd_bf16_pair(self, a, b, t):
        self.A(f'v_cvt_pk_bf16_f32 v{t}, v{a}, v{b}')
        self.A(f'v_lshlrev_b32 v{a}, 16, v{t}')
        self.A(f'v_and_b32 v{b}, 0xffff0000, v{t}')

    def ln_stats(self, vals, piv, t, s_a, s_b, vm, vr):
        A = self.A
        d = t[:8]
        s1, s2 = t[8], t[9]
        if piv is not None:
            for k in range(8):
                A(f'v_sub_f32 v{d[k]}, v{vals[k]}, v{piv}')
            src = d
        else:
            src = vals
        A(f'v_add_f32 v{s1}, v{src[0]}, v{src[1]}')
        A(f'v_mul_f32 v{s2}, v{src[0]}, v{src[0]}')
        A(f'v_fmac_f32 v{s2}, v{src[1]}, v{src[1]}')
        for k in range(2, 8):
            A(f'v_add_f32 v{s1}, v{s1}, v{src[k]}')
            A(f'v_fmac_f32 v{s2}, v{src[k]}, v{src[k]}')
        self.wave_sum_to_sgpr([s1, s2], [s_a, s_b])
        inv = f2u(1.0 / 512)
        A(f'v_mov_b32 v{s1}, {inv:#x}')
        A(f'v_mul_f32 v{s2}, s{s_b}, v{s1}')
        A(f'v_mul_f32 v{s1}, s{s_a}, v{s1}')
        A(f'v_fma_f32 v{s2}, -v{s1}, v{s1}, v{s2}')
        A(f'v_max_f32 v{s2}, 0, v{s2}')
        if piv is not None:
            A(f'v_add_f32 v{s1}, v{s1}, v{piv}')
        self.rnd_bf16_pair(s1, s2, d[0])
        A(f'v_mov_b32 v{vm}, v{s1}')
        A(f'v_add_f32 v{s2}, {f2u(1e-5):#x}, v{s2}')
        self.rnd_bf16(s2, s2)
        A(f'v_sqrt_f32 v{s2}, v{s2}')
        self.nop(1)
        self.rnd_bf16(s2, s2)
        A(f'v_rcp_f32 v{vr}, v{s2}')
        self.nop(1)

    def ln_apply(self, vals, outs, vm, vr, t):
        A = self.A
        for k in range(0, len(vals), 2):
            a, b = outs[k], outs[k + 1]
            A(f'v_sub_f32 v{a}, v{vals[k]}, v{vm}')
            A(f'v_sub_f32 v{b}, v{vals[k+1]}, v{vm}')
            self.rnd_bf16_pair(a, b, t)
            A(f'v_mul_f32 v{a}, v{a}, v{vr}')
            A(f'v_mul_f32 v{b}, v{b}, v{vr}')
            self.rnd_bf16_pair(a, b, t)

    def canon(self, regs):
        A = self.A
        for r in regs:
            A(f'v_min_u32 v{r}, 0xfffffffe, v{r}')

    def build(self):
        A = self.A
        o = self.o
        A(HEADER.rstrip('\n'))
        A(f'; @launch grid=(256,1,1) block=(512,1,1) lds={LDS_TOTAL}')
        A('.amdgcn_target "amdgcn-amd-amdhsa--gfx950"')
        A('.text')
        A(f'.globl {KN}_kernel')
        A('.p2align 8')
        A(f'.type {KN}_kernel,@function')
        A(f'{KN}_kernel:')
        A('s_cmp_ge_u32 s2, 256')
        A('s_cbranch_scc1 L_end')
        A('s_load_dwordx16 s[4:19], s[0:1], 0')
        A('s_load_dwordx8 s[20:27], s[0:1], 64')
        A('s_load_dwordx2 s[28:29], s[0:1], 96')
        self.stamp(0)
        A('v_lshrrev_b32 v1, 6, v0')
        A('v_and_b32 v0, 63, v0')
        A('v_readfirstlane_b32 s30, v1')
        if o['headmap'] == 'mod':
            A('s_and_b32 s31, s2, 7')
            A('s_lshr_b32 s32, s2, 3')
        else:
            A('s_lshr_b32 s31, s2, 5')
            A('s_and_b32 s32, s2, 31')
        A('s_cmp_ge_u32 s30, 4')
        A('s_cbranch_scc1 L_helper')
        self.streamer()
        A('L_helper:')
        self.helper()
        A('L_end:')
        A('s_endpgm')
        A('.section .rodata,"a"')
        A('.p2align 6')
        A(f'.amdhsa_kernel {KN}_kernel')
        A('  .amdhsa_next_free_vgpr 256')
        A('  .amdhsa_next_free_sgpr 102')
        A('  .amdhsa_accum_offset 256')
        A('  .amdhsa_group_segment_fixed_size 0')
        A('  .amdhsa_kernarg_size 104')
        A('  .amdhsa_user_sgpr_count 2')
        A('  .amdhsa_user_sgpr_kernarg_segment_ptr 1')
        A('  .amdhsa_system_sgpr_workgroup_id_x 1')
        A('  .amdhsa_float_denorm_mode_32 3')
        A('.end_amdhsa_kernel')
        return '\n'.join(self.L) + '\n'

    def write_stamps(self, n):
        if not self.o['stamps']:
            return
        A = self.A
        A('s_waitcnt lgkmcnt(0)')
        A('s_mov_b64 exec, 1')
        A('s_lshl_b32 s33, s2, 3')
        A('s_add_u32 s33, s33, s30')
        A('s_lshl_b32 s33, s33, 7')
        A(f's_add_u32 s33, s33, {STAMP_OFF:#x}')
        self.srd(76, 28, WS_SIZE)
        A('v_mov_b32 v1, 0')
        for k in range(n):
            A(f'v_mov_b32 v2, s{80+2*k}')
            A(f'v_mov_b32 v3, s{81+2*k}')
            A(f'buffer_store_dwordx2 v[2:3], v1, s[76:79], s33 offen offset:{8*k}')
            A('s_nop 1')
        A('s_waitcnt vmcnt(0)')

    def streamer(self):
        A = self.A
        o = self.o
        R = o['ring']
        nt = o['nt']
        T = 32
        N = 2 * T
        RB = 64
        assert RB + 16 * R <= 256
        vK, vV = 1, 2
        Q = 4
        C = [20, 24]
        G = 28
        S2 = 30
        vmax, vl, vnm = 46, 47, 3
        ACC = 48
        D = 56
        M0, M1 = 60, 61
        TA = [20, 22, 24, 26]
        U = [4, 5, 6, 7]
        KT = [56, 57, 58, 59, 62, 63]

        A('v_and_b32 v4, 3, v0')
        A('v_lshlrev_b32 v4, 10, v4')
        A('v_bfe_u32 v5, v0, 2, 2')
        A('v_lshlrev_b32 v5, 8, v5')
        A('v_lshrrev_b32 v6, 4, v0')
        A('v_lshlrev_b32 v6, 4, v6')
        A(f'v_add3_u32 v{vK}, v4, v5, v6')
        A(f'v_lshlrev_b32 v{vV}, 4, v0')
        A('s_lshl_b32 s44, s31, 24')
        A('s_lshl_b32 s45, s32, 19')
        A('s_add_u32 s44, s44, s45')
        A('s_lshl_b32 s45, s30, 12')
        A('s_add_u32 s44, s44, s45')
        A('s_waitcnt lgkmcnt(0)')
        self.srd(36, 6, 0x8000000)
        self.srd(40, 8, 0x8000000)

        def issue(n):
            r = RB + (n % R) * 16
            t = n % T
            A(f's_add_u32 s45, s44, {t*16384:#x}')
            for j in range(4):
                if n < T:
                    A(f'buffer_load_dwordx4 v[{r+4*j}:{r+4*j+3}], v{vK}, s[36:39], s45 offen offset:{64*j} {nt}')
                else:
                    A(f'buffer_load_dwordx4 v[{r+4*j}:{r+4*j+3}], v{vV}, s[40:43], s45 offen offset:{1024*j} {nt}')

        pre0, pre = o['pre0'], o['pre']
        for n in range(pre0):
            issue(n)
        A('s_barrier')
        for n in range(pre0, pre):
            issue(n)
        A('s_mov_b32 s50, 0x22222222'); A('s_mov_b32 s51, 0x22222222')
        A('s_mov_b32 s52, 0x44444444'); A('s_mov_b32 s53, 0x44444444')
        A('s_mov_b32 s54, 0x88888888'); A('s_mov_b32 s55, 0x88888888')
        A(f's_mov_b32 s56, {f2u(SCALE):#x}')
        A(f's_mov_b32 s57, {f2u(LOG2E):#x}')
        A('v_and_b32 v4, 1, v0')
        A('v_lshlrev_b32 v4, 4, v4')
        A('v_mov_b32 v5, 0xffff')
        A('v_lshlrev_b32 v5, v4, v5')
        A('v_and_b32 v4, 2, v0')
        A('v_cmp_eq_u32 vcc, 0, v4')
        A('v_mov_b32 v6, 0')
        A(f'v_mov_b32 v{vmax}, 0xff800000')
        A(f'v_cndmask_b32 v{M0}, v6, v5, vcc')
        A(f'v_cndmask_b32 v{M1}, v5, v6, vcc')
        A(f'v_mov_b32 v{vl}, 0')
        for k in range(8):
            A(f'v_mov_b32 v{ACC+k}, 0')
        A('v_bfe_u32 v62, v0, 2, 2')
        A('v_lshlrev_b32 v62, 8, v62')
        A('v_lshrrev_b32 v63, 4, v0')
        A('v_lshl_add_u32 v62, v63, 4, v62')
        for n in range(pre, R):
            A(f's_waitcnt vmcnt({4*(pre-1)})')
            issue(n)
        self.stamp(1)
        A('s_barrier')
        for j in range(4):
            A(f'ds_read_b128 v[{Q+4*j}:{Q+4*j+3}], v62 offset:{LDS_Q + 64*j}')
        self.stamp(2)
        A('s_waitcnt lgkmcnt(0)')

        def kpost(t):
            c = C[t & 1]
            tt = t & 3
            if tt == 0:
                A(f'v_cvt_pk_bf16_f32 v{G}, v{c}, v{c+1}')
                A(f'v_cvt_pk_bf16_f32 v{G+1}, v{c+2}, v{c+3}')
            else:
                A(f'v_cvt_pk_bf16_f32 v{KT[4]}, v{c}, v{c+1}')
                A(f'v_cvt_pk_bf16_f32 v{KT[5]}, v{c+2}, v{c+3}')
                sm = 48 + 2 * tt
                A(f'v_cndmask_b32 v{G}, v{G}, v{KT[4]}, s[{sm}:{sm+1}]')
                A(f'v_cndmask_b32 v{G+1}, v{G+1}, v{KT[5]}, s[{sm}:{sm+1}]')
            if tt == 3:
                grp = t // 4
                u = KT[:4]
                A(f'v_lshlrev_b32 v{u[0]}, 16, v{G}')
                A(f'v_and_b32 v{u[1]}, 0xffff0000, v{G}')
                A(f'v_lshlrev_b32 v{u[2]}, 16, v{G+1}')
                A(f'v_and_b32 v{u[3]}, 0xffff0000, v{G+1}')
                for k in range(4):
                    A(f'v_mul_f32 v{u[k]}, s56, v{u[k]}')
                A(f'v_max3_f32 v{vmax}, v{vmax}, v{u[0]}, v{u[1]}')
                A(f'v_max3_f32 v{vmax}, v{vmax}, v{u[2]}, v{u[3]}')
                A(f'v_cvt_pk_bf16_f32 v{S2+2*grp}, v{u[0]}, v{u[1]}')
                A(f'v_cvt_pk_bf16_f32 v{S2+2*grp+1}, v{u[2]}, v{u[3]}')

        for n in range(T):
            r = RB + (n % R) * 16
            c = C[n & 1]
            A(f's_waitcnt vmcnt({min(4*(R-1), 4*(N-1-n))})')
            for j in range(4):
                cc = '0' if j == 0 else f'v[{c}:{c+3}]'
                A(f'v_mfma_f32_16x16x32_bf16 v[{c}:{c+3}], v[{r+4*j}:{r+4*j+3}], v[{Q+4*j}:{Q+4*j+3}], {cc}')
            if n + R < N:
                issue(n + R)
            if n >= 1:
                kpost(n - 1)
        self.nop(9)
        kpost(T - 1)
        self.dpp('v_max_f32', [vmax], 'quad_perm:[1,0,3,2]')
        self.dpp('v_max_f32', [vmax], 'quad_perm:[2,3,0,1]')
        self.swap_red('v_max_f32', [vmax], [62], 16)
        self.swap_red('v_max_f32', [vmax], [62], 32)
        self.rnd_bf16(vmax, vmax)
        A(f'v_mul_f32 v{vnm}, s57, v{vmax}')
        A(f'v_sub_f32 v{vnm}, 0, v{vnm}')
        self.stamp(3)
        for t in range(T):
            n = T + t
            r = RB + (n % R) * 16
            tt = t & 3
            if tt == 0:
                grp = t // 4
                A(f'v_lshlrev_b32 v{U[0]}, 16, v{S2+2*grp}')
                A(f'v_and_b32 v{U[1]}, 0xffff0000, v{S2+2*grp}')
                A(f'v_lshlrev_b32 v{U[2]}, 16, v{S2+2*grp+1}')
                A(f'v_and_b32 v{U[3]}, 0xffff0000, v{S2+2*grp+1}')
                for k in range(4):
                    A(f'v_fma_f32 v{U[k]}, v{U[k]}, s57, v{vnm}')
                for k in range(4):
                    A(f'v_exp_f32 v{U[k]}, v{U[k]}')
                self.nop(1)
                for k in range(4):
                    A(f'v_cvt_pk_bf16_f32 v{D+k}, v{U[k]}, v{U[k]}')
                A(f'v_add_f32 v{U[0]}, v{U[0]}, v{U[1]}')
                A(f'v_add_f32 v{U[2]}, v{U[2]}, v{U[3]}')
                A(f'v_add_f32 v{vl}, v{vl}, v{U[0]}')
                A(f'v_add_f32 v{vl}, v{vl}, v{U[2]}')
            qp = f'quad_perm:[{tt},{tt},{tt},{tt}] row_mask:0xf bank_mask:0xf'
            for k in range(4):
                A(f'v_and_b32_dpp v{TA[k]}, v{D+k}, v{M0} {qp}')
                A(f'v_and_b32_dpp v{TA[k]+1}, v{D+k}, v{M1} {qp}')
            A(f's_waitcnt vmcnt({min(4*(R-1), 4*(N-1-n))})')
            self.nop(1)
            for k in range(4):
                A(f'v_mfma_f32_16x16x16_bf16 v[{ACC}:{ACC+3}], v[{TA[k]}:{TA[k]+1}], v[{r+4*k}:{r+4*k+1}], v[{ACC}:{ACC+3}]')
                A(f'v_mfma_f32_16x16x16_bf16 v[{ACC+4}:{ACC+7}], v[{TA[k]}:{TA[k]+1}], v[{r+4*k+2}:{r+4*k+3}], v[{ACC+4}:{ACC+7}]')
            if n + R < N:
                issue(n + R)
        self.stamp(4)
        self.dpp('v_add_f32', [vl], 'quad_perm:[1,0,3,2]')
        self.dpp('v_add_f32', [vl], 'quad_perm:[2,3,0,1]')
        self.swap_red('v_add_f32', [vl], [62], 16)
        self.swap_red('v_add_f32', [vl], [62], 32)
        A('s_lshl_b32 s45, s30, 11')
        A(f's_add_u32 s45, s45, {LDS_O}')
        A('v_lshlrev_b32 v4, 5, v0')
        A('v_add_u32 v4, s45, v4')
        A('s_lshl_b32 s45, s30, 5')
        A(f's_add_u32 s45, s45, {LDS_ML}')
        A('v_bfe_u32 v5, v0, 2, 2')
        A('v_lshlrev_b32 v5, 3, v5')
        A('v_add_u32 v5, s45, v5')
        A(f'ds_write_b128 v4, v[{ACC}:{ACC+3}]')
        A(f'ds_write_b128 v4, v[{ACC+4}:{ACC+7}] offset:16')
        A(f'ds_write_b64 v5, v[{vmax}:{vl}]')
        A('s_waitcnt lgkmcnt(0)')
        A('s_barrier')
        self.write_stamps(5)
        A('s_endpgm')

    def helper(self):
        A = self.A
        o = self.o
        nt = o['nt']
        X, WQ, WS, DBG, WO, W1, B1, W2, B2, OUT = 36, 40, 44, 48, 52, 56, 60, 64, 68, 72
        A('s_sub_u32 s33, s30, 4')
        A('s_lshr_b32 s34, s32, 3')
        A('s_and_b32 s35, s32, 7')
        A('v_lshlrev_b32 v1, 4, v0')
        A('v_and_b32 v2, 15, v0')
        A('v_lshrrev_b32 v3, 4, v0')
        A('s_waitcnt lgkmcnt(0)')
        self.srd(X, 4, 1024)
        self.srd(WQ, 10, 0x400000)
        self.srd(WS, 28, WS_SIZE)
        self.srd(DBG, 26, 256)
        A('s_cmp_lg_u32 s33, 0')
        A('s_cbranch_scc1 L_h_b0')
        XA = 8
        XB = 12
        XP = 20
        WQR = 64
        A('s_lshr_b32 s0, s32, 2')
        A('s_and_b32 s1, s32, 3')
        A(f'buffer_load_dwordx4 v[{XA}:{XA+3}], v1, s[{X}:{X+3}], 0 offen')
        A('v_lshlrev_b32 v4, 5, v3')
        A('s_lshl_b32 s14, s0, 7')
        A(f'buffer_load_dwordx4 v[{XB}:{XB+3}], v4, s[{X}:{X+3}], s14 offen')
        A(f'buffer_load_dwordx4 v[{XB+4}:{XB+7}], v4, s[{X}:{X+3}], s14 offen offset:16')
        A('v_mov_b32 v5, 0')
        A(f'buffer_load_dword v{XP}, v5, s[{X}:{X+3}], 0 offen')
        A('v_lshlrev_b32 v4, 17, v3')
        A('v_lshl_add_u32 v4, v2, 4, v4')
        A('s_lshl_b32 s14, s0, 19')
        A('s_lshl_b32 s15, s31, 2')
        A('s_add_u32 s15, s15, s1')
        A('s_lshl_b32 s15, s15, 8')
        A('s_add_u32 s14, s14, s15')
        for k in range(16):
            A(f'buffer_load_dwordx4 v[{WQR+4*k}:{WQR+4*k+3}], v4, s[{WQ}:{WQ+3}], s14 offen {nt}')
            A('s_add_u32 s14, s14, 8192')
        A('L_h_b0:')
        A('s_barrier')
        self.srd(WO, 12, 0x400000)
        self.srd(W1, 16, 3584)
        self.srd(B1, 18, 3584)
        self.srd(W2, 20, 3584)
        self.srd(B2, 22, 2)
        self.srd(OUT, 24, 1024)
        A(f's_mov_b32 s9, {f2u(LOG2E):#x}')
        A('s_cmp_lg_u32 s33, 0')
        A('s_cbranch_scc1 L_h_pref')
        A('s_waitcnt vmcnt(16)')
        V8 = list(range(28, 36))
        for k in range(4):
            A(f'v_lshlrev_b32 v{V8[2*k]}, 16, v{XA+k}')
            A(f'v_and_b32 v{V8[2*k+1]}, 0xffff0000, v{XA+k}')
        A(f'v_lshlrev_b32 v{XP}, 16, v{XP}')
        TT = list(range(36, 46))
        self.ln_stats(V8, XP, TT, 76, 77, 21, 22)
        V16 = list(range(28, 44))
        for k in range(8):
            A(f'v_lshlrev_b32 v{V16[2*k]}, 16, v{XB+k}')
            A(f'v_and_b32 v{V16[2*k+1]}, 0xffff0000, v{XB+k}')
        self.ln_apply(V16, V16, 21, 22, 23)
        A('v_and_b32 v4, 1, v0')
        A('v_lshlrev_b32 v4, 4, v4')
        A('v_mov_b32 v5, 0xffff')
        A('v_lshlrev_b32 v5, v4, v5')
        A('v_and_b32 v4, 2, v0')
        A('v_cmp_eq_u32 vcc, 0, v4')
        A('v_mov_b32 v6, 0')
        A('s_nop 0')
        A('v_cndmask_b32 v44, v6, v5, vcc')
        A('v_cndmask_b32 v45, v5, v6, vcc')
        QA = 48
        for k in range(16):
            a = 56 + 2 * (k & 3)
            A(f'v_cvt_pk_bf16_f32 v23, v{V16[k]}, v{V16[k]}')
            A(f'v_and_b32 v{a}, v23, v44')
            A(f'v_and_b32 v{a+1}, v23, v45')
            A(f's_waitcnt vmcnt({15 - k})')
            self.nop(1)
            c0 = '0' if k == 0 else f'v[{QA}:{QA+3}]'
            c1 = '0' if k == 0 else f'v[{QA+4}:{QA+7}]'
            A(f'v_mfma_f32_16x16x16_bf16 v[{QA}:{QA+3}], v[{a}:{a+1}], v[{WQR+4*k}:{WQR+4*k+1}], {c0}')
            A(f'v_mfma_f32_16x16x16_bf16 v[{QA+4}:{QA+7}], v[{a}:{a+1}], v[{WQR+4*k+2}:{WQR+4*k+3}], {c1}')
        A('v_mov_b32 v24, -1'); A('v_mov_b32 v25, -1'); A('v_mov_b32 v26, -1'); A('v_mov_b32 v27, -1')
        A('s_lshl_b32 s14, s31, 5')
        A('s_add_u32 s14, s14, s32')
        A('s_mov_b32 s3, s14')
        A('s_mul_i32 s14, s14, 3072')
        A(f's_add_u32 s14, s14, {WS_P1:#x}')
        for k in range(3):
            A(f'buffer_store_dwordx4 v[24:27], v1, s[{WS}:{WS+3}], s14 offen offset:{1024*k} sc1')
        A('s_lshl_b32 s14, s31, 2')
        A('s_add_u32 s14, s14, s34')
        A('s_lshl_b32 s14, s14, 11')
        A('s_lshl_b32 s15, s35, 8')
        A('s_add_u32 s14, s14, s15')
        A(f's_add_u32 s14, s14, {WS_P2:#x}')
        A('v_lshlrev_b32 v5, 2, v0')
        A(f'buffer_store_dword v24, v5, s[{WS}:{WS+3}], s14 offen sc1')
        A('v_lshlrev_b32 v4, 5, v2')
        A('v_lshl_add_u32 v4, v3, 4, v4')
        A('v_cmp_eq_u32 vcc, 1, v3')
        A('s_lshl_b32 s14, s31, 14')
        A('s_lshl_b32 s15, s0, 11')
        A('s_add_u32 s14, s14, s15')
        A('s_lshl_b32 s15, s1, 9')
        A('s_add_u32 s14, s14, s15')
        self.nop(4)
        for k in range(4):
            A(f'v_cndmask_b32 v{QA+k}, v{QA+k}, v{QA+4+k}, vcc')
        A('s_mov_b32 exec_hi, 0')
        A(f'buffer_store_dwordx4 v[{QA}:{QA+3}], v4, s[{WS}:{WS+3}], s14 offen offset:{WS_QP} sc1')
        A('s_mov_b64 exec, 1')
        A('v_mov_b32 v5, s3')
        A('v_mov_b32 v6, 1')
        self.stamp(1)
        A('s_waitcnt vmcnt(0)')
        A(f'buffer_store_byte v6, v5, s[{DBG}:{DBG+3}], 0 offen sc1')
        A('s_mov_b64 exec, 0xff')
        A('v_lshlrev_b32 v5, 2, v0')
        A('s_lshl_b32 s14, s31, 5')
        A(f's_mov_b32 s15, {SPIN_MAX}')
        lp = self.label('pollq')
        A(f'{lp}:')
        A(f'buffer_load_dword v6, v5, s[{DBG}:{DBG+3}], s14 offen sc1')
        A('s_sub_u32 s15, s15, 1')
        A('s_cmp_eq_u32 s15, 0')
        A(f's_cbranch_scc1 {lp}_x')
        A('s_waitcnt vmcnt(0)')
        A('v_cmp_ne_u32 vcc, 0x01010101, v6')
        A(f's_cbranch_vccnz {lp}')
        A(f'{lp}_x:')
        A('s_mov_b64 exec, -1')
        self.stamp(2)
        A('s_lshl_b32 s14, s31, 14')
        for k in range(8):
            A(f'buffer_load_dwordx4 v[{WQR+8*k}:{WQR+8*k+3}], v1, s[{WS}:{WS+3}], s14 offen offset:{WS_QP} sc1')
            A(f'buffer_load_dwordx4 v[{WQR+8*k+4}:{WQR+8*k+7}], v1, s[{WS}:{WS+3}], s14 offen offset:{WS_QP+1024} sc1')
            A('s_add_u32 s14, s14, 2048')
        for k in range(1, 8):
            A(f's_waitcnt vmcnt({2*(7-k)})')
            for c in range(0, 8, 2):
                A(f'v_pk_add_f32 v[{WQR+c}:{WQR+c+1}], v[{WQR+c}:{WQR+c+1}], v[{WQR+8*k+c}:{WQR+8*k+c+1}]')
        for c in range(4):
            A(f'v_cvt_pk_bf16_f32 v{28+c}, v{WQR+2*c}, v{WQR+2*c+1}')
        A('v_lshlrev_b32 v5, 3, v0')
        A(f'ds_write_b64 v5, v[28:29] offset:{LDS_Q}')
        A(f'ds_write_b64 v5, v[30:31] offset:{LDS_Q+512}')
        A('s_waitcnt lgkmcnt(0)')
        self.stamp(3)
        A('L_h_pref:')
        A('s_barrier')
        WOR = 64
        WOT = 80
        W1R, B1R, W2R = 96, 100, 104
        W1F, B1F = 112, 120
        XR = 108
        B2R = 110
        A('v_and_b32 v8, 7, v0')
        A('v_lshrrev_b32 v9, 3, v0')
        A('v_lshlrev_b32 v4, 12, v8')
        A('v_lshl_add_u32 v4, v9, 4, v4')
        A('s_lshl_b32 s14, s31, 2')
        A('s_add_u32 s14, s14, s34')
        A('s_mov_b32 s8, s14')
        A('s_lshl_b32 s14, s14, 17')
        A('s_lshl_b32 s15, s33, 15')
        A('s_add_u32 s14, s14, s15')
        A('s_lshl_b32 s15, s35, 7')
        A('s_add_u32 s14, s14, s15')
        for k in range(4):
            A(f'buffer_load_dwordx4 v[{WOR+4*k}:{WOR+4*k+3}], v4, s[{WO}:{WO+3}], s14 offen offset:{1024*k} {nt}')
        A('s_lshl_b32 s14, s33, 10')
        A(f'buffer_load_dwordx4 v[{W1R}:{W1R+3}], v1, s[{W1}:{W1+3}], s14 offen')
        A(f'buffer_load_dwordx4 v[{B1R}:{B1R+3}], v1, s[{B1}:{B1+3}], s14 offen')
        A(f'buffer_load_dwordx4 v[{W2R}:{W2R+3}], v1, s[{W2}:{W2+3}], s14 offen')
        A('v_and_b32 v10, 31, v0')
        A('v_lshlrev_b32 v5, 3, v10')
        A('s_lshl_b32 s14, s33, 8')
        A(f'buffer_load_dwordx2 v[{XR}:{XR+1}], v5, s[{X}:{X+3}], s14 offen')
        A('v_mov_b32 v5, 0')
        A(f'buffer_load_ushort v{B2R}, v5, s[{B2}:{B2+3}], 0 offen')
        A('v_lshlrev_b32 v5, 2, v0')
        A(f's_mov_b32 s15, {SPIN_MAX}')
        lp = self.label('pollall')
        A(f'{lp}:')
        A(f'buffer_load_dword v6, v5, s[{DBG}:{DBG+3}], 0 offen sc1')
        A('s_sub_u32 s15, s15, 1')
        A('s_cmp_eq_u32 s15, 0')
        A(f's_cbranch_scc1 {lp}_x')
        A('s_waitcnt vmcnt(0)')
        A('v_cmp_ne_u32 vcc, 0x01010101, v6')
        A(f's_cbranch_vccz {lp}_x')
        A('s_sleep 8')
        A(f's_branch {lp}')
        A(f'{lp}_x:')
        A('s_waitcnt vmcnt(0)')
        A('s_mov_b32 s14, 0x05040100')
        A('s_mov_b32 s15, 0x07060302')
        for p in range(2):
            for dw in range(4):
                lo, hi = WOR + 8 * p + dw, WOR + 8 * p + 4 + dw
                A(f'v_perm_b32 v{WOT+8*p+2*dw}, v{hi}, v{lo}, s14')
                A(f'v_perm_b32 v{WOT+8*p+2*dw+1}, v{hi}, v{lo}, s15')
        for k in range(4):
            A(f'v_lshlrev_b32 v{W1F+2*k}, 16, v{W1R+k}')
            A(f'v_and_b32 v{W1F+2*k+1}, 0xffff0000, v{W1R+k}')
            A(f'v_lshlrev_b32 v{B1F+2*k}, 16, v{B1R+k}')
            A(f'v_and_b32 v{B1F+2*k+1}, 0xffff0000, v{B1R+k}')
        XF = 128
        for k in range(2):
            A(f'v_lshlrev_b32 v{XF+2*k}, 16, v{XR+k}')
            A(f'v_and_b32 v{XF+2*k+1}, 0xffff0000, v{XR+k}')
        A(f'v_lshlrev_b32 v{B2R}, 16, v{B2R}')
        GK0, GK1, GONE = 132, 134, 136
        for k in range(2):
            A(f'v_mov_b32 v{GK0+k}, {f2u(GC0):#x}')
            A(f'v_mov_b32 v{GK1+k}, {f2u(GC1):#x}')
            A(f'v_mov_b32 v{GONE+k}, 1.0')
        vOA, vMLA, vP1o, vP1m, vWw, vWr, vP2, vHw, vHr, vHo = 140, 141, 142, 143, 144, 145, 146, 147, 148, 149
        A('s_lshl_b32 s14, s33, 9')
        A(f's_add_u32 s14, s14, {LDS_O}')
        A(f'v_lshl_add_u32 v{vOA}, v10, 4, s14')
        A('s_lshl_b32 s14, s33, 3')
        A(f's_add_u32 s14, s14, {LDS_ML}')
        A(f'v_mov_b32 v{vMLA}, s14')
        A('s_movk_i32 s14, 3072')
        A(f'v_mul_lo_u32 v{vP1m}, v9, s14')
        A('s_lshl_b32 s14, s33, 7')
        A(f'v_lshl_add_u32 v{vP1o}, v8, 4, v{vP1m}')
        A(f'v_add_u32 v{vP1o}, s14, v{vP1o}')
        A('s_lshl_b32 s14, s33, 8')
        A(f's_add_u32 s14, s14, {LDS_W}')
        A(f'v_lshl_add_u32 v{vWw}, v9, 5, s14')
        A(f'v_lshlrev_b32 v{vWr}, 2, v0')
        A('v_lshrrev_b32 v4, 5, v0')
        A('v_lshlrev_b32 v4, 15, v4')
        A('s_lshl_b32 s14, s33, 9')
        A(f'v_lshl_add_u32 v{vP2}, v10, 4, v4')
        A(f'v_add_u32 v{vP2}, s14, v{vP2}')
        A(f's_add_u32 s14, s14, {LDS_H}')
        A(f'v_lshl_add_u32 v{vHw}, v10, 4, s14')
        A('s_lshl_b32 s14, s2, 3')
        A(f's_add_u32 s14, s14, {LDS_H}')
        A(f'v_mov_b32 v{vHo}, s14')
        A('s_lshl_b32 s14, s31, 5')
        A('s_add_u32 s14, s14, s32')
        A('s_mul_i32 s14, s14, 3072')
        A('s_mul_i32 s15, s33, 768')
        A('s_add_u32 s14, s14, s15')
        A(f's_add_u32 s7, s14, {WS_P1:#x}')
        A('s_mul_i32 s14, s31, 98304')
        A('s_mul_i32 s15, s34, 768')
        A('s_add_u32 s14, s14, s15')
        A(f's_add_u32 s76, s14, {WS_P1:#x}')
        A('s_add_u32 s77, s76, 24576')
        A('s_add_u32 s78, s76, 49152')
        A('s_add_u32 s79, s76, 73728')
        A('s_lshl_b32 s14, s8, 11')
        A('s_lshl_b32 s15, s35, 8')
        A('s_add_u32 s14, s14, s15')
        A(f's_add_u32 s6, s14, {WS_P2:#x}')
        A('s_barrier')
        self.stamp(4)
        for w in range(4):
            A(f'ds_read_b64 v[{16+2*w}:{17+2*w}], v{vMLA} offset:{32*w}')
        for w in range(4):
            A(f'ds_read_b128 v[{24+4*w}:{27+4*w}], v{vOA} offset:{2048*w}')
        A('s_waitcnt lgkmcnt(4)')
        A('v_max3_f32 v12, v16, v18, v20')
        A('v_max_f32 v12, v12, v22')
        A('v_mul_f32 v13, s9, v12')
        for w in range(4):
            A(f'v_fma_f32 v{16+2*w}, v{16+2*w}, s9, -v13')
        for w in range(4):
            A(f'v_exp_f32 v{16+2*w}, v{16+2*w}')
        self.nop(1)
        A('v_mul_f32 v13, v16, v17')
        for w in range(1, 4):
            A(f'v_fmac_f32 v13, v{16+2*w}, v{17+2*w}')
        A('s_waitcnt lgkmcnt(0)')
        for c in range(4):
            A(f'v_mul_f32 v{40+c}, v16, v{24+c}')
        for w in range(1, 4):
            for c in range(4):
                A(f'v_fmac_f32 v{40+c}, v{16+2*w}, v{24+4*w+c}')
        A('v_cmp_lt_u32 vcc, 31, v0')
        self.nop(2)
        A('v_cndmask_b32 v40, v40, v12, vcc')
        A('v_cndmask_b32 v41, v41, v13, vcc')
        self.canon([40, 41, 42, 43])
        A('s_mov_b32 exec_lo, -1')
        A('s_mov_b32 exec_hi, 1')
        A(f'buffer_store_dwordx4 v[40:43], v1, s[{WS}:{WS+3}], s7 offen sc1')
        A('s_mov_b64 exec, -1')
        self.stamp(5)
        GO, GM = 16, 32
        A(f's_mov_b32 s15, {SPIN_MAX}')
        lp = self.label('poll1')
        A(f'{lp}:')
        for k in range(4):
            A(f'buffer_load_dwordx4 v[{GO+4*k}:{GO+4*k+3}], v{vP1o}, s[{WS}:{WS+3}], s{76+k} offen sc1')
            A(f'buffer_load_dwordx2 v[{GM+2*k}:{GM+2*k+1}], v{vP1m}, s[{WS}:{WS+3}], s{76+k} offen offset:512 sc1')
        A('s_sub_u32 s15, s15, 1')
        A('s_cmp_eq_u32 s15, 0')
        A(f's_cbranch_scc1 {lp}_x')
        A('s_waitcnt vmcnt(0)')
        A(f'v_max3_u32 v12, v{GO}, v{GO+1}, v{GO+2}')
        A(f'v_max3_u32 v13, v{GO+3}, v{GO+4}, v{GO+5}')
        for k in range(GO + 6, GM + 8, 4):
            A(f'v_max3_u32 v12, v12, v{k}, v{k+1}')
            if k + 3 < GM + 8:
                A(f'v_max3_u32 v13, v13, v{k+2}, v{k+3}')
        A('v_max_u32 v12, v12, v13')
        A('v_cmp_eq_u32 vcc, -1, v12')
        A('s_and_b64 exec, exec, vcc')
        A(f's_cbranch_execnz {lp}')
        A(f'{lp}_x:')
        A('s_mov_b64 exec, -1')
        A('s_waitcnt vmcnt(0)')
        self.stamp(6)
        A(f'v_max3_f32 v12, v{GM}, v{GM+2}, v{GM+4}')
        A(f'v_max_f32 v12, v12, v{GM+6}')
        self.dpp('v_max_f32', [12], 'row_ror:8')
        self.swap_red('v_max_f32', [12], [13], 16)
        self.swap_red('v_max_f32', [12], [13], 32)
        A('v_mul_f32 v12, s9, v12')
        for k in range(4):
            A(f'v_fma_f32 v{GM+2*k}, v{GM+2*k}, s9, -v12')
        for k in range(4):
            A(f'v_exp_f32 v{GM+2*k}, v{GM+2*k}')
        self.nop(1)
        A(f'v_mul_f32 v44, v{GM}, v{GM+1}')
        for c in range(4):
            A(f'v_mul_f32 v{40+c}, v{GM}, v{GO+c}')
        for k in range(1, 4):
            A(f'v_fmac_f32 v44, v{GM+2*k}, v{GM+2*k+1}')
            for c in range(4):
                A(f'v_fmac_f32 v{40+c}, v{GM+2*k}, v{GO+4*k+c}')
        R5 = [40, 41, 42, 43, 44]
        T5 = [45, 46, 47, 48, 49]
        self.dpp('v_add_f32', R5, 'row_ror:8')
        self.swap_red('v_add_f32', R5, T5, 16)
        self.swap_red('v_add_f32', R5, T5, 32)
        A('v_rcp_f32 v44, v44')
        self.nop(1)
        for c in range(4):
            A(f'v_mul_f32 v{40+c}, v{40+c}, v44')
        A('v_cvt_pk_bf16_f32 v40, v40, v41')
        A('v_cvt_pk_bf16_f32 v41, v42, v43')
        for c in range(8):
            A(f'v_dot2_f32_bf16 v{16+c}, v40, v{WOT+c}, 0')
        for c in range(8):
            A(f'v_dot2_f32_bf16 v{16+c}, v41, v{WOT+8+c}, v{16+c}')
        self.nop(3)
        R8 = list(range(16, 24))
        self.dpp('v_add_f32', R8, 'quad_perm:[1,0,3,2]')
        self.dpp('v_add_f32', R8, 'quad_perm:[2,3,0,1]')
        self.dpp('v_add_f32', R8, 'row_half_mirror')
        A(f'ds_write_b128 v{vWw}, v[16:19]')
        A(f'ds_write_b128 v{vWw}, v[20:23] offset:16')
        A('s_waitcnt lgkmcnt(0)')
        A('s_barrier')
        A('s_cmp_lg_u32 s33, 0')
        A('s_cbranch_scc1 L_h_hop2')
        for w in range(4):
            A(f'ds_read_b32 v{16+w}, v{vWr} offset:{LDS_W + 256*w}')
        A('s_waitcnt lgkmcnt(0)')
        A('v_add_f32 v16, v16, v17')
        A('v_add_f32 v18, v18, v19')
        A('v_add_f32 v16, v16, v18')
        self.canon([16])
        A(f'buffer_store_dword v16, v{vWr}, s[{WS}:{WS+3}], s6 offen sc1')
        A('L_h_hop2:')
        self.stamp(7)
        H2 = 160
        A(f's_mov_b32 s15, {SPIN_MAX}')
        lp = self.label('poll2')
        A(f'{lp}:')
        A(f's_mov_b32 s14, {WS_P2:#x}')
        for k in range(16):
            A(f'buffer_load_dwordx4 v[{H2+4*k}:{H2+4*k+3}], v{vP2}, s[{WS}:{WS+3}], s14 offen offset:{2048*(k&1)} sc1')
            if k & 1:
                A('s_add_u32 s14, s14, 4096')
        A('s_sub_u32 s15, s15, 1')
        A('s_cmp_eq_u32 s15, 0')
        A(f's_cbranch_scc1 {lp}_x')
        A('s_waitcnt vmcnt(14)')
        A(f'v_pk_add_f32 v[16:17], v[{H2}:{H2+1}], v[{H2+4}:{H2+5}]')
        A(f'v_pk_add_f32 v[18:19], v[{H2+2}:{H2+3}], v[{H2+6}:{H2+7}]')
        for k in range(2, 16):
            A(f's_waitcnt vmcnt({15-k})')
            A(f'v_pk_add_f32 v[16:17], v[16:17], v[{H2+4*k}:{H2+4*k+1}]')
            A(f'v_pk_add_f32 v[18:19], v[18:19], v[{H2+4*k+2}:{H2+4*k+3}]')
        A('v_add_f32 v20, v16, v17')
        A('v_add_f32 v21, v18, v19')
        A('v_add_f32 v20, v20, v21')
        A('v_cmp_u_f32 vcc, v20, v20')
        A('s_and_b64 exec, exec, vcc')
        A(f's_cbranch_execz {lp}_x')
        A(f'v_max3_u32 v20, v{H2}, v{H2+1}, v{H2+2}')
        A(f'v_max_u32 v20, v20, v{H2+3}')
        for k in range(H2 + 4, H2 + 64, 2):
            A(f'v_max3_u32 v20, v20, v{k}, v{k+1}')
        A('v_cmp_eq_u32 vcc, -1, v20')
        A('s_and_b64 exec, exec, vcc')
        A(f's_cbranch_execnz {lp}')
        A(f'{lp}_x:')
        A('s_mov_b64 exec, -1')
        A('s_waitcnt vmcnt(0)')
        self.stamp(8)
        self.swap_red('v_add_f32', [16, 17, 18, 19], [20, 21, 22, 23], 32)
        self.rnd_bf16_pair(16, 17, 20)
        self.rnd_bf16_pair(18, 19, 20)
        for c in range(4):
            A(f'v_add_f32 v{16+c}, v{16+c}, v{XF+c}')
        self.rnd_bf16_pair(16, 17, 20)
        self.rnd_bf16_pair(18, 19, 20)
        A(f'ds_write_b128 v{vHw}, v[16:19]')
        A('s_waitcnt lgkmcnt(0)')
        A('s_barrier')
        HV = list(range(16, 26))
        A(f'ds_read_b128 v[16:19], v1 offset:{LDS_H}')
        A(f'ds_read_b128 v[20:23], v1 offset:{LDS_H+1024}')
        A(f'ds_read_b64 v[24:25], v{vHo}')
        A('s_waitcnt lgkmcnt(0)')
        TT = list(range(40, 50))
        self.ln_stats(HV[:8], 24, TT, 76, 77, 12, 13)
        AV = list(range(28, 38))
        self.ln_apply(HV, AV, 12, 13, 14)
        self.ln_stats(AV[:8], None, TT, 76, 77, 12, 13)
        self.ln_apply(AV[8:], AV[8:], 12, 13, 14)
        self.stamp(9)
        YA = [56, 57]
        for d in range(2):
            hv = AV[8 + d]
            for p in range(4):
                u = 40 + 8 * (p & 1)
                t = u + 2
                z = u + 4
                A(f'v_mul_f32 v{u}, v{hv}, v{W1F+2*p}')
                A(f'v_mul_f32 v{u+1}, v{hv}, v{W1F+2*p+1}')
                self.rnd_bf16_pair(u, u + 1, t)
                A(f'v_pk_add_f32 v[{u}:{u+1}], v[{u}:{u+1}], v[{B1F+2*p}:{B1F+2*p+1}]')
                self.rnd_bf16_pair(u, u + 1, t)
                A(f'v_pk_mul_f32 v[{t}:{t+1}], v[{u}:{u+1}], v[{u}:{u+1}]')
                A(f'v_pk_fma_f32 v[{t}:{t+1}], v[{t}:{t+1}], v[{GK1}:{GK1+1}], v[{GK0}:{GK0+1}]')
                A(f'v_pk_mul_f32 v[{z}:{z+1}], v[{t}:{t+1}], v[{u}:{u+1}]')
                A(f'v_exp_f32 v{z}, v{z}')
                A(f'v_exp_f32 v{z+1}, v{z+1}')
                self.nop(1)
                A(f'v_pk_add_f32 v[{z}:{z+1}], v[{z}:{z+1}], v[{GONE}:{GONE+1}]')
                A(f'v_rcp_f32 v{z}, v{z}')
                A(f'v_rcp_f32 v{z+1}, v{z+1}')
                self.nop(1)
                A(f'v_pk_mul_f32 v[{u}:{u+1}], v[{u}:{u+1}], v[{z}:{z+1}]')
                A(f'v_cvt_pk_bf16_f32 v{u}, v{u}, v{u+1}')
                cc = '0' if p == 0 else f'v{YA[d]}'
                A(f'v_dot2_f32_bf16 v{YA[d]}, v{u}, v{W2R+p}, {cc}')
        self.nop(3)
        self.wave_sum_to_sgpr(YA, [76, 77])
        A('v_mov_b32 v16, s76')
        A('v_mov_b32 v17, s77')
        A('s_lshl_b32 s14, s33, 3')
        A(f's_add_u32 s14, s14, {LDS_Y}')
        A('v_mov_b32 v18, s14')
        A('ds_write_b64 v18, v[16:17]')
        A('s_waitcnt lgkmcnt(0)')
        A('s_barrier')
        A('s_cmp_lg_u32 s33, 0')
        lend = self.label('hend')
        A(f's_cbranch_scc1 {lend}')
        A(f'v_mov_b32 v18, {LDS_Y}')
        A('ds_read_b128 v[16:19], v18')
        A(f'v_mov_b32 v12, {LDS_Y+16}')
        A('ds_read_b128 v[20:23], v12')
        A('s_waitcnt lgkmcnt(0)')
        A('v_pk_add_f32 v[16:17], v[16:17], v[18:19]')
        A('v_pk_add_f32 v[20:21], v[20:21], v[22:23]')
        A('v_pk_add_f32 v[16:17], v[16:17], v[20:21]')
        self.rnd_bf16_pair(16, 17, 20)
        A(f'v_add_f32 v16, v16, v{B2R}')
        A(f'v_add_f32 v17, v17, v{B2R}')
        self.rnd_bf16_pair(16, 17, 20)
        A('v_add_f32 v16, v16, v24')
        A('v_add_f32 v17, v17, v25')
        A('v_cvt_pk_bf16_f32 v16, v16, v17')
        A('s_lshl_b32 s14, s2, 2')
        A('v_mov_b32 v18, 0')
        A('s_mov_b64 exec, 1')
        A(f'buffer_store_dword v16, v18, s[{OUT}:{OUT+3}], s14 offen')
        A(f'{lend}:')
        self.stamp(10)
        self.write_stamps(11)


if __name__ == '__main__':
    out = sys.argv[1]
    kw = json.loads(sys.argv[2]) if len(sys.argv) > 2 else {}
    open(out, 'w').write(Gen(**kw).build())
```

```python
import sys, json, struct

KN = 'sequential_preLN__gqa_block_cached__mixer_token_mlp__decode'
HEADER = open('cdna_kernels/' + KN + '.s.ref').read().split('; Override launch')[0]


def f2u(x):
    return struct.unpack('<I', struct.pack('<f', x))[0]


LOG2E = 1.4426950408889634
SCALE = 128 ** -0.5
GC0 = -2.0 * (2.0 / 3.141592653589793) ** 0.5 * LOG2E
GC1 = GC0 * 0.044715

WS_QP = 0x0
WS_E = 0x40000
WS_F = 0x41000
TAGC = 0x9E3779B97F4A7C15
WS_P1 = 0x42000
WS_P2 = 0x110000
WS_SIZE = 0x20000000
STAMP_OFF = 0x10000000
LDS_Q = 0
LDS_O = 1024
LDS_ML = LDS_O + 8192
LDS_W = LDS_ML + 128
LDS_H = LDS_W + 1024
LDS_Y = LDS_H + 2048
LDS_F = LDS_Y + 64
LDS_TOTAL = LDS_F + 16

SPIN_MAX = 20000


class Gen:
    def __init__(self, **kw):
        self.L = []
        self.o = dict(ring=12, pre=4, pre0=1, stamps=False, nt='nt', headmap='mod', pollsleep=4, qdelay=0)
        self.o.update(kw)
        self.lab = 0
        self.in_streamer = True

    def A(self, s):
        self.L.append(s)

    def nop(self, n):
        if n > 0:
            self.A(f's_nop {n-1}')

    def label(self, base):
        self.lab += 1
        return f'L_{base}_{self.lab}'

    def srd(self, r, ptr, size):
        A = self.A
        A(f's_mov_b32 s{r}, s{ptr}')
        A(f's_and_b32 s{r+1}, s{ptr+1}, 0xffff')
        A(f's_mov_b32 s{r+2}, {size:#x}')
        A(f's_mov_b32 s{r+3}, 0x20000')

    def sreg(self, idx):
        return 80 + 2 * idx if idx < 8 else [98, 100, 4][idx - 8]

    def stamp(self, idx, qset=False):
        if self.o['stamps'] and (idx < 4 or self.in_streamer or qset == (self.o['stamps'] == 'q')):
            r = self.sreg(idx)
            self.A(f's_memrealtime s[{r}:{r+1}]')

    def dpp(self, op, regs, ctrl, rm='0xf'):
        A = self.A
        n = len(regs)
        if n < 3:
            self.nop(3 - n)
        for r in regs:
            A(f'{op}_dpp v{r}, v{r}, v{r} {ctrl} row_mask:{rm} bank_mask:0xf')

    def swap_red(self, op, regs, tmps, width):
        A = self.A
        for r, t in zip(regs, tmps):
            A(f'v_mov_b32 v{t}, v{r}')
        self.nop(2)
        for r, t in zip(regs, tmps):
            A(f'v_permlane{width}_swap_b32 v{r}, v{t}')
        self.nop(2)
        for r, t in zip(regs, tmps):
            A(f'{op} v{r}, v{r}, v{t}')

    def wave_sum_to_sgpr(self, regs, sregs):
        A = self.A
        self.dpp('v_add_f32', regs, 'quad_perm:[1,0,3,2]')
        self.dpp('v_add_f32', regs, 'quad_perm:[2,3,0,1]')
        self.dpp('v_add_f32', regs, 'row_half_mirror')
        self.dpp('v_add_f32', regs, 'row_mirror')
        self.dpp('v_add_f32', regs, 'row_bcast:15', '0xa')
        self.dpp('v_add_f32', regs, 'row_bcast:31', '0xc')
        self.nop(1)
        for r, s in zip(regs, sregs):
            A(f'v_readlane_b32 s{s}, v{r}, 63')
        self.nop(2)

    def rnd_bf16(self, dst, src):
        self.A(f'v_cvt_pk_bf16_f32 v{dst}, v{src}, v{src}')
        self.A(f'v_lshlrev_b32 v{dst}, 16, v{dst}')

    def rnd_bf16_pair(self, a, b, t):
        self.A(f'v_cvt_pk_bf16_f32 v{t}, v{a}, v{b}')
        self.A(f'v_lshlrev_b32 v{a}, 16, v{t}')
        self.A(f'v_and_b32 v{b}, 0xffff0000, v{t}')

    def ln_stats(self, vals, piv, t, s_a, s_b, vm, vr):
        A = self.A
        d = t[:8]
        s1, s2 = t[8], t[9]
        if piv is not None:
            for k in range(8):
                A(f'v_sub_f32 v{d[k]}, v{vals[k]}, v{piv}')
            src = d
        else:
            src = vals
        A(f'v_add_f32 v{s1}, v{src[0]}, v{src[1]}')
        A(f'v_mul_f32 v{s2}, v{src[0]}, v{src[0]}')
        A(f'v_fmac_f32 v{s2}, v{src[1]}, v{src[1]}')
        for k in range(2, 8):
            A(f'v_add_f32 v{s1}, v{s1}, v{src[k]}')
            A(f'v_fmac_f32 v{s2}, v{src[k]}, v{src[k]}')
        self.wave_sum_to_sgpr([s1, s2], [s_a, s_b])
        inv = f2u(1.0 / 512)
        A(f'v_mov_b32 v{s1}, {inv:#x}')
        A(f'v_mul_f32 v{s2}, s{s_b}, v{s1}')
        A(f'v_mul_f32 v{s1}, s{s_a}, v{s1}')
        A(f'v_fma_f32 v{s2}, -v{s1}, v{s1}, v{s2}')
        A(f'v_max_f32 v{s2}, 0, v{s2}')
        if piv is not None:
            A(f'v_add_f32 v{s1}, v{s1}, v{piv}')
        self.rnd_bf16_pair(s1, s2, d[0])
        A(f'v_mov_b32 v{vm}, v{s1}')
        A(f'v_add_f32 v{s2}, {f2u(1e-5):#x}, v{s2}')
        self.rnd_bf16(s2, s2)
        A(f'v_sqrt_f32 v{s2}, v{s2}')
        self.nop(1)
        self.rnd_bf16(s2, s2)
        A(f'v_rcp_f32 v{vr}, v{s2}')
        self.nop(1)

    def ln_apply(self, vals, outs, vm, vr, t):
        A = self.A
        for k in range(0, len(vals), 2):
            a, b = outs[k], outs[k + 1]
            A(f'v_sub_f32 v{a}, v{vals[k]}, v{vm}')
            A(f'v_sub_f32 v{b}, v{vals[k+1]}, v{vm}')
            self.rnd_bf16_pair(a, b, t)
            A(f'v_mul_f32 v{a}, v{a}, v{vr}')
            A(f'v_mul_f32 v{b}, v{b}, v{vr}')
            self.rnd_bf16_pair(a, b, t)

    def lds_wait(self, vaddr, off):
        A = self.A
        lp = self.label('ldsw')
        A(f's_mov_b32 s15, {SPIN_MAX*20}')
        A(f'{lp}:')
        A(f'ds_read_b32 v11, v{vaddr} offset:{off}')
        A('s_sub_u32 s15, s15, 1')
        A('s_cmp_eq_u32 s15, 0')
        A(f's_cbranch_scc1 {lp}_x')
        A('s_waitcnt lgkmcnt(0)')
        A('v_cmp_eq_u32 vcc, 0, v11')
        A(f's_cbranch_vccz {lp}_x')
        A('s_sleep 1')
        A(f's_branch {lp}')
        A(f'{lp}_x:')
        A('s_waitcnt lgkmcnt(0)')

    def canon(self, regs):
        A = self.A
        for r in regs:
            A(f'v_min_u32 v{r}, 0xfffffffe, v{r}')

    def build(self):
        A = self.A
        o = self.o
        A(HEADER.rstrip('\n'))
        A(f'; @launch grid=(256,1,1) block=(512,1,1) lds={LDS_TOTAL}')
        A('.amdgcn_target "amdgcn-amd-amdhsa--gfx950"')
        A('.text')
        A(f'.globl {KN}_kernel')
        A('.p2align 8')
        A(f'.type {KN}_kernel,@function')
        A(f'{KN}_kernel:')
        A('s_cmp_ge_u32 s2, 256')
        A('s_cbranch_scc1 L_end')
        A('s_load_dwordx16 s[4:19], s[0:1], 0')
        A('s_load_dwordx8 s[20:27], s[0:1], 64')
        A('s_load_dwordx2 s[28:29], s[0:1], 96')
        self.stamp(0)
        A('v_lshrrev_b32 v1, 6, v0')
        A('v_and_b32 v0, 63, v0')
        A('v_readfirstlane_b32 s30, v1')
        if o['headmap'] == 'mod':
            A('s_and_b32 s31, s2, 7')
            A('s_lshr_b32 s32, s2, 3')
        else:
            A('s_lshr_b32 s31, s2, 5')
            A('s_and_b32 s32, s2, 31')
        A('s_cmp_ge_u32 s30, 4')
        A('s_cbranch_scc1 L_helper')
        self.streamer()
        A('L_helper:')
        self.in_streamer = False
        self.helper()
        A('L_end:')
        A('s_endpgm')
        A('.section .rodata,"a"')
        A('.p2align 6')
        A(f'.amdhsa_kernel {KN}_kernel')
        A('  .amdhsa_next_free_vgpr 256')
        A('  .amdhsa_next_free_sgpr 102')
        A('  .amdhsa_accum_offset 256')
        A('  .amdhsa_group_segment_fixed_size 0')
        A('  .amdhsa_kernarg_size 104')
        A('  .amdhsa_user_sgpr_count 2')
        A('  .amdhsa_user_sgpr_kernarg_segment_ptr 1')
        A('  .amdhsa_system_sgpr_workgroup_id_x 1')
        A('  .amdhsa_float_denorm_mode_32 3')
        A('.end_amdhsa_kernel')
        return '\n'.join(self.L) + '\n'

    def write_stamps(self, n):
        if not self.o['stamps']:
            return
        A = self.A
        A('s_waitcnt lgkmcnt(0)')
        A('s_mov_b64 exec, 1')
        A('s_lshl_b32 s33, s2, 3')
        A('s_add_u32 s33, s33, s30')
        A('s_lshl_b32 s33, s33, 7')
        A(f's_add_u32 s33, s33, {STAMP_OFF:#x}')
        self.srd(76, 28, WS_SIZE)
        A('v_mov_b32 v1, 0')
        for k in range(n):
            A(f'v_mov_b32 v2, s{self.sreg(k)}')
            A(f'v_mov_b32 v3, s{self.sreg(k)+1}')
            A(f'buffer_store_dwordx2 v[2:3], v1, s[76:79], s33 offen offset:{8*k}')
            A('s_nop 1')
        A('s_waitcnt vmcnt(0)')

    def streamer(self):
        A = self.A
        o = self.o
        R = o['ring']
        nt = o['nt']
        T = 32
        N = 2 * T
        RB = 64
        assert RB + 16 * R <= 256
        vK, vV = 1, 2
        Q = 4
        C = [20, 24]
        G = 28
        S2 = 30
        vmax, vl, vnm = 46, 47, 3
        ACC = 48
        D = 56
        M0, M1 = 60, 61
        TA = [20, 22, 24, 26]
        U = [4, 5, 6, 7]
        KT = [56, 57, 58, 59, 62, 63]

        A('v_and_b32 v4, 3, v0')
        A('v_lshlrev_b32 v4, 10, v4')
        A('v_bfe_u32 v5, v0, 2, 2')
        A('v_lshlrev_b32 v5, 8, v5')
        A('v_lshrrev_b32 v6, 4, v0')
        A('v_lshlrev_b32 v6, 4, v6')
        A(f'v_add3_u32 v{vK}, v4, v5, v6')
        A(f'v_lshlrev_b32 v{vV}, 4, v0')
        A('s_lshl_b32 s44, s31, 24')
        A('s_lshl_b32 s45, s32, 19')
        A('s_add_u32 s44, s44, s45')
        A('s_lshl_b32 s45, s30, 12')
        A('s_add_u32 s44, s44, s45')
        A('s_waitcnt lgkmcnt(0)')
        self.srd(36, 6, 0x8000000)
        self.srd(40, 8, 0x8000000)

        def issue(n):
            r = RB + (n % R) * 16
            t = n % T
            A(f's_add_u32 s45, s44, {t*16384:#x}')
            for j in range(4):
                if n < T:
                    A(f'buffer_load_dwordx4 v[{r+4*j}:{r+4*j+3}], v{vK}, s[36:39], s45 offen offset:{64*j} {nt}')
                else:
                    A(f'buffer_load_dwordx4 v[{r+4*j}:{r+4*j+3}], v{vV}, s[40:43], s45 offen offset:{1024*j} {nt}')

        pre0, pre = o['pre0'], o['pre']
        for n in range(pre0):
            issue(n)
        A('s_barrier')
        for n in range(pre0, pre):
            issue(n)
        A('s_mov_b32 s50, 0x22222222'); A('s_mov_b32 s51, 0x22222222')
        A('s_mov_b32 s52, 0x44444444'); A('s_mov_b32 s53, 0x44444444')
        A('s_mov_b32 s54, 0x88888888'); A('s_mov_b32 s55, 0x88888888')
        A(f's_mov_b32 s56, {f2u(SCALE):#x}')
        A(f's_mov_b32 s57, {f2u(LOG2E):#x}')
        A('v_and_b32 v4, 1, v0')
        A('v_lshlrev_b32 v4, 4, v4')
        A('v_mov_b32 v5, 0xffff')
        A('v_lshlrev_b32 v5, v4, v5')
        A('v_and_b32 v4, 2, v0')
        A('v_cmp_eq_u32 vcc, 0, v4')
        A('v_mov_b32 v6, 0')
        A(f'v_mov_b32 v{vmax}, 0xff800000')
        A(f'v_cndmask_b32 v{M0}, v6, v5, vcc')
        A(f'v_cndmask_b32 v{M1}, v5, v6, vcc')
        A(f'v_mov_b32 v{vl}, 0')
        for k in range(8):
            A(f'v_mov_b32 v{ACC+k}, 0')
        A('v_bfe_u32 v62, v0, 2, 2')
        A('v_lshlrev_b32 v62, 8, v62')
        A('v_lshrrev_b32 v63, 4, v0')
        A('v_lshl_add_u32 v62, v63, 4, v62')
        for n in range(pre, R):
            A(f's_waitcnt vmcnt({4*(pre-1)})')
            issue(n)
        self.stamp(1)
        A('s_barrier')
        for j in range(4):
            A(f'ds_read_b128 v[{Q+4*j}:{Q+4*j+3}], v62 offset:{LDS_Q + 64*j}')
        self.stamp(2)
        A('s_waitcnt lgkmcnt(0)')

        def kpost(t):
            c = C[t & 1]
            tt = t & 3
            if tt == 0:
                A(f'v_cvt_pk_bf16_f32 v{G}, v{c}, v{c+1}')
                A(f'v_cvt_pk_bf16_f32 v{G+1}, v{c+2}, v{c+3}')
            else:
                A(f'v_cvt_pk_bf16_f32 v{KT[4]}, v{c}, v{c+1}')
                A(f'v_cvt_pk_bf16_f32 v{KT[5]}, v{c+2}, v{c+3}')
                sm = 48 + 2 * tt
                A(f'v_cndmask_b32 v{G}, v{G}, v{KT[4]}, s[{sm}:{sm+1}]')
                A(f'v_cndmask_b32 v{G+1}, v{G+1}, v{KT[5]}, s[{sm}:{sm+1}]')
            if tt == 3:
                grp = t // 4
                u = KT[:4]
                A(f'v_lshlrev_b32 v{u[0]}, 16, v{G}')
                A(f'v_and_b32 v{u[1]}, 0xffff0000, v{G}')
                A(f'v_lshlrev_b32 v{u[2]}, 16, v{G+1}')
                A(f'v_and_b32 v{u[3]}, 0xffff0000, v{G+1}')
                for k in range(4):
                    A(f'v_mul_f32 v{u[k]}, s56, v{u[k]}')
                A(f'v_max3_f32 v{vmax}, v{vmax}, v{u[0]}, v{u[1]}')
                A(f'v_max3_f32 v{vmax}, v{vmax}, v{u[2]}, v{u[3]}')
                A(f'v_cvt_pk_bf16_f32 v{S2+2*grp}, v{u[0]}, v{u[1]}')
                A(f'v_cvt_pk_bf16_f32 v{S2+2*grp+1}, v{u[2]}, v{u[3]}')

        for n in range(T):
            r = RB + (n % R) * 16
            c = C[n & 1]
            A(f's_waitcnt vmcnt({min(4*(R-1), 4*(N-1-n))})')
            for j in range(4):
                cc = '0' if j == 0 else f'v[{c}:{c+3}]'
                A(f'v_mfma_f32_16x16x32_bf16 v[{c}:{c+3}], v[{r+4*j}:{r+4*j+3}], v[{Q+4*j}:{Q+4*j+3}], {cc}')
            if n + R < N:
                issue(n + R)
            if n >= 1:
                kpost(n - 1)
        self.nop(9)
        kpost(T - 1)
        self.dpp('v_max_f32', [vmax], 'quad_perm:[1,0,3,2]')
        self.dpp('v_max_f32', [vmax], 'quad_perm:[2,3,0,1]')
        self.swap_red('v_max_f32', [vmax], [62], 16)
        self.swap_red('v_max_f32', [vmax], [62], 32)
        self.rnd_bf16(vmax, vmax)
        A(f'v_mul_f32 v{vnm}, s57, v{vmax}')
        A(f'v_sub_f32 v{vnm}, 0, v{vnm}')
        self.stamp(3)
        for t in range(T):
            n = T + t
            r = RB + (n % R) * 16
            tt = t & 3
            if tt == 0:
                grp = t // 4
                A(f'v_lshlrev_b32 v{U[0]}, 16, v{S2+2*grp}')
                A(f'v_and_b32 v{U[1]}, 0xffff0000, v{S2+2*grp}')
                A(f'v_lshlrev_b32 v{U[2]}, 16, v{S2+2*grp+1}')
                A(f'v_and_b32 v{U[3]}, 0xffff0000, v{S2+2*grp+1}')
                for k in range(4):
                    A(f'v_fma_f32 v{U[k]}, v{U[k]}, s57, v{vnm}')
                for k in range(4):
                    A(f'v_exp_f32 v{U[k]}, v{U[k]}')
                self.nop(1)
                for k in range(4):
                    A(f'v_cvt_pk_bf16_f32 v{D+k}, v{U[k]}, v{U[k]}')
                A(f'v_add_f32 v{U[0]}, v{U[0]}, v{U[1]}')
                A(f'v_add_f32 v{U[2]}, v{U[2]}, v{U[3]}')
                A(f'v_add_f32 v{vl}, v{vl}, v{U[0]}')
                A(f'v_add_f32 v{vl}, v{vl}, v{U[2]}')
            qp = f'quad_perm:[{tt},{tt},{tt},{tt}] row_mask:0xf bank_mask:0xf'
            for k in range(4):
                A(f'v_and_b32_dpp v{TA[k]}, v{D+k}, v{M0} {qp}')
                A(f'v_and_b32_dpp v{TA[k]+1}, v{D+k}, v{M1} {qp}')
            A(f's_waitcnt vmcnt({min(4*(R-1), 4*(N-1-n))})')
            self.nop(1)
            for k in range(4):
                A(f'v_mfma_f32_16x16x16_bf16 v[{ACC}:{ACC+3}], v[{TA[k]}:{TA[k]+1}], v[{r+4*k}:{r+4*k+1}], v[{ACC}:{ACC+3}]')
                A(f'v_mfma_f32_16x16x16_bf16 v[{ACC+4}:{ACC+7}], v[{TA[k]}:{TA[k]+1}], v[{r+4*k+2}:{r+4*k+3}], v[{ACC+4}:{ACC+7}]')
            if n + R < N:
                issue(n + R)
        self.stamp(4)
        self.dpp('v_add_f32', [vl], 'quad_perm:[1,0,3,2]')
        self.dpp('v_add_f32', [vl], 'quad_perm:[2,3,0,1]')
        self.swap_red('v_add_f32', [vl], [62], 16)
        self.swap_red('v_add_f32', [vl], [62], 32)
        A('s_lshl_b32 s45, s30, 11')
        A(f's_add_u32 s45, s45, {LDS_O}')
        A('v_lshlrev_b32 v4, 5, v0')
        A('v_add_u32 v4, s45, v4')
        A('s_lshl_b32 s45, s30, 5')
        A(f's_add_u32 s45, s45, {LDS_ML}')
        A('v_bfe_u32 v5, v0, 2, 2')
        A('v_lshlrev_b32 v5, 3, v5')
        A('v_add_u32 v5, s45, v5')
        A(f'ds_write_b128 v4, v[{ACC}:{ACC+3}]')
        A(f'ds_write_b128 v4, v[{ACC+4}:{ACC+7}] offset:16')
        A(f'ds_write_b64 v5, v[{vmax}:{vl}]')
        A('s_waitcnt lgkmcnt(0)')
        A('s_barrier')
        self.write_stamps(5)
        A('s_endpgm')

    def helper(self):
        A = self.A
        o = self.o
        nt = o['nt']
        X, WQ, WS, DBG, WO, W1, B1, W2, B2, OUT = 36, 40, 44, 48, 52, 56, 60, 64, 68, 72
        A('s_sub_u32 s33, s30, 4')
        A('s_lshr_b32 s34, s32, 3')
        A('s_and_b32 s35, s32, 7')
        A('v_lshlrev_b32 v1, 4, v0')
        A('v_and_b32 v2, 15, v0')
        A('v_lshrrev_b32 v3, 4, v0')
        A('s_waitcnt lgkmcnt(0)')
        self.srd(X, 4, 1024)
        self.srd(WQ, 10, 0x400000)
        self.srd(WS, 28, WS_SIZE)
        self.srd(DBG, 26, 256)
        A('s_setprio 3')
        A(f's_load_dwordx2 s[96:97], s[28:29], {WS_E:#x}')
        A('s_lshr_b32 s0, s32, 2')
        A('s_and_b32 s1, s32, 3')
        A('s_lshl_b32 s3, s31, 5')
        A('s_add_u32 s3, s3, s32')
        A('s_cmp_lg_u32 s33, 0')
        A('s_cbranch_scc1 L_h_b0')
        XA = 8
        XB = 12
        XP = 20
        WQR = 64
        A('v_lshlrev_b32 v4, 17, v3')
        A('v_lshl_add_u32 v4, v2, 4, v4')
        A('s_lshl_b32 s14, s0, 19')
        A('s_lshl_b32 s15, s31, 2')
        A('s_add_u32 s15, s15, s1')
        A('s_lshl_b32 s15, s15, 8')
        A('s_add_u32 s14, s14, s15')
        A(f'buffer_load_dwordx4 v[{XA}:{XA+3}], v1, s[{X}:{X+3}], 0 offen')
        A('v_lshlrev_b32 v6, 5, v3')
        A('s_lshl_b32 s15, s0, 7')
        A(f'buffer_load_dwordx4 v[{XB}:{XB+3}], v6, s[{X}:{X+3}], s15 offen')
        A(f'buffer_load_dwordx4 v[{XB+4}:{XB+7}], v6, s[{X}:{X+3}], s15 offen offset:16')
        A('v_mov_b32 v5, 0')
        A(f'buffer_load_dword v{XP}, v5, s[{X}:{X+3}], 0 offen')
        for k in range(16):
            A(f'buffer_load_dwordx4 v[{WQR+4*k}:{WQR+4*k+3}], v4, s[{WQ}:{WQ+3}], s14 offen {nt}')
            A('s_add_u32 s14, s14, 8192')
        A(f'v_mov_b32 v7, {LDS_F}')
        A('ds_write_b32 v7, v5')
        A('s_waitcnt lgkmcnt(0)')
        A('L_h_b0:')
        self.stamp(4, True)
        A('s_barrier')
        self.stamp(5, True)
        self.srd(WO, 12, 0x400000)
        self.srd(W1, 16, 3584)
        self.srd(B1, 18, 3584)
        self.srd(W2, 20, 3584)
        self.srd(B2, 22, 2)
        self.srd(OUT, 24, 1024)
        A(f's_mov_b32 s9, {f2u(LOG2E):#x}')
        A('s_waitcnt lgkmcnt(0)')
        A(f's_add_u32 s96, s96, {TAGC & 0xffffffff:#x}')
        A(f's_addc_u32 s97, s97, {TAGC >> 32:#x}')
        A('s_cmp_lg_u32 s33, 0')
        A('s_cbranch_scc1 L_h_qgather')
        A('s_waitcnt vmcnt(16)')
        self.stamp(6, True)
        V8 = list(range(28, 36))
        for k in range(4):
            A(f'v_lshlrev_b32 v{V8[2*k]}, 16, v{XA+k}')
            A(f'v_and_b32 v{V8[2*k+1]}, 0xffff0000, v{XA+k}')
        A(f'v_lshlrev_b32 v{XP}, 16, v{XP}')
        TT = list(range(36, 46))
        self.ln_stats(V8, XP, TT, 76, 77, 21, 22)
        self.stamp(7, True)
        V16 = list(range(28, 44))
        for k in range(8):
            A(f'v_lshlrev_b32 v{V16[2*k]}, 16, v{XB+k}')
            A(f'v_and_b32 v{V16[2*k+1]}, 0xffff0000, v{XB+k}')
        self.ln_apply(V16, V16, 21, 22, 23)
        A('v_and_b32 v4, 1, v0')
        A('v_lshlrev_b32 v4, 4, v4')
        A('v_mov_b32 v5, 0xffff')
        A('v_lshlrev_b32 v5, v4, v5')
        A('v_and_b32 v4, 2, v0')
        A('v_cmp_eq_u32 vcc, 0, v4')
        A('v_mov_b32 v6, 0')
        A('s_nop 0')
        A('v_cndmask_b32 v44, v6, v5, vcc')
        A('v_cndmask_b32 v45, v5, v6, vcc')
        QA = 48
        A('v_lshlrev_b32 v4, 6, v2')
        A('v_lshl_add_u32 v4, v3, 4, v4')
        A('s_lshl_b32 s6, s31, 15')
        A('s_lshl_b32 s15, s0, 12')
        A('s_add_u32 s6, s6, s15')
        A('s_lshl_b32 s15, s1, 10')
        A('s_add_u32 s6, s6, s15')
        A('v_and_b32 v5, 1, v3')
        A('v_cmp_eq_u32 s[76:77], 1, v5')
        A('v_cmp_lt_u32 s[78:79], 1, v3')
        A('v_mov_b32 v26, s96')
        A('v_mov_b32 v27, s97')
        for k in range(16):
            a = 56 + 2 * (k & 3)
            A(f'v_cvt_pk_bf16_f32 v23, v{V16[k]}, v{V16[k]}')
            A(f'v_and_b32 v{a}, v23, v44')
            A(f'v_and_b32 v{a+1}, v23, v45')
            A(f's_waitcnt vmcnt({15 - k})')
            if k == 0: self.stamp(8, True)
            if k == 8: self.stamp(9, True)
            if k == 15: self.stamp(10, True)
            self.nop(1)
            c0 = '0' if k == 0 else f'v[{QA}:{QA+3}]'
            c1 = '0' if k == 0 else f'v[{QA+4}:{QA+7}]'
            A(f'v_mfma_f32_16x16x16_bf16 v[{QA}:{QA+3}], v[{a}:{a+1}], v[{WQR+4*k}:{WQR+4*k+1}], {c0}')
            A(f'v_mfma_f32_16x16x16_bf16 v[{QA+4}:{QA+7}], v[{a}:{a+1}], v[{WQR+4*k+2}:{WQR+4*k+3}], {c1}')
        self.nop(8)
        for k in range(4):
            A(f'v_cndmask_b32 v{QA+k}, v{QA+k}, v{QA+4+k}, s[78:79]')
        A(f'v_cndmask_b32 v24, v{QA}, v{QA+2}, s[76:77]')
        A(f'v_cndmask_b32 v25, v{QA+1}, v{QA+3}, s[76:77]')
        A(f'buffer_store_dwordx4 v[24:27], v4, s[{WS}:{WS+3}], s6 offen offset:{WS_QP} sc1')
        self.stamp(1)
        A('v_lshlrev_b32 v5, 10, v0')
        A('s_lshl_b32 s14, s31, 15')
        A('s_mov_b32 exec_hi, 0')
        A(f's_mov_b32 s15, {SPIN_MAX}')
        lp = self.label('probe')
        A(f'{lp}:')
        A(f's_sleep {o["pollsleep"]}')
        A(f'buffer_load_dwordx2 v[24:25], v5, s[{WS}:{WS+3}], s14 offen offset:{WS_QP+1016} sc1')
        A('s_sub_u32 s15, s15, 1')
        A('s_cmp_eq_u32 s15, 0')
        A(f's_cbranch_scc1 {lp}_x')
        A('s_waitcnt vmcnt(0)')
        A('v_cmp_ne_u64 vcc, s[96:97], v[24:25]')
        A('s_and_b64 exec, exec, vcc')
        A(f's_cbranch_execnz {lp}')
        A(f'{lp}_x:')
        A('s_mov_b64 exec, -1')
        A('v_mov_b32 v6, 1')
        A('ds_write_b32 v7, v6')
        A('L_h_qgather:')
        A(f'v_mov_b32 v7, {LDS_F}')
        A('s_lshl_b32 s14, s31, 15')
        A('s_lshl_b32 s15, s33, 10')
        A('s_add_u32 s14, s14, s15')
        self.lds_wait(7, 0)
        A(f's_mov_b32 s15, {SPIN_MAX}')
        lp = self.label('pollqd')
        A(f'{lp}:')
        A('s_mov_b32 s8, s14')
        for k in range(8):
            A(f'buffer_load_dwordx4 v[{64+4*k}:{67+4*k}], v1, s[{WS}:{WS+3}], s8 offen offset:{WS_QP} sc1')
            if k < 7:
                A('s_add_u32 s8, s8, 4096')
        A('s_sub_u32 s15, s15, 1')
        A('s_cmp_eq_u32 s15, 0')
        A(f's_cbranch_scc1 {lp}_x')
        for k in range(8):
            A(f's_waitcnt vmcnt({7-k})')
            if k == 0:
                A(f'v_cmp_ne_u64 s[76:77], s[96:97], v[{66+4*k}:{67+4*k}]')
            else:
                A(f'v_cmp_ne_u64 vcc, s[96:97], v[{66+4*k}:{67+4*k}]')
                A('s_or_b64 s[76:77], s[76:77], vcc')
        A('s_and_b64 exec, exec, s[76:77]')
        A(f's_cbranch_execz {lp}_x')
        A(f's_sleep {o["pollsleep"]}')
        A(f's_branch {lp}')
        A(f'{lp}_x:')
        A('s_mov_b64 exec, -1')
        A('s_waitcnt vmcnt(0)')
        self.stamp(2)
        for k in range(4):
            A(f'v_pk_add_f32 v[{64+8*k}:{65+8*k}], v[{64+8*k}:{65+8*k}], v[{68+8*k}:{69+8*k}]')
        A('v_pk_add_f32 v[64:65], v[64:65], v[72:73]')
        A('v_pk_add_f32 v[80:81], v[80:81], v[88:89]')
        A('v_pk_add_f32 v[64:65], v[64:65], v[80:81]')
        A('v_cvt_pk_bf16_f32 v16, v64, v65')
        A('s_lshl_b32 s15, s33, 8')
        A('v_lshl_add_u32 v5, v0, 2, s15')
        A(f'ds_write_b32 v5, v16 offset:{LDS_Q}')
        A('s_waitcnt lgkmcnt(0)')
        self.stamp(3)
        A('s_barrier')
        A('s_cmp_lg_u32 s33, 1')
        A('s_cbranch_scc1 L_h_pref')
        A('v_mov_b32 v24, -1'); A('v_mov_b32 v25, -1'); A('v_mov_b32 v26, -1'); A('v_mov_b32 v27, -1')
        A('s_mul_i32 s14, s3, 3072')
        A(f's_add_u32 s14, s14, {WS_P1:#x}')
        for k in range(3):
            A(f'buffer_store_dwordx4 v[24:27], v1, s[{WS}:{WS+3}], s14 offen offset:{1024*k} sc1')
        A('s_lshl_b32 s14, s31, 2')
        A('s_add_u32 s14, s14, s34')
        A('s_lshl_b32 s14, s14, 11')
        A('s_lshl_b32 s15, s35, 8')
        A('s_add_u32 s14, s14, s15')
        A(f's_add_u32 s14, s14, {WS_P2:#x}')
        A('v_lshlrev_b32 v5, 2, v0')
        A(f'buffer_store_dword v24, v5, s[{WS}:{WS+3}], s14 offen sc1')
        A('v_mov_b32 v28, s96')
        A('v_mov_b32 v29, s97')
        A('v_mov_b32 v5, 0')
        A('s_lshl_b32 s14, s3, 3')
        A(f's_add_u32 s14, s14, {WS_F:#x}')
        A('s_mov_b64 exec, 1')
        A('s_waitcnt vmcnt(0)')
        A(f'buffer_store_dwordx2 v[28:29], v5, s[{WS}:{WS+3}], s14 offen sc1')
        A('s_mov_b64 exec, -1')
        A('s_sleep 127')
        A('s_sleep 127')
        A(f's_mov_b32 s14, {WS_F:#x}')
        A(f's_mov_b32 s15, {SPIN_MAX}')
        lp = self.label('pollall')
        A(f'{lp}:')
        A(f'buffer_load_dwordx4 v[24:27], v1, s[{WS}:{WS+3}], s14 offen sc1')
        A(f'buffer_load_dwordx4 v[28:31], v1, s[{WS}:{WS+3}], s14 offen offset:1024 sc1')
        A('s_sub_u32 s15, s15, 1')
        A('s_cmp_eq_u32 s15, 0')
        A(f's_cbranch_scc1 {lp}_x')
        A('s_waitcnt vmcnt(0)')
        for k in range(4):
            if k == 0:
                A(f'v_cmp_ne_u64 s[76:77], s[96:97], v[{24+2*k}:{25+2*k}]')
            else:
                A(f'v_cmp_ne_u64 vcc, s[96:97], v[{24+2*k}:{25+2*k}]')
                A('s_or_b64 s[76:77], s[76:77], vcc')
        A('s_and_b64 exec, exec, s[76:77]')
        A(f's_cbranch_execz {lp}_x')
        A('s_sleep 64')
        A(f's_branch {lp}')
        A(f'{lp}_x:')
        A('s_mov_b64 exec, -1')
        A('s_waitcnt vmcnt(0)')
        A('L_h_pref:')
        WOR = 64
        WOT = 80
        W1R, B1R, W2R = 96, 100, 104
        W1F, B1F = 112, 120
        XR = 108
        B2R = 110
        A('v_and_b32 v8, 7, v0')
        A('v_lshrrev_b32 v9, 3, v0')
        A('v_lshlrev_b32 v4, 12, v8')
        A('v_lshl_add_u32 v4, v9, 4, v4')
        A('s_lshl_b32 s14, s31, 2')
        A('s_add_u32 s14, s14, s34')
        A('s_mov_b32 s8, s14')
        A('s_lshl_b32 s14, s14, 17')
        A('s_lshl_b32 s15, s33, 15')
        A('s_add_u32 s14, s14, s15')
        A('s_lshl_b32 s15, s35, 7')
        A('s_add_u32 s14, s14, s15')
        for k in range(4):
            A(f'buffer_load_dwordx4 v[{WOR+4*k}:{WOR+4*k+3}], v4, s[{WO}:{WO+3}], s14 offen offset:{1024*k} {nt}')
        A('s_lshl_b32 s14, s33, 10')
        A(f'buffer_load_dwordx4 v[{W1R}:{W1R+3}], v1, s[{W1}:{W1+3}], s14 offen')
        A(f'buffer_load_dwordx4 v[{B1R}:{B1R+3}], v1, s[{B1}:{B1+3}], s14 offen')
        A(f'buffer_load_dwordx4 v[{W2R}:{W2R+3}], v1, s[{W2}:{W2+3}], s14 offen')
        A('v_and_b32 v10, 31, v0')
        A('v_lshlrev_b32 v5, 3, v10')
        A('s_lshl_b32 s14, s33, 8')
        A(f'buffer_load_dwordx2 v[{XR}:{XR+1}], v5, s[{X}:{X+3}], s14 offen')
        A('v_mov_b32 v5, 0')
        A(f'buffer_load_ushort v{B2R}, v5, s[{B2}:{B2+3}], 0 offen')
        A('s_waitcnt vmcnt(0)')
        A('s_mov_b32 s14, 0x05040100')
        A('s_mov_b32 s15, 0x07060302')
        for p in range(2):
            for dw in range(4):
                lo, hi = WOR + 8 * p + dw, WOR + 8 * p + 4 + dw
                A(f'v_perm_b32 v{WOT+8*p+2*dw}, v{hi}, v{lo}, s14')
                A(f'v_perm_b32 v{WOT+8*p+2*dw+1}, v{hi}, v{lo}, s15')
        for k in range(4):
            A(f'v_lshlrev_b32 v{W1F+2*k}, 16, v{W1R+k}')
            A(f'v_and_b32 v{W1F+2*k+1}, 0xffff0000, v{W1R+k}')
            A(f'v_lshlrev_b32 v{B1F+2*k}, 16, v{B1R+k}')
            A(f'v_and_b32 v{B1F+2*k+1}, 0xffff0000, v{B1R+k}')
        XF = 128
        for k in range(2):
            A(f'v_lshlrev_b32 v{XF+2*k}, 16, v{XR+k}')
            A(f'v_and_b32 v{XF+2*k+1}, 0xffff0000, v{XR+k}')
        A(f'v_lshlrev_b32 v{B2R}, 16, v{B2R}')
        GK0, GK1, GONE = 132, 134, 136
        for k in range(2):
            A(f'v_mov_b32 v{GK0+k}, {f2u(GC0):#x}')
            A(f'v_mov_b32 v{GK1+k}, {f2u(GC1):#x}')
            A(f'v_mov_b32 v{GONE+k}, 1.0')
        vOA, vMLA, vP1o, vP1m, vWw, vWr, vP2, vHw, vHr, vHo = 140, 141, 142, 143, 144, 145, 146, 147, 148, 149
        A('s_lshl_b32 s14, s33, 9')
        A(f's_add_u32 s14, s14, {LDS_O}')
        A(f'v_lshl_add_u32 v{vOA}, v10, 4, s14')
        A('s_lshl_b32 s14, s33, 3')
        A(f's_add_u32 s14, s14, {LDS_ML}')
        A(f'v_mov_b32 v{vMLA}, s14')
        A('s_movk_i32 s14, 3072')
        A(f'v_mul_lo_u32 v{vP1m}, v9, s14')
        A('s_lshl_b32 s14, s33, 7')
        A(f'v_lshl_add_u32 v{vP1o}, v8, 4, v{vP1m}')
        A(f'v_add_u32 v{vP1o}, s14, v{vP1o}')
        A('s_lshl_b32 s14, s33, 8')
        A(f's_add_u32 s14, s14, {LDS_W}')
        A(f'v_lshl_add_u32 v{vWw}, v9, 5, s14')
        A(f'v_lshlrev_b32 v{vWr}, 2, v0')
        A('v_lshrrev_b32 v4, 5, v0')
        A('v_lshlrev_b32 v4, 15, v4')
        A('s_lshl_b32 s14, s33, 9')
        A(f'v_lshl_add_u32 v{vP2}, v10, 4, v4')
        A(f'v_add_u32 v{vP2}, s14, v{vP2}')
        A(f's_add_u32 s14, s14, {LDS_H}')
        A(f'v_lshl_add_u32 v{vHw}, v10, 4, s14')
        A('s_lshl_b32 s14, s2, 3')
        A(f's_add_u32 s14, s14, {LDS_H}')
        A(f'v_mov_b32 v{vHo}, s14')
        A('s_lshl_b32 s14, s31, 5')
        A('s_add_u32 s14, s14, s32')
        A('s_mul_i32 s14, s14, 3072')
        A('s_mul_i32 s15, s33, 768')
        A('s_add_u32 s14, s14, s15')
        A(f's_add_u32 s7, s14, {WS_P1:#x}')
        A('s_mul_i32 s14, s31, 98304')
        A('s_mul_i32 s15, s34, 768')
        A('s_add_u32 s14, s14, s15')
        A(f's_add_u32 s76, s14, {WS_P1:#x}')
        A('s_add_u32 s77, s76, 24576')
        A('s_add_u32 s78, s76, 49152')
        A('s_add_u32 s79, s76, 73728')
        A('s_lshl_b32 s14, s8, 11')
        A('s_lshl_b32 s15, s35, 8')
        A('s_add_u32 s14, s14, s15')
        A(f's_add_u32 s6, s14, {WS_P2:#x}')
        A('s_barrier')
        self.stamp(4)
        for w in range(4):
            A(f'ds_read_b64 v[{16+2*w}:{17+2*w}], v{vMLA} offset:{32*w}')
        for w in range(4):
            A(f'ds_read_b128 v[{24+4*w}:{27+4*w}], v{vOA} offset:{2048*w}')
        A('s_waitcnt lgkmcnt(4)')
        A('v_max3_f32 v12, v16, v18, v20')
        A('v_max_f32 v12, v12, v22')
        A('v_mul_f32 v13, s9, v12')
        for w in range(4):
            A(f'v_fma_f32 v{16+2*w}, v{16+2*w}, s9, -v13')
        for w in range(4):
            A(f'v_exp_f32 v{16+2*w}, v{16+2*w}')
        self.nop(1)
        A('v_mul_f32 v13, v16, v17')
        for w in range(1, 4):
            A(f'v_fmac_f32 v13, v{16+2*w}, v{17+2*w}')
        A('s_waitcnt lgkmcnt(0)')
        for c in range(4):
            A(f'v_mul_f32 v{40+c}, v16, v{24+c}')
        for w in range(1, 4):
            for c in range(4):
                A(f'v_fmac_f32 v{40+c}, v{16+2*w}, v{24+4*w+c}')
        A('v_cmp_lt_u32 vcc, 31, v0')
        self.nop(2)
        A('v_cndmask_b32 v40, v40, v12, vcc')
        A('v_cndmask_b32 v41, v41, v13, vcc')
        self.canon([40, 41, 42, 43])
        A('s_mov_b32 exec_lo, -1')
        A('s_mov_b32 exec_hi, 1')
        A(f'buffer_store_dwordx4 v[40:43], v1, s[{WS}:{WS+3}], s7 offen sc1')
        A('s_mov_b64 exec, -1')
        self.stamp(5)
        GO, GM = 16, 32
        A(f's_mov_b32 s15, {SPIN_MAX}')
        lp = self.label('poll1')
        A(f'{lp}:')
        for k in range(4):
            A(f'buffer_load_dwordx4 v[{GO+4*k}:{GO+4*k+3}], v{vP1o}, s[{WS}:{WS+3}], s{76+k} offen sc1')
            A(f'buffer_load_dwordx2 v[{GM+2*k}:{GM+2*k+1}], v{vP1m}, s[{WS}:{WS+3}], s{76+k} offen offset:512 sc1')
        A('s_sub_u32 s15, s15, 1')
        A('s_cmp_eq_u32 s15, 0')
        A(f's_cbranch_scc1 {lp}_x')
        A('s_waitcnt vmcnt(0)')
        A(f'v_max3_u32 v12, v{GO}, v{GO+1}, v{GO+2}')
        A(f'v_max3_u32 v13, v{GO+3}, v{GO+4}, v{GO+5}')
        for k in range(GO + 6, GM + 8, 4):
            A(f'v_max3_u32 v12, v12, v{k}, v{k+1}')
            if k + 3 < GM + 8:
                A(f'v_max3_u32 v13, v13, v{k+2}, v{k+3}')
        A('v_max_u32 v12, v12, v13')
        A('v_cmp_eq_u32 vcc, -1, v12')
        A('s_and_b64 exec, exec, vcc')
        A(f's_cbranch_execnz {lp}')
        A(f'{lp}_x:')
        A('s_mov_b64 exec, -1')
        A('s_waitcnt vmcnt(0)')
        self.stamp(6)
        A(f'v_max3_f32 v12, v{GM}, v{GM+2}, v{GM+4}')
        A(f'v_max_f32 v12, v12, v{GM+6}')
        self.dpp('v_max_f32', [12], 'row_ror:8')
        self.swap_red('v_max_f32', [12], [13], 16)
        self.swap_red('v_max_f32', [12], [13], 32)
        A('v_mul_f32 v12, s9, v12')
        for k in range(4):
            A(f'v_fma_f32 v{GM+2*k}, v{GM+2*k}, s9, -v12')
        for k in range(4):
            A(f'v_exp_f32 v{GM+2*k}, v{GM+2*k}')
        self.nop(1)
        A(f'v_mul_f32 v44, v{GM}, v{GM+1}')
        for c in range(4):
            A(f'v_mul_f32 v{40+c}, v{GM}, v{GO+c}')
        for k in range(1, 4):
            A(f'v_fmac_f32 v44, v{GM+2*k}, v{GM+2*k+1}')
            for c in range(4):
                A(f'v_fmac_f32 v{40+c}, v{GM+2*k}, v{GO+4*k+c}')
        R5 = [40, 41, 42, 43, 44]
        T5 = [45, 46, 47, 48, 49]
        self.dpp('v_add_f32', R5, 'row_ror:8')
        self.swap_red('v_add_f32', R5, T5, 16)
        self.swap_red('v_add_f32', R5, T5, 32)
        A('v_rcp_f32 v44, v44')
        self.nop(1)
        for c in range(4):
            A(f'v_mul_f32 v{40+c}, v{40+c}, v44')
        A('v_cvt_pk_bf16_f32 v40, v40, v41')
        A('v_cvt_pk_bf16_f32 v41, v42, v43')
        for c in range(8):
            A(f'v_dot2_f32_bf16 v{16+c}, v40, v{WOT+c}, 0')
        for c in range(8):
            A(f'v_dot2_f32_bf16 v{16+c}, v41, v{WOT+8+c}, v{16+c}')
        self.nop(3)
        R8 = list(range(16, 24))
        self.dpp('v_add_f32', R8, 'quad_perm:[1,0,3,2]')
        self.dpp('v_add_f32', R8, 'quad_perm:[2,3,0,1]')
        self.dpp('v_add_f32', R8, 'row_half_mirror')
        A(f'ds_write_b128 v{vWw}, v[16:19]')
        A(f'ds_write_b128 v{vWw}, v[20:23] offset:16')
        A('s_waitcnt lgkmcnt(0)')
        A('s_barrier')
        A('s_cmp_lg_u32 s33, 0')
        A('s_cbranch_scc1 L_h_hop2')
        for w in range(4):
            A(f'ds_read_b32 v{16+w}, v{vWr} offset:{LDS_W + 256*w}')
        A('s_waitcnt lgkmcnt(0)')
        A('v_add_f32 v16, v16, v17')
        A('v_add_f32 v18, v18, v19')
        A('v_add_f32 v16, v16, v18')
        self.canon([16])
        A(f'buffer_store_dword v16, v{vWr}, s[{WS}:{WS+3}], s6 offen sc1')
        A('L_h_hop2:')
        self.stamp(7)
        H2 = 160
        A(f's_mov_b32 s15, {SPIN_MAX}')
        lp = self.label('poll2')
        A(f'{lp}:')
        A(f's_mov_b32 s14, {WS_P2:#x}')
        for k in range(16):
            A(f'buffer_load_dwordx4 v[{H2+4*k}:{H2+4*k+3}], v{vP2}, s[{WS}:{WS+3}], s14 offen offset:{2048*(k&1)} sc1')
            if k & 1:
                A('s_add_u32 s14, s14, 4096')
        A('s_sub_u32 s15, s15, 1')
        A('s_cmp_eq_u32 s15, 0')
        A(f's_cbranch_scc1 {lp}_x')
        A('s_waitcnt vmcnt(14)')
        A(f'v_pk_add_f32 v[16:17], v[{H2}:{H2+1}], v[{H2+4}:{H2+5}]')
        A(f'v_pk_add_f32 v[18:19], v[{H2+2}:{H2+3}], v[{H2+6}:{H2+7}]')
        for k in range(2, 16):
            A(f's_waitcnt vmcnt({15-k})')
            A(f'v_pk_add_f32 v[16:17], v[16:17], v[{H2+4*k}:{H2+4*k+1}]')
            A(f'v_pk_add_f32 v[18:19], v[18:19], v[{H2+4*k+2}:{H2+4*k+3}]')
        A('v_add_f32 v20, v16, v17')
        A('v_add_f32 v21, v18, v19')
        A('v_add_f32 v20, v20, v21')
        A('v_cmp_u_f32 vcc, v20, v20')
        A('s_and_b64 exec, exec, vcc')
        A(f's_cbranch_execz {lp}_x')
        A(f'v_max3_u32 v20, v{H2}, v{H2+1}, v{H2+2}')
        A(f'v_max_u32 v20, v20, v{H2+3}')
        for k in range(H2 + 4, H2 + 64, 2):
            A(f'v_max3_u32 v20, v20, v{k}, v{k+1}')
        A('v_cmp_eq_u32 vcc, -1, v20')
        A('s_and_b64 exec, exec, vcc')
        A(f's_cbranch_execnz {lp}')
        A(f'{lp}_x:')
        A('s_mov_b64 exec, -1')
        A('s_waitcnt vmcnt(0)')
        self.stamp(8)
        self.swap_red('v_add_f32', [16, 17, 18, 19], [20, 21, 22, 23], 32)
        self.rnd_bf16_pair(16, 17, 20)
        self.rnd_bf16_pair(18, 19, 20)
        for c in range(4):
            A(f'v_add_f32 v{16+c}, v{16+c}, v{XF+c}')
        self.rnd_bf16_pair(16, 17, 20)
        self.rnd_bf16_pair(18, 19, 20)
        A(f'ds_write_b128 v{vHw}, v[16:19]')
        A('s_waitcnt lgkmcnt(0)')
        A('s_barrier')
        HV = list(range(16, 26))
        A(f'ds_read_b128 v[16:19], v1 offset:{LDS_H}')
        A(f'ds_read_b128 v[20:23], v1 offset:{LDS_H+1024}')
        A(f'ds_read_b64 v[24:25], v{vHo}')
        A('s_waitcnt lgkmcnt(0)')
        TT = list(range(40, 50))
        self.ln_stats(HV[:8], 24, TT, 76, 77, 12, 13)
        AV = list(range(28, 38))
        self.ln_apply(HV, AV, 12, 13, 14)
        self.ln_stats(AV[:8], None, TT, 76, 77, 12, 13)
        self.ln_apply(AV[8:], AV[8:], 12, 13, 14)
        self.stamp(9)
        YA = [56, 57]
        for d in range(2):
            hv = AV[8 + d]
            for p in range(4):
                u = 40 + 8 * (p & 1)
                t = u + 2
                z = u + 4
                A(f'v_mul_f32 v{u}, v{hv}, v{W1F+2*p}')
                A(f'v_mul_f32 v{u+1}, v{hv}, v{W1F+2*p+1}')
                self.rnd_bf16_pair(u, u + 1, t)
                A(f'v_pk_add_f32 v[{u}:{u+1}], v[{u}:{u+1}], v[{B1F+2*p}:{B1F+2*p+1}]')
                self.rnd_bf16_pair(u, u + 1, t)
                A(f'v_pk_mul_f32 v[{t}:{t+1}], v[{u}:{u+1}], v[{u}:{u+1}]')
                A(f'v_pk_fma_f32 v[{t}:{t+1}], v[{t}:{t+1}], v[{GK1}:{GK1+1}], v[{GK0}:{GK0+1}]')
                A(f'v_pk_mul_f32 v[{z}:{z+1}], v[{t}:{t+1}], v[{u}:{u+1}]')
                A(f'v_exp_f32 v{z}, v{z}')
                A(f'v_exp_f32 v{z+1}, v{z+1}')
                self.nop(1)
                A(f'v_pk_add_f32 v[{z}:{z+1}], v[{z}:{z+1}], v[{GONE}:{GONE+1}]')
                A(f'v_rcp_f32 v{z}, v{z}')
                A(f'v_rcp_f32 v{z+1}, v{z+1}')
                self.nop(1)
                A(f'v_pk_mul_f32 v[{u}:{u+1}], v[{u}:{u+1}], v[{z}:{z+1}]')
                A(f'v_cvt_pk_bf16_f32 v{u}, v{u}, v{u+1}')
                cc = '0' if p == 0 else f'v{YA[d]}'
                A(f'v_dot2_f32_bf16 v{YA[d]}, v{u}, v{W2R+p}, {cc}')
        self.nop(3)
        self.wave_sum_to_sgpr(YA, [76, 77])
        A('v_mov_b32 v16, s76')
        A('v_mov_b32 v17, s77')
        A('s_lshl_b32 s14, s33, 3')
        A(f's_add_u32 s14, s14, {LDS_Y}')
        A('v_mov_b32 v18, s14')
        A('ds_write_b64 v18, v[16:17]')
        A('s_waitcnt lgkmcnt(0)')
        A('s_barrier')
        A('s_cmp_lg_u32 s33, 0')
        lend = self.label('hend')
        A(f's_cbranch_scc1 {lend}')
        A(f'v_mov_b32 v18, {LDS_Y}')
        A('ds_read_b128 v[16:19], v18')
        A(f'v_mov_b32 v12, {LDS_Y+16}')
        A('ds_read_b128 v[20:23], v12')
        A('s_waitcnt lgkmcnt(0)')
        A('v_pk_add_f32 v[16:17], v[16:17], v[18:19]')
        A('v_pk_add_f32 v[20:21], v[20:21], v[22:23]')
        A('v_pk_add_f32 v[16:17], v[16:17], v[20:21]')
        self.rnd_bf16_pair(16, 17, 20)
        A(f'v_add_f32 v16, v16, v{B2R}')
        A(f'v_add_f32 v17, v17, v{B2R}')
        self.rnd_bf16_pair(16, 17, 20)
        A('v_add_f32 v16, v16, v24')
        A('v_add_f32 v17, v17, v25')
        A('v_cvt_pk_bf16_f32 v16, v16, v17')
        A('s_lshl_b32 s14, s2, 2')
        A('v_mov_b32 v18, 0')
        A('s_mov_b64 exec, 1')
        A(f'buffer_store_dword v16, v18, s[{OUT}:{OUT+3}], s14 offen')
        A('s_cmp_lg_u32 s2, 0')
        A(f's_cbranch_scc1 {lend}')
        A('v_mov_b32 v20, s96')
        A('v_mov_b32 v21, s97')
        A(f's_mov_b32 s14, {WS_E:#x}')
        A(f'buffer_store_dwordx2 v[20:21], v18, s[{WS}:{WS+3}], s14 offen sc1')
        A(f'{lend}:')
        self.stamp(10)
        self.write_stamps(11)


if __name__ == '__main__':
    out = sys.argv[1]
    kw = json.loads(sys.argv[2]) if len(sys.argv) > 2 else {}
    open(out, 'w').write(Gen(**kw).build())
```

```python
import sys, json, struct

KN = 'sequential_preLN__gqa_block_cached__mixer_token_mlp__decode'
HEADER = open('cdna_kernels/' + KN + '.s.ref').read().split('; Override launch')[0]


def f2u(x):
    return struct.unpack('<I', struct.pack('<f', x))[0]


LOG2E = 1.4426950408889634
SCALE = 128 ** -0.5
GC0 = -2.0 * (2.0 / 3.141592653589793) ** 0.5 * LOG2E
GC1 = GC0 * 0.044715

WS_QP = 0x0
WS_E = 0x40000
WS_F = 0x41000
WS_P1 = 0x42000
WS_P2 = 0x110000
WS_HV = 0x120000
HVS = 2048 + 256 + 128
WS_CNT = 0x128000
WS_SIZE = 0x20000000
STAMP_OFF = 0x10000000
TAGC = 0x9E3779B97F4A7C15
NPART = 6
LDS_Q = 0
LDS_O = 1024
LDS_ML = LDS_O + NPART * 2048
LDS_W = LDS_ML + 256
LDS_H = LDS_W + 1024
LDS_Y = LDS_H + 2048
LDS_F = LDS_Y + 64
LDS_TOTAL = LDS_F + 16

X, WQ, WS, WO, W1, B1, W2, B2, OUT = 36, 40, 44, 48, 52, 56, 60, 64, 68
W1F, B1F, W2R, RAW, GK0, GK1, GONE = 224, 228, 232, 234, 238, 240, 242


class Gen:
    def __init__(self, **kw):
        self.L = []
        self.o = dict(ring=12, pre=4, pre0=1, stamps=False, nt='nt', headmap='rot', pollsleep=8, spin=20000,
                      tc=8, sleep_many=16, sleep_few=1, cprio=2, sleep2b=2, sleep_most=32, ts=20, stageA=16, warm=True)
        self.o.update(kw)
        self.lab = 0
        self.role = 'S'

    def A(self, s):
        self.L.append(s)

    def nop(self, n):
        if n > 0:
            self.A(f's_nop {n-1}')

    def label(self, base):
        self.lab += 1
        return f'L_{base}_{self.lab}'

    def srd(self, r, ptr, size):
        A = self.A
        A(f's_mov_b32 s{r}, s{ptr}')
        A(f's_and_b32 s{r+1}, s{ptr+1}, 0xffff')
        A(f's_mov_b32 s{r+2}, {size:#x}')
        A(f's_mov_b32 s{r+3}, 0x20000')

    def sreg(self, idx):
        return 80 + 2 * idx if idx < 8 else [98, 100, 22][idx - 8]

    def stamp(self, idx, sets=None):
        st = self.o['stamps']
        if not st:
            return
        if sets is not None and st not in sets:
            return
        r = self.sreg(idx)
        self.A(f's_memrealtime s[{r}:{r+1}]')

    def dpp(self, op, regs, ctrl, rm='0xf'):
        n = len(regs)
        if n < 3:
            self.nop(3 - n)
        for r in regs:
            self.A(f'{op}_dpp v{r}, v{r}, v{r} {ctrl} row_mask:{rm} bank_mask:0xf')

    def swap_red(self, op, regs, tmps, width):
        A = self.A
        for r, t in zip(regs, tmps):
            A(f'v_mov_b32 v{t}, v{r}')
        self.nop(2)
        for r, t in zip(regs, tmps):
            A(f'v_permlane{width}_swap_b32 v{r}, v{t}')
        if len(regs) < 3:
            self.nop(2)
        for r, t in zip(regs, tmps):
            A(f'{op} v{r}, v{r}, v{t}')

    def wave_sum_to_sgpr(self, regs, sregs):
        A = self.A
        self.dpp('v_add_f32', regs, 'quad_perm:[1,0,3,2]')
        self.dpp('v_add_f32', regs, 'quad_perm:[2,3,0,1]')
        self.dpp('v_add_f32', regs, 'row_half_mirror')
        self.dpp('v_add_f32', regs, 'row_mirror')
        self.dpp('v_add_f32', regs, 'row_bcast:15', '0xa')
        self.dpp('v_add_f32', regs, 'row_bcast:31', '0xc')
        self.nop(1)
        for r, s in zip(regs, sregs):
            A(f'v_readlane_b32 s{s}, v{r}, 63')
        self.nop(2)

    def rnd_bf16(self, dst, src):
        self.A(f'v_cvt_pk_bf16_f32 v{dst}, v{src}, v{src}')
        self.A(f'v_lshlrev_b32 v{dst}, 16, v{dst}')

    def rnd_bf16_pair(self, a, b, t):
        self.A(f'v_cvt_pk_bf16_f32 v{t}, v{a}, v{b}')
        self.A(f'v_lshlrev_b32 v{a}, 16, v{t}')
        self.A(f'v_and_b32 v{b}, 0xffff0000, v{t}')

    def ln_moments(self, vals, piv, t, s_a, s_b):
        A = self.A
        d = t[:8]
        s1, s2 = t[8], t[9]
        for k in range(0, 8, 2):
            A(f'v_pk_add_f32 v[{d[k]}:{d[k+1]}], v[{vals[k]}:{vals[k+1]}], v[{piv}:{piv+1}] neg_lo:[0,1] neg_hi:[0,1]')
        A(f'v_pk_mul_f32 v[{s1}:{s2}], v[{d[0]}:{d[1]}], v[{d[0]}:{d[1]}]')
        for k in range(2, 8, 2):
            A(f'v_pk_fma_f32 v[{s1}:{s2}], v[{d[k]}:{d[k+1]}], v[{d[k]}:{d[k+1]}], v[{s1}:{s2}]')
        A(f'v_pk_add_f32 v[{d[0]}:{d[1]}], v[{d[0]}:{d[1]}], v[{d[2]}:{d[3]}]')
        A(f'v_pk_add_f32 v[{d[4]}:{d[5]}], v[{d[4]}:{d[5]}], v[{d[6]}:{d[7]}]')
        A(f'v_add_f32 v{s2}, v{s1}, v{s2}')
        A(f'v_pk_add_f32 v[{d[0]}:{d[1]}], v[{d[0]}:{d[1]}], v[{d[4]}:{d[5]}]')
        A(f'v_add_f32 v{s1}, v{d[0]}, v{d[1]}')
        self.wave_sum_to_sgpr([s1, s2], [s_a, s_b])
        inv = f2u(1.0 / 512)
        A(f'v_mov_b32 v{s1}, {inv:#x}')
        A(f'v_mul_f32 v{s2}, s{s_b}, v{s1}')
        A(f'v_mul_f32 v{s1}, s{s_a}, v{s1}')
        A(f'v_fma_f32 v{s2}, -v{s1}, v{s1}, v{s2}')
        A(f'v_max_f32 v{s2}, 0, v{s2}')
        A(f'v_add_f32 v{s1}, v{s1}, v{piv}')

    def ln_finish(self, mean, var, vm, vr, t):
        A = self.A
        A(f'v_cvt_pk_bf16_f32 v{t}, v{mean}, v{var}')
        A(f'v_lshlrev_b32 v{vm}, 16, v{t}')
        A(f'v_and_b32 v{vr}, 0xffff0000, v{t}')
        A(f'v_add_f32 v{vr}, {f2u(1e-5):#x}, v{vr}')
        self.rnd_bf16(vr, vr)
        A(f'v_sqrt_f32 v{vr}, v{vr}')
        self.nop(1)
        self.rnd_bf16(vr, vr)
        A(f'v_rcp_f32 v{vr}, v{vr}')
        self.nop(1)

    def ln_apply(self, vals, outs, vm, vr, t):
        A = self.A
        for k in range(0, len(vals), 2):
            a, b = outs[k], outs[k + 1]
            A(f'v_sub_f32 v{a}, v{vals[k]}, v{vm}')
            A(f'v_sub_f32 v{b}, v{vals[k+1]}, v{vm}')
            self.rnd_bf16_pair(a, b, t)
            A(f'v_mul_f32 v{a}, v{a}, v{vr}')
            A(f'v_mul_f32 v{b}, v{b}, v{vr}')
            self.rnd_bf16_pair(a, b, t)

    def lds_wait(self, vaddr, off, vt=11, st=15):
        A = self.A
        lp = self.label('ldsw')
        A(f's_mov_b32 s{st}, {self.o["spin"]*20}')
        A(f'{lp}:')
        A(f'ds_read_b32 v{vt}, v{vaddr} offset:{off}')
        A(f's_sub_u32 s{st}, s{st}, 1')
        A(f's_cmp_eq_u32 s{st}, 0')
        A(f's_cbranch_scc1 {lp}_x')
        A('s_waitcnt lgkmcnt(0)')
        A(f'v_cmp_eq_u32 vcc, 0, v{vt}')
        A(f's_cbranch_vccz {lp}_x')
        A('s_sleep 1')
        A(f's_branch {lp}')
        A(f'{lp}_x:')
        A('s_waitcnt lgkmcnt(0)')

    def seg_begin(self, name):
        self.A(f'L_seg_{name}:')

    def seg_end(self, name):
        if self.o['warm']:
            self.A(f's_cbranch_execz L_ret_{name}')

    def warm_pass(self, names):
        if not self.o['warm']:
            return
        A = self.A
        A('s_mov_b64 exec, 0')
        for n in names:
            A(f's_branch L_seg_{n}')
            A(f'L_ret_{n}:')
        A('s_mov_b64 exec, -1')

    def canon(self, regs):
        for r in regs:
            self.A(f'v_min_u32 v{r}, 0xfffffffe, v{r}')

    def sel_masks(self, m0, m1):
        A = self.A
        A('v_and_b32 v4, 1, v0')
        A('v_lshlrev_b32 v4, 4, v4')
        A('v_mov_b32 v5, 0xffff')
        A('v_lshlrev_b32 v5, v4, v5')
        A('v_and_b32 v4, 2, v0')
        A('v_cmp_eq_u32 vcc, 0, v4')
        A('v_mov_b32 v6, 0')
        A('s_nop 0')
        A(f'v_cndmask_b32 v{m0}, v6, v5, vcc')
        A(f'v_cndmask_b32 v{m1}, v5, v6, vcc')

    def build(self):
        A = self.A
        o = self.o
        A(HEADER.rstrip('\n'))
        A(f'; @launch grid=(256,1,1) block=(512,1,1) lds={LDS_TOTAL}')
        A('.amdgcn_target "amdgcn-amd-amdhsa--gfx950"')
        A('.text')
        A(f'.globl {KN}_kernel')
        A('.p2align 8')
        A(f'.type {KN}_kernel,@function')
        A(f'{KN}_kernel:')
        A('s_cmp_ge_u32 s2, 256')
        A('s_cbranch_scc1 L_end')
        A('s_load_dwordx16 s[4:19], s[0:1], 0')
        A('s_load_dwordx8 s[20:27], s[0:1], 64')
        A('s_load_dwordx2 s[28:29], s[0:1], 96')
        self.stamp(0)
        A('v_lshrrev_b32 v1, 6, v0')
        A('v_and_b32 v0, 63, v0')
        A('v_readfirstlane_b32 s30, v1')
        if o['headmap'] == 'mod':
            A('s_and_b32 s31, s2, 7')
            A('s_lshr_b32 s32, s2, 3')
        elif o['headmap'] == 'rot':
            A('s_lshr_b32 s32, s2, 3')
            A('s_add_u32 s31, s2, s32')
            A('s_and_b32 s31, s31, 7')
        elif o['headmap'] == 'x4':
            A('s_lshr_b32 s31, s2, 3')
            A('s_lshr_b32 s32, s31, 3')
            A('s_and_b32 s31, s31, 7')
            A('s_and_b32 s3, s2, 7')
            A('s_lshl_b32 s3, s3, 2')
            A('s_add_u32 s32, s32, s3')
        elif o['headmap'] == 'div':
            A('s_lshr_b32 s31, s2, 5')
            A('s_and_b32 s32, s2, 31')
        else:
            m = int(o['headmap'])
            A(f's_and_b32 s31, s2, {7 & ~(m-1)}')
            A('s_lshr_b32 s32, s2, 3')
            A(f's_and_b32 s3, s32, {m-1}')
            A('s_or_b32 s31, s31, s3')
            A(f's_and_b32 s32, s32, {31 & ~(m-1)}')
            A(f's_and_b32 s3, s2, {m-1}')
            A('s_or_b32 s32, s32, s3')
        A('s_lshl_b32 s3, s31, 5')
        A('s_add_u32 s3, s3, s32')
        A('s_sub_u32 s33, s30, 4')
        A('s_lshr_b32 s34, s32, 3')
        A('s_and_b32 s35, s32, 7')
        A('s_cmp_lt_u32 s33, 2')
        A('s_cbranch_scc1 L_hq')
        A('s_cmp_ge_u32 s30, 4')
        A('s_cbranch_scc1 L_cover')
        TC = o['tc']
        TS = o['ts']
        o['pool'] = 128 - 4 * TS - 2 * TC
        assert TS % 4 == 0 and TC % 4 == 0 and o['pool'] % 4 == 0 and (o['pool'] == 0 or o['pool'] >= 12) and TS >= TC
        self.streamer(TS, TC, False)
        self.srd(W1, 16, 3584)
        self.srd(B1, 18, 3584)
        self.srd(W2, 20, 3584)
        self.mlp_weights_load()
        A('s_waitcnt lgkmcnt(0)')
        A('s_barrier')
        A('s_waitcnt vmcnt(0)')
        self.mlp_weights_prep()
        self.srd(WS, 28, WS_SIZE)
        self.srd(OUT, 24, 1024)
        A('v_lshlrev_b32 v1, 4, v0')
        A(f'v_mov_b32 v149, {LDS_H}')
        A('s_barrier')
        A('s_branch L_b4')
        A('L_cover:')
        self.streamer(TC, TC, True)
        self.srd(X, 4, 1024)
        self.srd(WS, 28, WS_SIZE)
        A('s_branch L_pref')
        A('L_hq:')
        self.helper_q()
        A('L_pref:')
        self.helper_tail()
        A('L_b4:')
        self.final()
        A('L_end:')
        A('s_endpgm')
        A('.section .rodata,"a"')
        A('.p2align 6')
        A(f'.amdhsa_kernel {KN}_kernel')
        A('  .amdhsa_next_free_vgpr 256')
        A('  .amdhsa_next_free_sgpr 102')
        A('  .amdhsa_accum_offset 256')
        A('  .amdhsa_group_segment_fixed_size 0')
        A('  .amdhsa_kernarg_size 104')
        A('  .amdhsa_user_sgpr_count 2')
        A('  .amdhsa_user_sgpr_kernarg_segment_ptr 1')
        A('  .amdhsa_system_sgpr_workgroup_id_x 1')
        A('  .amdhsa_float_denorm_mode_32 3')
        A('.end_amdhsa_kernel')
        return '\n'.join(self.L) + '\n'

    def write_stamps(self, n):
        if not self.o['stamps']:
            return
        A = self.A
        A('s_waitcnt lgkmcnt(0)')
        A('s_mov_b64 exec, 1')
        A('s_lshl_b32 s33, s2, 3')
        A('s_add_u32 s33, s33, s30')
        A('s_lshl_b32 s33, s33, 7')
        A(f's_add_u32 s33, s33, {STAMP_OFF:#x}')
        self.srd(76, 28, WS_SIZE)
        A('v_mov_b32 v1, 0')
        for k in range(n):
            A(f'v_mov_b32 v2, s{self.sreg(k)}')
            A(f'v_mov_b32 v3, s{self.sreg(k)+1}')
            A(f'buffer_store_dwordx2 v[2:3], v1, s[76:79], s33 offen offset:{8*k}')
            A('s_nop 1')
        A('s_waitcnt vmcnt(0)')

    def mlp_weights_load(self):
        A = self.A
        A('v_lshlrev_b32 v4, 3, v0')
        A('s_lshl_b32 s14, s30, 9')
        A(f'buffer_load_dwordx2 v[{RAW}:{RAW+1}], v4, s[{W1}:{W1+3}], s14 offen')
        A(f'buffer_load_dwordx2 v[{RAW+2}:{RAW+3}], v4, s[{B1}:{B1+3}], s14 offen')
        A(f'buffer_load_dwordx2 v[{W2R}:{W2R+1}], v4, s[{W2}:{W2+3}], s14 offen')

    def mlp_weights_prep(self):
        A = self.A
        for k in range(2):
            A(f'v_lshlrev_b32 v{W1F+2*k}, 16, v{RAW+k}')
            A(f'v_and_b32 v{W1F+2*k+1}, 0xffff0000, v{RAW+k}')
            A(f'v_lshlrev_b32 v{B1F+2*k}, 16, v{RAW+2+k}')
            A(f'v_and_b32 v{B1F+2*k+1}, 0xffff0000, v{RAW+2+k}')
            A(f'v_mov_b32 v{GK0+k}, {f2u(GC0):#x}')
            A(f'v_mov_b32 v{GK1+k}, {f2u(GC1):#x}')
            A(f'v_mov_b32 v{GONE+k}, 1.0')

    def streamer(self, T, TC, cover):
        A = self.A
        o = self.o
        R = min(o['ring'], 2 * T)
        nt = o['nt']
        N = 2 * T
        RB = 64
        assert RB + 16 * R <= 256
        vK, vV = 1, 2
        Q = 4
        C = [20, 24]
        G = 28
        S2 = 30
        vmax, vl, vnm = 46, 47, 3
        ACC = 48
        D = 56
        M0, M1 = 60, 61
        TA = [20, 22, 24, 26]
        U = [28, 29, 62, 63]
        KT = [56, 57, 58, 59, 62, 63]
        stp = None if not cover else ()

        def tile_of(t):
            return 6 * t if t < TC else 6 * TC + 4 * (t - TC)

        A('v_and_b32 v4, 3, v0')
        A('v_lshlrev_b32 v4, 10, v4')
        A('v_bfe_u32 v5, v0, 2, 2')
        A('v_lshlrev_b32 v5, 8, v5')
        A('v_lshrrev_b32 v6, 4, v0')
        A('v_lshlrev_b32 v6, 4, v6')
        A(f'v_add3_u32 v{vK}, v4, v5, v6')
        A(f'v_lshlrev_b32 v{vV}, 4, v0')
        A('s_lshl_b32 s44, s31, 24')
        A('s_lshl_b32 s45, s32, 19')
        A('s_add_u32 s44, s44, s45')
        if cover:
            A(f's_setprio {o["cprio"]}')
            A('s_sub_u32 s46, s30, 2')
        else:
            A('s_mov_b32 s46, s30')
        A('s_lshl_b32 s45, s46, 12')
        A('s_add_u32 s44, s44, s45')
        A('s_waitcnt lgkmcnt(0)')
        self.srd(36, 6, 0x8000000)
        self.srd(40, 8, 0x8000000)

        def issue(n):
            r = RB + (n % R) * 16
            t = n % T
            A(f's_add_u32 s45, s44, {tile_of(t)*4096:#x}')
            for j in range(4):
                if n < T:
                    A(f'buffer_load_dwordx4 v[{r+4*j}:{r+4*j+3}], v{vK}, s[36:39], s45 offen offset:{64*j} {nt}')
                else:
                    A(f'buffer_load_dwordx4 v[{r+4*j}:{r+4*j+3}], v{vV}, s[40:43], s45 offen offset:{1024*j} {nt}')

        pre0, pre = o['pre0'], o['pre']
        for n in range(pre0):
            issue(n)
        A('s_barrier')
        for n in range(pre0, pre):
            issue(n)
        A('s_mov_b32 s50, 0x22222222'); A('s_mov_b32 s51, 0x22222222')
        A('s_mov_b32 s52, 0x44444444'); A('s_mov_b32 s53, 0x44444444')
        A('s_mov_b32 s54, 0x88888888'); A('s_mov_b32 s55, 0x88888888')
        A(f's_mov_b32 s56, {f2u(SCALE):#x}')
        A(f's_mov_b32 s57, {f2u(LOG2E):#x}')
        self.sel_masks(M0, M1)
        A(f'v_mov_b32 v{vmax}, 0xff800000')
        A(f'v_mov_b32 v{vl}, 0')
        for k in range(8):
            A(f'v_mov_b32 v{ACC+k}, 0')
        A('v_bfe_u32 v62, v0, 2, 2')
        A('v_lshlrev_b32 v62, 8, v62')
        A('v_lshrrev_b32 v63, 4, v0')
        A('v_lshl_add_u32 v62, v63, 4, v62')
        for n in range(pre, R):
            A(f's_waitcnt vmcnt({4*(pre-1)})')
            issue(n)
        self.stamp(1)
        A('s_barrier')
        for j in range(4):
            A(f'ds_read_b128 v[{Q+4*j}:{Q+4*j+3}], v62 offset:{LDS_Q + 64*j}')
        self.stamp(2)
        A('s_waitcnt lgkmcnt(0)')

        def kpost(t):
            c = C[t & 1]
            tt = t & 3
            if tt == 0:
                A(f'v_cvt_pk_bf16_f32 v{G}, v{c}, v{c+1}')
                A(f'v_cvt_pk_bf16_f32 v{G+1}, v{c+2}, v{c+3}')
            else:
                A(f'v_cvt_pk_bf16_f32 v{KT[4]}, v{c}, v{c+1}')
                A(f'v_cvt_pk_bf16_f32 v{KT[5]}, v{c+2}, v{c+3}')
                sm = 48 + 2 * tt
                A(f'v_cndmask_b32 v{G}, v{G}, v{KT[4]}, s[{sm}:{sm+1}]')
                A(f'v_cndmask_b32 v{G+1}, v{G+1}, v{KT[5]}, s[{sm}:{sm+1}]')
            if tt == 3:
                grp = t // 4
                u = KT[:4]
                A(f'v_lshlrev_b32 v{u[0]}, 16, v{G}')
                A(f'v_and_b32 v{u[1]}, 0xffff0000, v{G}')
                A(f'v_lshlrev_b32 v{u[2]}, 16, v{G+1}')
                A(f'v_and_b32 v{u[3]}, 0xffff0000, v{G+1}')
                for k in range(4):
                    A(f'v_mul_f32 v{u[k]}, s56, v{u[k]}')
                A(f'v_max3_f32 v{vmax}, v{vmax}, v{u[0]}, v{u[1]}')
                A(f'v_max3_f32 v{vmax}, v{vmax}, v{u[2]}, v{u[3]}')
                A(f'v_cvt_pk_bf16_f32 v{S2+2*grp}, v{u[0]}, v{u[1]}')
                A(f'v_cvt_pk_bf16_f32 v{S2+2*grp+1}, v{u[2]}, v{u[3]}')

        extra = [0]

        def wait_for(n):
            issued = min(n + R - 1, N - 1)
            A(f's_waitcnt vmcnt({4*(issued-n) + extra[0]})')

        def finish_l():
            self.dpp('v_add_f32', [vl], 'quad_perm:[1,0,3,2]')
            self.dpp('v_add_f32', [vl], 'quad_perm:[2,3,0,1]')
            self.swap_red('v_add_f32', [vl], [62], 16)
            self.swap_red('v_add_f32', [vl], [62], 32)
            A('s_lshl_b32 s45, s46, 11')
            A(f's_add_u32 s45, s45, {LDS_O}')
            A('v_lshlrev_b32 v28, 5, v0')
            A('v_add_u32 v28, s45, v28')
            A('s_lshl_b32 s45, s46, 5')
            A(f's_add_u32 s45, s45, {LDS_ML}')
            A('v_bfe_u32 v29, v0, 2, 2')
            A('v_lshlrev_b32 v29, 3, v29')
            A('v_add_u32 v29, s45, v29')
            A(f'ds_write_b64 v29, v[{vmax}:{vl}]')

        pool = (not cover) and o['pool'] > 0
        PBASE = 128 - o['pool']
        PQ = o['pool'] // 4 - 2
        NPOOL = 32 * PQ
        if pool:
            busy = {(N - 1 - k) % R for k in range(5)}
            free = [x for x in range(R) if x not in busy]
            PS = [(RB + 16 * free[2 * k], RB + 16 * free[2 * k + 1]) for k in range(3)]
        AI = [30, 31]
        vZ, vBP = 32, 33

        def atomic(k):
            A('s_mov_b64 exec, 1')
            A(f'v_mov_b32 v{AI[k & 1]}, 1')
            A(f'buffer_atomic_add v{AI[k & 1]}, v{vZ}, s[60:63], s58 offen sc0 sc1')
            A('s_mov_b64 exec, -1')

        def pool_loads(k):
            kr, vr = PS[k % 3]
            for j in range(4):
                A(f'buffer_load_dwordx4 v[{kr+4*j}:{kr+4*j+3}], v{vK}, s[36:39], s45 offen offset:{64*j} {nt}')
            for j in range(4):
                A(f'buffer_load_dwordx4 v[{vr+4*j}:{vr+4*j+3}], v{vV}, s[40:43], s45 offen offset:{1024*j} {nt}')

        def pool_issue(k):
            A(f'v_readfirstlane_b32 s45, v{AI[k & 1]}')
            A(f's_cmp_lt_u32 s45, {NPOOL}')
            A('s_cselect_b32 s59, s59, 0')
            A(f's_mov_b32 s{64 + k % 3}, s59')
            if PQ & (PQ - 1) == 0:
                A(f's_lshr_b32 s47, s45, {PQ.bit_length() - 1}')
                A(f's_and_b32 s45, s45, {PQ - 1}')
            else:
                A(f's_mul_hi_u32 s47, s45, {(1 << 32) // PQ + 1:#x}')
                A(f's_mul_i32 s48, s47, {PQ}')
                A('s_sub_u32 s45, s45, s48')
            A('s_lshl_b32 s47, s47, 19')
            A('s_lshl_b32 s45, s45, 14')
            A('s_add_u32 s45, s45, s47')
            A('s_add_u32 s45, s45, s67')
            A('s_cmp_lg_u32 s59, 0')
            A('s_cselect_b32 s45, s45, 0x10000000')
            A('s_cselect_b32 s58, s58, 0x30000000')
            atomic(k + 1)
            pool_loads(k)

        def pool_prologue(rem):
            if rem == 3:
                self.srd(60, 28, WS_SIZE)
                A('s_lshl_b32 s58, s31, 2')
                A('s_add_u32 s58, s58, s30')
                A('s_lshl_b32 s58, s58, 8')
                A(f's_add_u32 s58, s58, {WS_CNT:#x}')
                A('s_lshl_b32 s67, s31, 24')
                A('s_lshl_b32 s45, s30, 12')
                A('s_add_u32 s67, s67, s45')
                A(f's_add_u32 s67, s67, {(PBASE + 8) * 4096:#x}')
                A('s_mov_b32 s59, 1')
                A('s_mov_b32 s64, 1')
                A('s_mov_b32 s65, 1')
                A(f'v_mov_b32 v{vZ}, 0')
                A(f'v_lshrrev_b32 v{vBP}, 4, v0')
                A(f'v_lshlrev_b32 v{vBP}, 4, v{vBP}')
                A(f's_add_u32 s45, s44, {PBASE * 4096:#x}')
                pool_loads(0)
                extra[0] += 8
            elif rem == 1:
                A(f'v_mov_b32 v34, {LDS_F}')
                self.lds_wait(34, 4, vt=35, st=45)
                atomic(2)
                A(f's_add_u32 s45, s44, {(PBASE + 4) * 4096:#x}')
                pool_loads(1)
                extra[0] += 9

        def pool_loop():
            PC = 36
            PU = [40, 41, 42, 43]
            lp = self.label('pool')
            A(f'{lp}:')
            for u in range(6):
                kr, vr = PS[u % 3]
                A('s_waitcnt vmcnt(8)')
                A(f's_cmp_eq_u32 s{64 + u % 3}, 0')
                A(f's_cbranch_scc1 {lp}_x')
                for j in range(4):
                    cc = '0' if j == 0 else f'v[{PC}:{PC+3}]'
                    A(f'v_mfma_f32_16x16x32_bf16 v[{PC}:{PC+3}], v[{kr+4*j}:{kr+4*j+3}], v[{Q+4*j}:{Q+4*j+3}], {cc}')
                pool_issue(u + 2)
                A(f'v_cvt_pk_bf16_f32 v{PU[0]}, v{PC}, v{PC+1}')
                A(f'v_cvt_pk_bf16_f32 v{PU[2]}, v{PC+2}, v{PC+3}')
                A(f'v_and_b32 v{PU[1]}, 0xffff0000, v{PU[0]}')
                A(f'v_lshlrev_b32 v{PU[0]}, 16, v{PU[0]}')
                A(f'v_and_b32 v{PU[3]}, 0xffff0000, v{PU[2]}')
                A(f'v_lshlrev_b32 v{PU[2]}, 16, v{PU[2]}')
                for k in range(4):
                    A(f'v_mul_f32 v{PU[k]}, s56, v{PU[k]}')
                self.rnd_bf16_pair(PU[0], PU[1], PC)
                self.rnd_bf16_pair(PU[2], PU[3], PC + 1)
                A(f'v_max3_f32 v{PC}, v{PU[0]}, v{PU[1]}, v{PU[2]}')
                A(f'v_max_f32 v{PC}, v{PC}, v{PU[3]}')
                A(f'v_cmp_gt_f32 vcc, v{PC}, v{vmax}')
                A(f's_cbranch_vccz {lp}_k{u}')
                self.swap_red('v_max_f32', [PC], [PC + 1], 16)
                self.swap_red('v_max_f32', [PC], [PC + 1], 32)
                A(f'v_max_f32 v{PC}, v{PC}, v{vmax}')
                A(f'v_sub_f32 v{PC+1}, v{vmax}, v{PC}')
                A(f'v_mul_f32 v{PC+1}, s57, v{PC+1}')
                A(f'v_exp_f32 v{PC+1}, v{PC+1}')
                A(f'v_mov_b32 v{vmax}, v{PC}')
                A(f'v_mul_f32 v{vnm}, s57, v{PC}')
                A(f'v_sub_f32 v{vnm}, 0, v{vnm}')
                A(f'v_mul_f32 v{vl}, v{vl}, v{PC+1}')
                A(f'ds_bpermute_b32 v{PC+2}, v{vBP}, v{PC+1}')
                A('s_waitcnt lgkmcnt(0)')
                for k in range(8):
                    A(f'v_mul_f32 v{ACC+k}, v{ACC+k}, v{PC+2}')
                A(f'{lp}_k{u}:')
                for k in range(4):
                    A(f'v_fma_f32 v{PU[k]}, v{PU[k]}, s57, v{vnm}')
                for k in range(4):
                    A(f'v_exp_f32 v{PU[k]}, v{PU[k]}')
                self.nop(1)
                for k in range(4):
                    A(f'v_cvt_pk_bf16_f32 v{D+k}, v{PU[k]}, v{PU[k]}')
                for k in range(4):
                    A(f'v_and_b32 v{TA[k]}, v{D+k}, v{M0}')
                    A(f'v_and_b32 v{TA[k]+1}, v{D+k}, v{M1}')
                A(f'v_add_f32 v{PU[0]}, v{PU[0]}, v{PU[1]}')
                A(f'v_add_f32 v{PU[2]}, v{PU[2]}, v{PU[3]}')
                for k in range(4):
                    A(f'v_mfma_f32_16x16x16_bf16 v[{ACC}:{ACC+3}], v[{TA[k]}:{TA[k]+1}], v[{vr+4*k}:{vr+4*k+1}], v[{ACC}:{ACC+3}]')
                    A(f'v_mfma_f32_16x16x16_bf16 v[{ACC+4}:{ACC+7}], v[{TA[k]}:{TA[k]+1}], v[{vr+4*k+2}:{vr+4*k+3}], v[{ACC+4}:{ACC+7}]')
                A(f'v_add_f32 v{PU[0]}, v{PU[0]}, v{PU[2]}')
                A(f'v_fmac_f32 v{vl}, 0.25, v{PU[0]}')
            A(f's_branch {lp}')
            A(f'{lp}_x:')

        for n in range(T):
            r = RB + (n % R) * 16
            c = C[n & 1]
            wait_for(n)
            for j in range(4):
                cc = '0' if j == 0 else f'v[{c}:{c+3}]'
                A(f'v_mfma_f32_16x16x32_bf16 v[{c}:{c+3}], v[{r+4*j}:{r+4*j+3}], v[{Q+4*j}:{Q+4*j+3}], {cc}')
            if n + R < N:
                issue(n + R)
            else:
                self.nop(5)
            if n >= 1:
                kpost(n - 1)
        self.nop(9)
        kpost(T - 1)
        self.dpp('v_max_f32', [vmax], 'quad_perm:[1,0,3,2]')
        self.dpp('v_max_f32', [vmax], 'quad_perm:[2,3,0,1]')
        self.swap_red('v_max_f32', [vmax], [62], 16)
        self.swap_red('v_max_f32', [vmax], [62], 32)
        self.rnd_bf16(vmax, vmax)
        A(f'v_mul_f32 v{vnm}, s57, v{vmax}')
        A(f'v_sub_f32 v{vnm}, 0, v{vnm}')
        self.stamp(3)
        for t in range(T):
            n = T + t
            r = RB + (n % R) * 16
            tt = t & 3
            if tt == 0:
                grp = t // 4
                A(f'v_lshlrev_b32 v{U[0]}, 16, v{S2+2*grp}')
                A(f'v_and_b32 v{U[1]}, 0xffff0000, v{S2+2*grp}')
                A(f'v_lshlrev_b32 v{U[2]}, 16, v{S2+2*grp+1}')
                A(f'v_and_b32 v{U[3]}, 0xffff0000, v{S2+2*grp+1}')
                for k in range(4):
                    A(f'v_fma_f32 v{U[k]}, v{U[k]}, s57, v{vnm}')
                for k in range(4):
                    A(f'v_exp_f32 v{U[k]}, v{U[k]}')
                self.nop(1)
                for k in range(4):
                    A(f'v_cvt_pk_bf16_f32 v{D+k}, v{U[k]}, v{U[k]}')
                A(f'v_add_f32 v{U[0]}, v{U[0]}, v{U[1]}')
                A(f'v_add_f32 v{U[2]}, v{U[2]}, v{U[3]}')
                A(f'v_add_f32 v{vl}, v{vl}, v{U[0]}')
                A(f'v_add_f32 v{vl}, v{vl}, v{U[2]}')
            if pool and t >= T - 4:
                pool_prologue(T - 1 - t)
            if t == T - 1 and not pool:
                finish_l()
            qp = f'quad_perm:[{tt},{tt},{tt},{tt}] row_mask:0xf bank_mask:0xf'
            for k in range(4):
                A(f'v_and_b32_dpp v{TA[k]}, v{D+k}, v{M0} {qp}')
                A(f'v_and_b32_dpp v{TA[k]+1}, v{D+k}, v{M1} {qp}')
            wait_for(n)
            self.nop(1)
            for k in range(4):
                A(f'v_mfma_f32_16x16x16_bf16 v[{ACC}:{ACC+3}], v[{TA[k]}:{TA[k]+1}], v[{r+4*k}:{r+4*k+1}], v[{ACC}:{ACC+3}]')
                A(f'v_mfma_f32_16x16x16_bf16 v[{ACC+4}:{ACC+7}], v[{TA[k]}:{TA[k]+1}], v[{r+4*k+2}:{r+4*k+3}], v[{ACC+4}:{ACC+7}]')
            if n + R < N:
                issue(n + R)
        if pool:
            self.stamp(5)
            pool_loop()
            self.seg_begin('h')
            finish_l()
        else:
            if not cover: self.seg_begin('h')
            self.nop(7)
        self.stamp(4, None if not cover else ())
        A(f'ds_write_b128 v28, v[{ACC}:{ACC+3}]')
        A(f'ds_write_b128 v28, v[{ACC+4}:{ACC+7}] offset:16')
        if not cover: self.seg_end('h')

    def helper_q(self):
        A = self.A
        o = self.o
        nt = o['nt']
        spin = o['spin']
        A('s_setprio 3')
        A('v_lshlrev_b32 v1, 4, v0')
        A('v_and_b32 v2, 15, v0')
        A('v_lshrrev_b32 v3, 4, v0')
        A('s_lshr_b32 s99, s32, 2')
        A('s_waitcnt lgkmcnt(0)')
        A(f's_load_dwordx2 s[96:97], s[28:29], {WS_E:#x}')
        A('s_mov_b32 s0, s99')
        A('s_and_b32 s1, s32, 3')
        self.srd(X, 4, 1024)
        self.srd(WQ, 10, 0x400000)
        A('s_cmp_lg_u32 s33, 0')
        A('s_cbranch_scc1 L_h_b0')
        XA, XB, XP, WQR = 8, 12, 20, 64
        A('v_lshlrev_b32 v4, 17, v3')
        A('v_lshl_add_u32 v4, v2, 4, v4')
        A('s_lshl_b32 s14, s0, 19')
        A('s_lshl_b32 s15, s31, 2')
        A('s_add_u32 s15, s15, s1')
        A('s_lshl_b32 s15, s15, 8')
        A('s_add_u32 s14, s14, s15')
        A(f'buffer_load_dwordx4 v[{XA}:{XA+3}], v1, s[{X}:{X+3}], 0 offen')
        A('v_lshlrev_b32 v6, 5, v3')
        A('s_lshl_b32 s15, s0, 7')
        A(f'buffer_load_dwordx4 v[{XB}:{XB+3}], v6, s[{X}:{X+3}], s15 offen')
        A(f'buffer_load_dwordx4 v[{XB+4}:{XB+7}], v6, s[{X}:{X+3}], s15 offen offset:16')
        A('v_mov_b32 v5, 0')
        A(f'buffer_load_dword v{XP}, v5, s[{X}:{X+3}], 0 offen')
        for k in range(16):
            A(f'buffer_load_dwordx4 v[{WQR+4*k}:{WQR+4*k+3}], v4, s[{WQ}:{WQ+3}], s14 offen {nt}')
            A('s_add_u32 s14, s14, 8192')
        A(f'v_mov_b32 v7, {LDS_F}')
        A('ds_write_b32 v7, v5')
        A('ds_write_b32 v7, v5 offset:4')
        A('s_waitcnt lgkmcnt(0)')
        A('L_h_b0:')
        self.stamp(4, ('q',))
        A('s_barrier')
        self.srd(WS, 28, WS_SIZE)
        A('s_waitcnt lgkmcnt(0)')
        A(f's_add_u32 s96, s96, {TAGC & 0xffffffff:#x}')
        A(f's_addc_u32 s97, s97, {TAGC >> 32:#x}')
        A('s_cmp_lg_u32 s33, 0')
        A('s_cbranch_scc1 L_h_qgather')
        self.sel_masks(44, 45)
        A('v_lshlrev_b32 v46, 6, v2')
        A('v_lshl_add_u32 v46, v3, 4, v46')
        A('s_lshl_b32 s6, s31, 15')
        A('s_lshl_b32 s15, s0, 12')
        A('s_add_u32 s6, s6, s15')
        A('s_lshl_b32 s15, s1, 10')
        A('s_add_u32 s6, s6, s15')
        A('v_and_b32 v5, 1, v3')
        A('v_cmp_eq_u32 s[72:73], 1, v5')
        A('v_cmp_lt_u32 s[74:75], 1, v3')
        A('v_mov_b32 v26, s96')
        A('v_mov_b32 v27, s97')
        A('s_waitcnt vmcnt(16)')
        self.stamp(6, ('q',))
        V8 = list(range(28, 36))
        for k in range(4):
            A(f'v_lshlrev_b32 v{V8[2*k]}, 16, v{XA+k}')
            A(f'v_and_b32 v{V8[2*k+1]}, 0xffff0000, v{XA+k}')
        A(f'v_lshlrev_b32 v{XP}, 16, v{XP}')
        A(f'v_mov_b32 v{XP+1}, v{XP}')
        TT = list(range(48, 58))
        self.ln_moments(V8, XP, TT, 76, 77)
        self.ln_finish(TT[8], TT[9], 22, 23, 24)
        self.stamp(7, ('q',))
        V16 = list(range(28, 44))
        for k in range(8):
            A(f'v_lshlrev_b32 v{V16[2*k]}, 16, v{XB+k}')
            A(f'v_and_b32 v{V16[2*k+1]}, 0xffff0000, v{XB+k}')
        self.ln_apply(V16, V16, 22, 23, 24)
        QA = 48
        for k in range(16):
            a = 56 + 2 * (k & 3)
            A(f'v_cvt_pk_bf16_f32 v24, v{V16[k]}, v{V16[k]}')
            A(f'v_and_b32 v{a}, v24, v44')
            A(f'v_and_b32 v{a+1}, v24, v45')
            A(f's_waitcnt vmcnt({15 - k})')
            if k == 0: self.stamp(8, ('q',))
            if k == 15: self.stamp(9, ('q',))
            self.nop(1)
            c0 = '0' if k == 0 else f'v[{QA}:{QA+3}]'
            c1 = '0' if k == 0 else f'v[{QA+4}:{QA+7}]'
            A(f'v_mfma_f32_16x16x16_bf16 v[{QA}:{QA+3}], v[{a}:{a+1}], v[{WQR+4*k}:{WQR+4*k+1}], {c0}')
            A(f'v_mfma_f32_16x16x16_bf16 v[{QA+4}:{QA+7}], v[{a}:{a+1}], v[{WQR+4*k+2}:{WQR+4*k+3}], {c1}')
        self.nop(8)
        for k in range(4):
            A(f'v_cndmask_b32 v{QA+k}, v{QA+k}, v{QA+4+k}, s[74:75]')
        A(f'v_cndmask_b32 v24, v{QA}, v{QA+2}, s[72:73]')
        A(f'v_cndmask_b32 v25, v{QA+1}, v{QA+3}, s[72:73]')
        A(f'buffer_store_dwordx4 v[24:27], v46, s[{WS}:{WS+3}], s6 offen offset:{WS_QP} sc1')
        self.stamp(1)
        A('v_lshlrev_b32 v5, 10, v0')
        A('s_lshl_b32 s14, s31, 15')
        A('s_mov_b32 exec_hi, 0')
        A(f's_mov_b32 s15, {spin}')
        lp = self.label('probe')
        A(f'{lp}:')
        A(f's_sleep {o["pollsleep"]}')
        A(f'buffer_load_dwordx2 v[28:29], v5, s[{WS}:{WS+3}], s14 offen offset:{WS_QP+1016} sc1')
        A('s_sub_u32 s15, s15, 1')
        A('s_cmp_eq_u32 s15, 0')
        A(f's_cbranch_scc1 {lp}_x')
        A('s_waitcnt vmcnt(0)')
        A('v_cmp_ne_u64 vcc, s[96:97], v[28:29]')
        A('s_and_b64 exec, exec, vcc')
        A(f's_cbranch_execnz {lp}')
        A(f'{lp}_x:')
        A('s_mov_b64 exec, -1')
        A('v_mov_b32 v6, 1')
        A('ds_write_b32 v7, v6')
        self.stamp(5, ('q',))
        A('L_h_qgather:')
        A(f'v_mov_b32 v7, {LDS_F}')
        A('s_lshl_b32 s14, s31, 15')
        A('s_lshl_b32 s15, s33, 11')
        A('s_add_u32 s14, s14, s15')
        self.lds_wait(7, 0)
        A(f's_mov_b32 s15, {spin}')
        lp = self.label('pollqd')
        A(f'{lp}:')
        A('s_mov_b32 s8, s14')
        for k in range(8):
            A(f'buffer_load_dwordx4 v[{64+8*k}:{67+8*k}], v1, s[{WS}:{WS+3}], s8 offen offset:{WS_QP} sc1')
            A(f'buffer_load_dwordx4 v[{68+8*k}:{71+8*k}], v1, s[{WS}:{WS+3}], s8 offen offset:{WS_QP+1024} sc1')
            if k < 7:
                A('s_add_u32 s8, s8, 4096')
        A('s_sub_u32 s15, s15, 1')
        A('s_cmp_eq_u32 s15, 0')
        A(f's_cbranch_scc1 {lp}_x')
        for k in range(16):
            A(f's_waitcnt vmcnt({15-k})')
            if k == 0:
                A(f'v_cmp_ne_u64 s[76:77], s[96:97], v[{66+4*k}:{67+4*k}]')
            else:
                A(f'v_cmp_ne_u64 vcc, s[96:97], v[{66+4*k}:{67+4*k}]')
                A('s_or_b64 s[76:77], s[76:77], vcc')
        A('s_and_b64 exec, exec, s[76:77]')
        A(f's_cbranch_execz {lp}_x')
        A(f's_sleep {o["pollsleep"]}')
        A(f's_branch {lp}')
        A(f'{lp}_x:')
        A('s_mov_b64 exec, -1')
        A('s_waitcnt vmcnt(0)')
        self.stamp(2)
        for k in range(1, 8):
            A(f'v_pk_add_f32 v[64:65], v[64:65], v[{64+8*k}:{65+8*k}]')
            A(f'v_pk_add_f32 v[68:69], v[68:69], v[{68+8*k}:{69+8*k}]')
        A('v_cvt_pk_bf16_f32 v16, v64, v65')
        A('v_cvt_pk_bf16_f32 v17, v68, v69')
        A('s_lshl_b32 s15, s33, 9')
        A('v_lshl_add_u32 v5, v0, 2, s15')
        A(f'ds_write_b32 v5, v16 offset:{LDS_Q}')
        A(f'ds_write_b32 v5, v17 offset:{LDS_Q+256}')
        A('s_waitcnt lgkmcnt(0)')
        self.stamp(3)
        A('s_barrier')
        A('s_cmp_lg_u32 s33, 1')
        A('s_cbranch_scc1 L_pref')
        A('v_mov_b32 v24, -1'); A('v_mov_b32 v25, -1'); A('v_mov_b32 v26, -1'); A('v_mov_b32 v27, -1')
        A('s_lshl_b32 s14, s3, 11')
        A(f's_add_u32 s14, s14, {WS_P1:#x}')
        for k in range(2):
            A(f'buffer_store_dwordx4 v[24:27], v1, s[{WS}:{WS+3}], s14 offen offset:{1024*k} sc1')
        A('s_lshl_b32 s14, s31, 2')
        A('s_add_u32 s14, s14, s34')
        A('s_lshl_b32 s14, s14, 11')
        A('s_lshl_b32 s15, s35, 8')
        A('s_add_u32 s14, s14, s15')
        A(f's_add_u32 s14, s14, {WS_P2:#x}')
        A('v_lshlrev_b32 v5, 2, v0')
        A(f'buffer_store_dword v24, v5, s[{WS}:{WS+3}], s14 offen sc1')
        A('s_and_b32 s14, s3, 15')
        A('s_cmp_lg_u32 s14, 0')
        A('s_cbranch_scc1 L_h1_nohv')
        A('s_lshl_b32 s14, s3, 3')
        A(f's_add_u32 s14, s14, {WS_HV:#x}')
        A('v_lshrrev_b32 v5, 3, v0')
        A(f'v_mul_u32_u24 v5, {HVS}, v5')
        A('v_and_b32 v6, 7, v0')
        A('v_lshl_add_u32 v5, v6, 4, v5')
        A(f'buffer_store_dwordx4 v[24:27], v5, s[{WS}:{WS+3}], s14 offen sc1')
        A(f'v_mul_u32_u24 v5, {HVS}, v0')
        A(f's_add_u32 s14, s3, {WS_HV + 2048:#x}')
        A('s_mov_b64 exec, 0xff')
        A(f'buffer_store_dwordx4 v[24:27], v5, s[{WS}:{WS+3}], s14 offen sc1')
        A('s_mov_b64 exec, -1')
        A('L_h1_nohv:')
        A('s_cmp_lg_u32 s32, 0')
        A('s_cbranch_scc1 L_h1_nocnt')
        A('s_lshl_b32 s14, s31, 10')
        A(f's_add_u32 s14, s14, {WS_CNT:#x}')
        A('v_mov_b32 v32, 0'); A('v_mov_b32 v33, 0'); A('v_mov_b32 v34, 0'); A('v_mov_b32 v35, 0')
        A(f'buffer_store_dwordx4 v[32:35], v1, s[{WS}:{WS+3}], s14 offen sc1')
        A('L_h1_nocnt:')
        A('v_mov_b32 v28, s96')
        A('v_mov_b32 v29, s97')
        A('v_mov_b32 v5, 0')
        A('s_lshl_b32 s14, s3, 3')
        A(f's_add_u32 s14, s14, {WS_F:#x}')
        A('s_mov_b64 exec, 1')
        A('s_waitcnt vmcnt(0)')
        A(f'buffer_store_dwordx2 v[28:29], v5, s[{WS}:{WS+3}], s14 offen sc1')
        A('s_mov_b64 exec, -1')
        A(f's_mov_b32 s14, {WS_F:#x}')
        A(f's_mov_b32 s15, {spin}')
        lp = self.label('pollall')
        A(f'{lp}:')
        A('s_sleep 127')
        A('s_sleep 127')
        A(f'buffer_load_dwordx4 v[24:27], v1, s[{WS}:{WS+3}], s14 offen sc1')
        A(f'buffer_load_dwordx4 v[28:31], v1, s[{WS}:{WS+3}], s14 offen offset:1024 sc1')
        A('s_sub_u32 s15, s15, 1')
        A('s_cmp_eq_u32 s15, 0')
        A(f's_cbranch_scc1 {lp}_x')
        A('s_waitcnt vmcnt(0)')
        for k in range(4):
            if k == 0:
                A(f'v_cmp_ne_u64 s[76:77], s[96:97], v[{24+2*k}:{25+2*k}]')
            else:
                A(f'v_cmp_ne_u64 vcc, s[96:97], v[{24+2*k}:{25+2*k}]')
                A('s_or_b64 s[76:77], s[76:77], vcc')
        A('s_and_b64 exec, exec, s[76:77]')
        A(f's_cbranch_execnz {lp}')
        A(f'{lp}_x:')
        A('s_mov_b64 exec, -1')
        A('v_mov_b32 v6, 1')
        A('ds_write_b32 v7, v6 offset:4')
        A('s_waitcnt vmcnt(0)')

    def helper_tail(self):
        A = self.A
        o = self.o
        nt = o['nt']
        spin = o['spin']
        WOR, WOT, XR, B2R, XF = 64, 80, 108, 110, 128
        vOA, vMLA, vP1o, vP1m, vWw, vWr, vP2, vHw, vHo = 140, 141, 142, 143, 144, 145, 146, 147, 149
        A('s_setprio 3')
        self.srd(WO, 12, 0x400000)
        self.srd(W1, 16, 3584)
        self.srd(B1, 18, 3584)
        self.srd(W2, 20, 3584)
        self.srd(B2, 22, 2)
        self.srd(OUT, 24, 1024)
        A(f's_mov_b32 s9, {f2u(LOG2E):#x}')
        A('v_lshlrev_b32 v1, 4, v0')
        A('v_and_b32 v8, 7, v0')
        A('v_lshrrev_b32 v9, 3, v0')
        A('v_and_b32 v10, 31, v0')
        A('v_lshlrev_b32 v4, 12, v8')
        A('v_lshl_add_u32 v4, v9, 4, v4')
        A('s_lshl_b32 s8, s31, 2')
        A('s_add_u32 s8, s8, s34')
        A('s_lshl_b32 s14, s8, 17')
        A('s_lshl_b32 s15, s33, 15')
        A('s_add_u32 s14, s14, s15')
        A('s_lshl_b32 s15, s35, 7')
        A('s_add_u32 s14, s14, s15')
        for k in range(4):
            A(f'buffer_load_dwordx4 v[{WOR+4*k}:{WOR+4*k+3}], v4, s[{WO}:{WO+3}], s14 offen offset:{1024*k} {nt}')
        self.mlp_weights_load()
        A('v_lshlrev_b32 v5, 3, v8')
        A('s_lshr_b32 s14, s3, 4')
        A('s_lshl_b32 s14, s14, 6')
        A(f'buffer_load_dwordx2 v[{XR}:{XR+1}], v5, s[{X}:{X+3}], s14 offen')
        A('v_mov_b32 v5, 0')
        A(f'buffer_load_ushort v{B2R}, v5, s[{B2}:{B2+3}], 0 offen')
        A('s_lshl_b32 s14, s33, 9')
        A(f's_add_u32 s14, s14, {LDS_O}')
        A(f'v_lshl_add_u32 v{vOA}, v10, 4, s14')
        A('s_lshl_b32 s14, s33, 3')
        A(f's_add_u32 s14, s14, {LDS_ML}')
        A(f'v_mov_b32 v{vMLA}, s14')
        A(f'v_lshlrev_b32 v{vP1o}, 11, v9')
        A('s_lshl_b32 s14, s33, 7')
        A(f'v_lshl_add_u32 v{vP1o}, v8, 4, v{vP1o}')
        A(f'v_add_u32 v{vP1o}, s14, v{vP1o}')
        A('s_lshl_b32 s14, s33, 8')
        A(f's_add_u32 s14, s14, {LDS_W}')
        A(f'v_lshl_add_u32 v{vWw}, v9, 5, s14')
        A(f'v_lshlrev_b32 v{vWr}, 2, v0')
        A('v_lshlrev_b32 v4, 13, v9')
        A(f'v_lshl_add_u32 v{vP2}, v8, 4, v4')
        A('s_lshr_b32 s14, s3, 4')
        A('s_lshl_b32 s14, s14, 7')
        A(f's_add_u32 s6, s14, {WS_P2:#x}')
        A('s_add_u32 s7, s6, 4096')
        A(f's_add_u32 s24, s14, {WS_HV:#x}')
        A('s_and_b32 s15, s2, 7')
        A(f's_mul_i32 s15, s15, {HVS}')
        A(f's_add_u32 s25, s15, {WS_HV:#x}')
        A(f's_add_u32 s26, s3, {WS_HV + 2048:#x}')
        A(f'v_mul_u32_u24 v143, {HVS}, v9')
        A(f'v_mul_u32_u24 v148, {HVS}, v9')
        A('v_lshl_add_u32 v148, v8, 4, v148')
        A('s_lshr_b32 s14, s2, 1')
        A('s_lshl_b32 s14, s14, 4')
        A('v_mov_b32 v4, s14')
        A(f'v_add_u32 v{vHw}, 0x800, v1')
        A('v_cmp_lt_u32 vcc, 15, v0')
        A(f'v_mov_b32 v{vHo}, {LDS_H}')
        A('s_nop 0')
        A(f'v_cndmask_b32 v{vHw}, v{vHw}, v4, vcc')
        A('s_lshl_b32 s14, s3, 11')
        A('s_lshl_b32 s15, s33, 9')
        A('s_add_u32 s14, s14, s15')
        A(f's_add_u32 s16, s14, {WS_P1:#x}')
        A('s_lshl_b32 s14, s31, 16')
        A('s_lshl_b32 s15, s34, 9')
        A('s_add_u32 s14, s14, s15')
        A(f's_add_u32 s10, s14, {WS_P1:#x}')
        A('s_add_u32 s11, s10, 16384')
        A('s_add_u32 s12, s10, 32768')
        A('s_add_u32 s13, s10, 49152')
        A('s_lshl_b32 s14, s8, 11')
        A('s_lshl_b32 s15, s35, 8')
        A('s_add_u32 s14, s14, s15')
        A(f's_add_u32 s17, s14, {WS_P2:#x}')
        A('s_waitcnt vmcnt(0)')
        A('s_mov_b32 s14, 0x05040100')
        A('s_mov_b32 s15, 0x07060302')
        for p in range(2):
            for dw in range(4):
                lo, hi = WOR + 8 * p + dw, WOR + 8 * p + 4 + dw
                A(f'v_perm_b32 v{WOT+8*p+2*dw}, v{hi}, v{lo}, s14')
                A(f'v_perm_b32 v{WOT+8*p+2*dw+1}, v{hi}, v{lo}, s15')
        self.mlp_weights_prep()
        for k in range(2):
            A(f'v_lshlrev_b32 v{XF+2*k}, 16, v{XR+k}')
            A(f'v_and_b32 v{XF+2*k+1}, 0xffff0000, v{XR+k}')
        A(f'v_lshlrev_b32 v{B2R}, 16, v{B2R}')
        A('v_cmp_lt_u32 s[18:19], 31, v0')
        if o['warm']:
            A('s_cmp_lg_u32 s33, 0')
            A('s_cbranch_scc1 L_nowarm')
            self.warm_pass(['h', 'a', 'b', 'c', 'd1', 'd2', 'e', 'f', 'g'])
            self.srd(WS, 28, WS_SIZE)
            A('L_nowarm:')
        for k in range(4):
            A(f's_mov_b64 s[{72+2*k}:{73+2*k}], -1')
        A('s_waitcnt lgkmcnt(0)')
        A('s_barrier')
        self.seg_begin('a')
        self.stamp(4, (True,))
        NP = NPART
        ML, OO = 16, 28
        for w in range(NP):
            A(f'ds_read_b64 v[{ML+2*w}:{ML+2*w+1}], v{vMLA} offset:{32*w}')
        for w in range(NP):
            A(f'ds_read_b128 v[{OO+4*w}:{OO+4*w+3}], v{vOA} offset:{2048*w}')
        A(f's_waitcnt lgkmcnt({NP})')
        A(f'v_max3_f32 v12, v{ML}, v{ML+2}, v{ML+4}')
        A(f'v_max3_f32 v13, v{ML+6}, v{ML+8}, v{ML+10}')
        A('v_max_f32 v12, v12, v13')
        A('v_mul_f32 v13, s9, v12')
        for w in range(NP):
            A(f'v_fma_f32 v{ML+2*w}, v{ML+2*w}, s9, -v13')
        for w in range(NP):
            A(f'v_exp_f32 v{ML+2*w}, v{ML+2*w}')
        A(f'v_mul_f32 v13, v{ML}, v{ML+1}')
        for w in range(1, NP):
            A(f'v_fmac_f32 v13, v{ML+2*w}, v{ML+2*w+1}')
        A('s_waitcnt lgkmcnt(0)')
        for c in range(4):
            A(f'v_mul_f32 v{52+c}, v{ML}, v{OO+c}')
        for w in range(1, NP):
            for c in range(4):
                A(f'v_fmac_f32 v{52+c}, v{ML+2*w}, v{OO+4*w+c}')
        A('v_cvt_pk_bf16_f32 v52, v52, v53')
        A('v_cvt_pk_bf16_f32 v53, v54, v55')
        A('v_min_u32 v54, 0xfffffffe, v12')
        A('v_min_u32 v55, 0xfffffffe, v13')
        self.canon([52, 53])
        self.seg_end('a')
        A('s_mov_b32 exec_hi, 0')
        A(f'buffer_store_dwordx4 v[52:55], v1, s[{WS}:{WS+3}], s16 offen sc1')
        self.stamp(5, (True,))
        GO = 16
        A(f's_mov_b32 s15, {spin}')
        lp = self.label('poll1')
        A(f'{lp}:')
        for k in range(4):
            A(f's_mov_b64 exec, s[{72+2*k}:{73+2*k}]')
            A(f's_cbranch_execz {lp}_l{k}')
            A(f'buffer_load_dwordx4 v[{GO+4*k}:{GO+4*k+3}], v{vP1o}, s[{WS}:{WS+3}], s{10+k} offen sc1')
            A(f'{lp}_l{k}:')
        A('s_sub_u32 s15, s15, 1')
        A('s_cmp_eq_u32 s15, 0')
        A(f's_cbranch_scc1 {lp}_x')
        A('s_waitcnt vmcnt(0)')
        for k in range(4):
            A(f's_mov_b64 exec, s[{72+2*k}:{73+2*k}]')
            A(f'v_max3_u32 v12, v{GO+4*k}, v{GO+4*k+1}, v{GO+4*k+2}')
            A(f'v_max_u32 v12, v12, v{GO+4*k+3}')
            A(f'v_cmp_eq_u32 s[{72+2*k}:{73+2*k}], -1, v12')
        A('s_or_b64 s[20:21], s[72:73], s[74:75]')
        A('s_or_b64 vcc, s[76:77], s[78:79]')
        A('s_or_b64 s[20:21], s[20:21], vcc')
        A(f's_cbranch_scc0 {lp}_x')
        A('s_bcnt1_i32_b64 s14, s[20:21]')
        A('s_cmp_gt_u32 s14, 16')
        A(f's_cbranch_scc1 {lp}_s')
        if o['sleep_few']:
            A(f's_sleep {o["sleep_few"]}')
        A(f's_branch {lp}')
        A(f'{lp}_s:')
        A(f's_sleep {o["sleep_many"]}')
        A(f's_branch {lp}')
        A(f'{lp}_x:')
        A('s_mov_b64 exec, -1')
        A('s_waitcnt vmcnt(0)')
        self.seg_begin('b')
        self.stamp(6, (True,))
        A(f'v_max3_f32 v12, v{GO+2}, v{GO+6}, v{GO+10}')
        A(f'v_max_f32 v12, v12, v{GO+14}')
        for k in range(2):
            A(f'v_lshlrev_b32 v{32+4*k}, 16, v{GO+4*k}')
            A(f'v_and_b32 v{33+4*k}, 0xffff0000, v{GO+4*k}')
        A('v_max_f32_dpp v12, v12, v12 row_ror:8 row_mask:0xf bank_mask:0xf')
        A('v_mov_b32 v13, v12')
        for k in range(2):
            A(f'v_lshlrev_b32 v{34+4*k}, 16, v{GO+4*k+1}')
            A(f'v_and_b32 v{35+4*k}, 0xffff0000, v{GO+4*k+1}')
        A('v_permlane16_swap_b32 v12, v13')
        for k in range(2, 4):
            A(f'v_lshlrev_b32 v{44+4*k}, 16, v{GO+4*k}')
            A(f'v_and_b32 v{45+4*k}, 0xffff0000, v{GO+4*k}')
        A('v_max_f32 v12, v12, v13')
        A('v_mov_b32 v13, v12')
        for k in range(2, 4):
            A(f'v_lshlrev_b32 v{46+4*k}, 16, v{GO+4*k+1}')
            A(f'v_and_b32 v{47+4*k}, 0xffff0000, v{GO+4*k+1}')
        A('v_permlane32_swap_b32 v12, v13')
        self.nop(2)
        A('v_max_f32 v12, v12, v13')
        A('v_mul_f32 v12, s9, v12')
        OU = [32, 36, 52, 56]
        for k in range(4):
            A(f'v_fma_f32 v{GO+4*k+2}, v{GO+4*k+2}, s9, -v12')
        for k in range(4):
            A(f'v_exp_f32 v{GO+4*k+2}, v{GO+4*k+2}')
        self.nop(1)
        A(f'v_mul_f32 v44, v{GO+2}, v{GO+3}')
        A(f'v_pk_mul_f32 v[40:41], v[{OU[0]}:{OU[0]+1}], v[{GO+2}:{GO+3}] op_sel_hi:[1,0]')
        A(f'v_pk_mul_f32 v[42:43], v[{OU[0]+2}:{OU[0]+3}], v[{GO+2}:{GO+3}] op_sel_hi:[1,0]')
        for k in range(1, 4):
            f = GO + 4 * k + 2
            A(f'v_fmac_f32 v44, v{f}, v{f+1}')
            A(f'v_pk_fma_f32 v[40:41], v[{OU[k]}:{OU[k]+1}], v[{f}:{f+1}], v[40:41] op_sel_hi:[1,0,1]')
            A(f'v_pk_fma_f32 v[42:43], v[{OU[k]+2}:{OU[k]+3}], v[{f}:{f+1}], v[42:43] op_sel_hi:[1,0,1]')
        self.nop(1)
        R5 = [44, 40, 41, 42, 43]
        T5 = [45, 46, 47, 48, 49]
        self.dpp('v_add_f32', R5, 'row_ror:8')
        self.swap_red('v_add_f32', R5, T5, 16)
        self.swap_red('v_add_f32', R5, T5, 32)
        A('v_rcp_f32 v44, v44')
        self.nop(1)
        for c in range(4):
            A(f'v_mul_f32 v{40+c}, v{40+c}, v44')
        A('v_cvt_pk_bf16_f32 v40, v40, v41')
        A('v_cvt_pk_bf16_f32 v41, v42, v43')
        for c in range(8):
            A(f'v_dot2_f32_bf16 v{16+c}, v40, v{WOT+c}, 0')
        for c in range(8):
            A(f'v_dot2_f32_bf16 v{16+c}, v41, v{WOT+8+c}, v{16+c}')
        R8 = list(range(16, 24))
        self.dpp('v_add_f32', R8, 'quad_perm:[1,0,3,2]')
        self.dpp('v_add_f32', R8, 'quad_perm:[2,3,0,1]')
        self.dpp('v_add_f32', R8, 'row_half_mirror')
        A(f'ds_write_b128 v{vWw}, v[16:19]')
        A(f'ds_write_b128 v{vWw}, v[20:23] offset:16')
        A('s_waitcnt lgkmcnt(0)')
        self.seg_end('b')
        A('s_barrier')
        A('s_cmp_lg_u32 s33, 0')
        A('s_cbranch_scc1 L_hop2')
        self.seg_begin('c')
        for w in range(4):
            A(f'ds_read_b32 v{16+w}, v{vWr} offset:{LDS_W + 256*w}')
        A('s_waitcnt lgkmcnt(0)')
        A('v_add_f32 v16, v16, v17')
        A('v_add_f32 v18, v18, v19')
        A('v_add_f32 v16, v16, v18')
        self.canon([16])
        self.seg_end('c')
        A(f'buffer_store_dword v16, v{vWr}, s[{WS}:{WS+3}], s17 offen sc1')
        A('L_hop2:')
        self.stamp(7, (True,))
        A('s_cmp_lg_u32 s33, 1')
        A('s_cbranch_scc1 L_hop2b')
        A('s_and_b32 s14, s3, 15')
        A('s_cmp_lg_u32 s14, 0')
        A('s_cbranch_scc1 L_hop2b')
        A(f's_mov_b32 s15, {spin}')
        lp = self.label('poll2a')
        A(f'{lp}:')
        for k in range(4):
            A(f'buffer_load_dwordx4 v[{16+4*k}:{19+4*k}], v{vP2}, s[{WS}:{WS+3}], s{6+(k>>1)} offen offset:{2048*(k&1)} sc1')
        A('s_sub_u32 s15, s15, 1')
        A('s_cmp_eq_u32 s15, 0')
        A(f's_cbranch_scc1 {lp}_x')
        A('s_waitcnt vmcnt(0)')
        A('v_max3_u32 v12, v16, v17, v18')
        A('v_max3_u32 v13, v19, v20, v21')
        A('v_max3_u32 v12, v12, v22, v23')
        A('v_max3_u32 v13, v13, v24, v25')
        A('v_max3_u32 v12, v12, v26, v27')
        A('v_max3_u32 v13, v13, v28, v29')
        A('v_max3_u32 v12, v12, v30, v31')
        A('v_max_u32 v12, v12, v13')
        A('v_cmp_eq_u32 vcc, -1, v12')
        A('s_and_b64 exec, exec, vcc')
        A(f's_cbranch_execnz {lp}')
        A(f'{lp}_x:')
        A('s_mov_b64 exec, -1')
        A('s_waitcnt vmcnt(0)')
        self.seg_begin('d1')
        A('v_pk_add_f32 v[16:17], v[16:17], v[20:21]')
        A('v_pk_add_f32 v[18:19], v[18:19], v[22:23]')
        A('v_pk_add_f32 v[24:25], v[24:25], v[28:29]')
        A('v_pk_add_f32 v[26:27], v[26:27], v[30:31]')
        A('v_pk_add_f32 v[16:17], v[16:17], v[24:25]')
        A('v_pk_add_f32 v[18:19], v[18:19], v[26:27]')
        R4 = [16, 17, 18, 19]
        self.nop(1)
        self.dpp('v_add_f32', R4, 'row_ror:8')
        self.swap_red('v_add_f32', R4, [20, 21, 22, 23], 16)
        self.swap_red('v_add_f32', R4, [20, 21, 22, 23], 32)
        self.rnd_bf16_pair(16, 17, 20)
        self.rnd_bf16_pair(18, 19, 21)
        A(f'v_pk_add_f32 v[16:17], v[16:17], v[{XF}:{XF+1}]')
        A(f'v_pk_add_f32 v[18:19], v[18:19], v[{XF+2}:{XF+3}]')
        self.rnd_bf16_pair(16, 17, 20)
        self.rnd_bf16_pair(18, 19, 21)
        self.seg_end('d1')
        A(f'buffer_store_dwordx4 v[16:19], v148, s[{WS}:{WS+3}], s24 offen sc1')
        self.seg_begin('d2')
        A('v_readfirstlane_b32 s14, v16')
        self.nop(2)
        for c in range(4):
            A(f'v_subrev_f32 v{20+c}, s14, v{16+c}')
        A('v_add_f32 v25, v20, v21')
        A('v_mul_f32 v26, v20, v20')
        A('v_add_f32 v24, v22, v23')
        A('v_fmac_f32 v26, v21, v21')
        A('v_add_f32 v25, v25, v24')
        A('v_fmac_f32 v26, v22, v22')
        A('v_mov_b32 v24, s14')
        A('v_fmac_f32 v26, v23, v23')
        A('v_mov_b32 v27, 0')
        self.dpp('v_add_f32', [25, 26], 'quad_perm:[1,0,3,2]')
        self.dpp('v_add_f32', [25, 26], 'quad_perm:[2,3,0,1]')
        self.dpp('v_add_f32', [25, 26], 'row_half_mirror')
        self.canon([25, 26])
        self.seg_end('d2')
        A('s_mov_b32 exec_lo, 0x01010101')
        A('s_mov_b32 exec_hi, 0x01010101')
        A(f'buffer_store_dwordx4 v[24:27], v143, s[{WS}:{WS+3}], s26 offen sc1')
        A('s_mov_b64 exec, -1')
        A('L_hop2b:')
        A('s_cmp_lg_u32 s33, 0')
        A('s_cbranch_scc1 L_b4')
        A('s_mov_b64 exec, 0x1ffff')
        A(f's_mov_b32 s15, {spin}')
        lp = self.label('poll2b')
        A(f'{lp}:')
        A(f'buffer_load_dwordx4 v[16:19], v{vHw}, s[{WS}:{WS+3}], s25 offen sc1')
        A('s_sub_u32 s15, s15, 1')
        A('s_cmp_eq_u32 s15, 0')
        A(f's_cbranch_scc1 {lp}_x')
        A('s_waitcnt vmcnt(0)')
        A('v_max3_u32 v12, v16, v17, v18')
        A('v_max_u32 v12, v12, v19')
        A('v_cmp_eq_u32 vcc, -1, v12')
        A('s_and_b64 exec, exec, vcc')
        A(f's_cbranch_execz {lp}_x')
        if o['sleep2b']:
            A(f's_sleep {o["sleep2b"]}')
        A(f's_branch {lp}')
        A(f'{lp}_x:')
        A('s_mov_b64 exec, -1')
        A('s_waitcnt vmcnt(0)')
        self.seg_begin('e')
        self.stamp(8, (True,))
        A('v_readlane_b32 s14, v16, 0')
        A('v_readlane_b32 s72, v16, 16')
        A('v_readlane_b32 s73, v17, 16')
        A('v_readlane_b32 s74, v18, 16')
        A('v_readlane_b32 s75, v19, 16')
        A('v_subrev_f32 v20, s14, v16')
        A('v_mul_f32 v21, 0x42000000, v20')
        A('v_fma_f32 v22, 2.0, v17, v21')
        A('v_fmac_f32 v18, v20, v22')
        A('v_add_f32 v17, v17, v21')
        A('s_bitcmp1_b32 s2, 0')
        A('s_cselect_b32 s72, s74, s72')
        A('s_cselect_b32 s73, s75, s73')
        self.dpp('v_add_f32', [18, 17], 'quad_perm:[1,0,3,2]')
        self.dpp('v_add_f32', [18, 17], 'quad_perm:[2,3,0,1]')
        self.dpp('v_add_f32', [18, 17], 'row_half_mirror')
        self.dpp('v_add_f32', [18, 17], 'row_mirror')
        A('v_mov_b32 v24, s72')
        A('v_mov_b32 v25, s73')
        A('v_readlane_b32 s76, v17, 0')
        A('v_readlane_b32 s77, v18, 0')
        inv = f2u(1.0 / 512)
        A(f'v_mov_b32 v48, {inv:#x}')
        self.nop(1)
        A('v_mul_f32 v49, s77, v48')
        A('v_mul_f32 v48, s76, v48')
        A('v_fma_f32 v49, -v48, v48, v49')
        A('v_max_f32 v49, 0, v49')
        A('v_add_f32 v48, s14, v48')
        mean, var = 48, 49
        self.ln_finish(mean, var, 12, 13, 14)
        self.ln_apply([24, 25], [36, 37], 12, 13, 14)
        A(f'v_sub_f32 v{mean}, v{mean}, v12')
        A(f'v_mul_f32 v{var}, v{var}, v13')
        A(f'v_mul_f32 v{mean}, v{mean}, v13')
        A(f'v_mul_f32 v{var}, v{var}, v13')
        self.ln_finish(mean, var, 12, 13, 14)
        self.ln_apply([36, 37], [36, 37], 12, 13, 14)
        A(f'ds_write_b64 v{vHo}, v[36:37]')
        A('s_waitcnt lgkmcnt(0)')
        self.seg_end('e')

    def final(self):
        A = self.A
        o = self.o
        B2R, vHo = 110, 149
        A('s_setprio 0')
        A('s_barrier')
        self.seg_begin('f')
        A(f'ds_read_b64 v[36:37], v{vHo}')
        A('s_waitcnt lgkmcnt(0)')
        self.stamp(9, (True,))
        YA = [30, 31]
        ch = [(d, p) for d in range(2) for p in range(2)]
        U = {c: 40 + 6 * n for n, c in enumerate(ch)}

        def each(f):
            for c in ch:
                f(c[0], c[1], U[c], U[c] + 2, U[c] + 4)
        each(lambda d, p, u, t, z: (A(f'v_mul_f32 v{u}, v{36+d}, v{W1F+2*p}'), A(f'v_mul_f32 v{u+1}, v{36+d}, v{W1F+2*p+1}')))
        each(lambda d, p, u, t, z: self.rnd_bf16_pair(u, u + 1, t))
        each(lambda d, p, u, t, z: A(f'v_pk_add_f32 v[{u}:{u+1}], v[{u}:{u+1}], v[{B1F+2*p}:{B1F+2*p+1}]'))
        each(lambda d, p, u, t, z: self.rnd_bf16_pair(u, u + 1, t))
        each(lambda d, p, u, t, z: A(f'v_pk_mul_f32 v[{t}:{t+1}], v[{u}:{u+1}], v[{u}:{u+1}]'))
        each(lambda d, p, u, t, z: A(f'v_pk_fma_f32 v[{t}:{t+1}], v[{t}:{t+1}], v[{GK1}:{GK1+1}], v[{GK0}:{GK0+1}]'))
        each(lambda d, p, u, t, z: A(f'v_pk_mul_f32 v[{z}:{z+1}], v[{t}:{t+1}], v[{u}:{u+1}]'))
        each(lambda d, p, u, t, z: (A(f'v_exp_f32 v{z}, v{z}'), A(f'v_exp_f32 v{z+1}, v{z+1}')))
        each(lambda d, p, u, t, z: A(f'v_pk_add_f32 v[{z}:{z+1}], v[{z}:{z+1}], v[{GONE}:{GONE+1}]'))
        each(lambda d, p, u, t, z: (A(f'v_rcp_f32 v{z}, v{z}'), A(f'v_rcp_f32 v{z+1}, v{z+1}')))
        each(lambda d, p, u, t, z: A(f'v_pk_mul_f32 v[{u}:{u+1}], v[{u}:{u+1}], v[{z}:{z+1}]'))
        each(lambda d, p, u, t, z: A(f'v_cvt_pk_bf16_f32 v{u}, v{u}, v{u+1}'))
        for d in range(2):
            A(f'v_dot2_f32_bf16 v{YA[d]}, v{U[(d,0)]}, v{W2R}, 0')
        for d in range(2):
            A(f'v_dot2_f32_bf16 v{YA[d]}, v{U[(d,1)]}, v{W2R+1}, v{YA[d]}')
        self.nop(2)
        self.wave_sum_to_sgpr(YA, [76, 77])
        A('v_mov_b32 v16, s76')
        A('v_mov_b32 v17, s77')
        A('s_lshl_b32 s14, s30, 3')
        A(f's_add_u32 s14, s14, {LDS_Y}')
        A('v_mov_b32 v18, s14')
        A('ds_write_b64 v18, v[16:17]')
        A('s_waitcnt lgkmcnt(0)')
        self.seg_end('f')
        A('s_barrier')
        A('s_cmp_lg_u32 s30, 4')
        lend = self.label('hend')
        A(f's_cbranch_scc1 {lend}')
        self.seg_begin('g')
        A(f'v_mov_b32 v12, {LDS_Y}')
        for k in range(4):
            A(f'ds_read_b128 v[{40+4*k}:{43+4*k}], v12 offset:{16*k}')
        A('s_waitcnt lgkmcnt(0)')
        for k in range(4):
            A(f'v_pk_add_f32 v[{40+4*k}:{41+4*k}], v[{40+4*k}:{41+4*k}], v[{42+4*k}:{43+4*k}]')
        A('v_pk_add_f32 v[40:41], v[40:41], v[44:45]')
        A('v_pk_add_f32 v[48:49], v[48:49], v[52:53]')
        A('v_pk_add_f32 v[16:17], v[40:41], v[48:49]')
        self.rnd_bf16_pair(16, 17, 20)
        A(f'v_add_f32 v16, v16, v{B2R}')
        A(f'v_add_f32 v17, v17, v{B2R}')
        self.rnd_bf16_pair(16, 17, 20)
        A('v_pk_add_f32 v[16:17], v[16:17], v[24:25]')
        A('v_cvt_pk_bf16_f32 v16, v16, v17')
        A('s_lshl_b32 s14, s2, 2')
        A('v_mov_b32 v18, 0')
        self.seg_end('g')
        A('s_mov_b64 exec, 1')
        A(f'buffer_store_dword v16, v18, s[{OUT}:{OUT+3}], s14 offen')
        A('s_cmp_lg_u32 s2, 0')
        A(f's_cbranch_scc1 {lend}')
        A('v_mov_b32 v20, s96')
        A('v_mov_b32 v21, s97')
        A(f's_mov_b32 s14, {WS_E:#x}')
        A(f'buffer_store_dwordx2 v[20:21], v18, s[{WS}:{WS+3}], s14 offen sc1')
        A(f'{lend}:')
        self.stamp(10)
        self.write_stamps(11)


if __name__ == '__main__':
    out = sys.argv[1]
    kw = json.loads(sys.argv[2]) if len(sys.argv) > 2 else {}
    open(out, 'w').write(Gen(**kw).build())
```

```python
import sys, json, struct

KN = 'sequential_preLN__gqa_block_cached__mixer_token_mlp__decode'
HEADER = open('cdna_kernels/' + KN + '.s.ref').read().split('; Override launch')[0]


def f2u(x):
    return struct.unpack('<I', struct.pack('<f', x))[0]


LOG2E = 1.4426950408889634
SCALE = 128 ** -0.5
GC0 = -2.0 * (2.0 / 3.141592653589793) ** 0.5 * LOG2E
GC1 = GC0 * 0.044715

WS_QP = 0x0
WS_E = 0x40000
WS_F = 0x41000
WS_P1 = 0x42000
WS_P2 = 0x110000
WS_HV = 0x120000
HVS = 2048 + 256 + 128
WS_CNT = 0x128000
WS_SIZE = 0x20000000
STAMP_OFF = 0x10000000
TAGC = 0x9E3779B97F4A7C15
NPART = 6
LDS_Q = 0
LDS_O = 1024
LDS_ML = LDS_O + NPART * 2048
LDS_W = LDS_ML + 256
LDS_H = LDS_W + 1024
LDS_Y = LDS_H + 2048
LDS_F = LDS_Y + 64
LDS_TOTAL = LDS_F + 16

X, WQ, WS, WO, W1, B1, W2, B2, OUT = 36, 40, 44, 48, 52, 56, 60, 64, 68
W1F, B1F, W2R, RAW, GK0, GK1, GONE = 224, 228, 232, 234, 238, 240, 242


class Gen:
    def __init__(self, **kw):
        self.L = []
        self.o = dict(ring=12, pre=4, pre0=1, stamps=False, nt='nt', headmap='rot', pollsleep=8, spin=20000,
                      tc=8, sleep_many=16, sleep_few=1, cprio=2, sleep2b=2, sleep_most=32, ts=20, stageA=16, warm=True)
        self.o.update(kw)
        self.lab = 0
        self.role = 'S'

    def A(self, s):
        self.L.append(s)

    def nop(self, n):
        if n > 0:
            self.A(f's_nop {n-1}')

    def label(self, base):
        self.lab += 1
        return f'L_{base}_{self.lab}'

    def srd(self, r, ptr, size):
        A = self.A
        A(f's_mov_b32 s{r}, s{ptr}')
        A(f's_and_b32 s{r+1}, s{ptr+1}, 0xffff')
        A(f's_mov_b32 s{r+2}, {size:#x}')
        A(f's_mov_b32 s{r+3}, 0x20000')

    def sreg(self, idx):
        return 80 + 2 * idx if idx < 8 else [98, 100, 22][idx - 8]

    def stamp(self, idx, sets=None):
        st = self.o['stamps']
        if not st:
            return
        if sets is not None and st not in sets:
            return
        r = self.sreg(idx)
        self.A(f's_memrealtime s[{r}:{r+1}]')

    def dpp(self, op, regs, ctrl, rm='0xf'):
        n = len(regs)
        if n < 3:
            self.nop(3 - n)
        for r in regs:
            self.A(f'{op}_dpp v{r}, v{r}, v{r} {ctrl} row_mask:{rm} bank_mask:0xf')

    def swap_red(self, op, regs, tmps, width):
        A = self.A
        for r, t in zip(regs, tmps):
            A(f'v_mov_b32 v{t}, v{r}')
        self.nop(2)
        for r, t in zip(regs, tmps):
            A(f'v_permlane{width}_swap_b32 v{r}, v{t}')
        if len(regs) < 3:
            self.nop(2)
        for r, t in zip(regs, tmps):
            A(f'{op} v{r}, v{r}, v{t}')

    def wave_sum_to_sgpr(self, regs, sregs):
        A = self.A
        self.dpp('v_add_f32', regs, 'quad_perm:[1,0,3,2]')
        self.dpp('v_add_f32', regs, 'quad_perm:[2,3,0,1]')
        self.dpp('v_add_f32', regs, 'row_half_mirror')
        self.dpp('v_add_f32', regs, 'row_mirror')
        self.dpp('v_add_f32', regs, 'row_bcast:15', '0xa')
        self.dpp('v_add_f32', regs, 'row_bcast:31', '0xc')
        self.nop(1)
        for r, s in zip(regs, sregs):
            A(f'v_readlane_b32 s{s}, v{r}, 63')
        self.nop(2)

    def rnd_bf16(self, dst, src):
        self.A(f'v_cvt_pk_bf16_f32 v{dst}, v{src}, v{src}')
        self.A(f'v_lshlrev_b32 v{dst}, 16, v{dst}')

    def rnd_bf16_pair(self, a, b, t):
        self.A(f'v_cvt_pk_bf16_f32 v{t}, v{a}, v{b}')
        self.A(f'v_lshlrev_b32 v{a}, 16, v{t}')
        self.A(f'v_and_b32 v{b}, 0xffff0000, v{t}')

    def ln_moments(self, vals, piv, t, s_a, s_b):
        A = self.A
        d = t[:8]
        s1, s2 = t[8], t[9]
        for k in range(0, 8, 2):
            A(f'v_pk_add_f32 v[{d[k]}:{d[k+1]}], v[{vals[k]}:{vals[k+1]}], v[{piv}:{piv+1}] neg_lo:[0,1] neg_hi:[0,1]')
        A(f'v_pk_mul_f32 v[{s1}:{s2}], v[{d[0]}:{d[1]}], v[{d[0]}:{d[1]}]')
        for k in range(2, 8, 2):
            A(f'v_pk_fma_f32 v[{s1}:{s2}], v[{d[k]}:{d[k+1]}], v[{d[k]}:{d[k+1]}], v[{s1}:{s2}]')
        A(f'v_pk_add_f32 v[{d[0]}:{d[1]}], v[{d[0]}:{d[1]}], v[{d[2]}:{d[3]}]')
        A(f'v_pk_add_f32 v[{d[4]}:{d[5]}], v[{d[4]}:{d[5]}], v[{d[6]}:{d[7]}]')
        A(f'v_add_f32 v{s2}, v{s1}, v{s2}')
        A(f'v_pk_add_f32 v[{d[0]}:{d[1]}], v[{d[0]}:{d[1]}], v[{d[4]}:{d[5]}]')
        A(f'v_add_f32 v{s1}, v{d[0]}, v{d[1]}')
        self.wave_sum_to_sgpr([s1, s2], [s_a, s_b])
        inv = f2u(1.0 / 512)
        A(f'v_mov_b32 v{s1}, {inv:#x}')
        A(f'v_mul_f32 v{s2}, s{s_b}, v{s1}')
        A(f'v_mul_f32 v{s1}, s{s_a}, v{s1}')
        A(f'v_fma_f32 v{s2}, -v{s1}, v{s1}, v{s2}')
        A(f'v_max_f32 v{s2}, 0, v{s2}')
        A(f'v_add_f32 v{s1}, v{s1}, v{piv}')

    def ln_finish(self, mean, var, vm, vr, t):
        A = self.A
        A(f'v_cvt_pk_bf16_f32 v{t}, v{mean}, v{var}')
        A(f'v_lshlrev_b32 v{vm}, 16, v{t}')
        A(f'v_and_b32 v{vr}, 0xffff0000, v{t}')
        A(f'v_add_f32 v{vr}, {f2u(1e-5):#x}, v{vr}')
        self.rnd_bf16(vr, vr)
        A(f'v_sqrt_f32 v{vr}, v{vr}')
        self.nop(1)
        self.rnd_bf16(vr, vr)
        A(f'v_rcp_f32 v{vr}, v{vr}')
        self.nop(1)

    def ln_apply(self, vals, outs, vm, vr, t):
        A = self.A
        for k in range(0, len(vals), 2):
            a, b = outs[k], outs[k + 1]
            A(f'v_sub_f32 v{a}, v{vals[k]}, v{vm}')
            A(f'v_sub_f32 v{b}, v{vals[k+1]}, v{vm}')
            self.rnd_bf16_pair(a, b, t)
            A(f'v_mul_f32 v{a}, v{a}, v{vr}')
            A(f'v_mul_f32 v{b}, v{b}, v{vr}')
            self.rnd_bf16_pair(a, b, t)

    def lds_wait(self, vaddr, off, vt=11, st=15):
        A = self.A
        lp = self.label('ldsw')
        A(f's_mov_b32 s{st}, {self.o["spin"]*20}')
        A(f'{lp}:')
        A(f'ds_read_b32 v{vt}, v{vaddr} offset:{off}')
        A(f's_sub_u32 s{st}, s{st}, 1')
        A(f's_cmp_eq_u32 s{st}, 0')
        A(f's_cbranch_scc1 {lp}_x')
        A('s_waitcnt lgkmcnt(0)')
        A(f'v_cmp_eq_u32 vcc, 0, v{vt}')
        A(f's_cbranch_vccz {lp}_x')
        A('s_sleep 1')
        A(f's_branch {lp}')
        A(f'{lp}_x:')
        A('s_waitcnt lgkmcnt(0)')

    def seg_begin(self, name):
        self.A(f'L_seg_{name}:')

    def seg_end(self, name):
        if self.o['warm']:
            self.A(f's_cbranch_execz L_ret_{name}')

    def warm_pass(self, names):
        if not self.o['warm']:
            return
        A = self.A
        A('s_mov_b64 exec, 0')
        for n in names:
            A(f's_branch L_seg_{n}')
            A(f'L_ret_{n}:')
        A('s_mov_b64 exec, -1')

    def canon(self, regs):
        for r in regs:
            self.A(f'v_min_u32 v{r}, 0xfffffffe, v{r}')

    def sel_masks(self, m0, m1):
        A = self.A
        A('v_and_b32 v4, 1, v0')
        A('v_lshlrev_b32 v4, 4, v4')
        A('v_mov_b32 v5, 0xffff')
        A('v_lshlrev_b32 v5, v4, v5')
        A('v_and_b32 v4, 2, v0')
        A('v_cmp_eq_u32 vcc, 0, v4')
        A('v_mov_b32 v6, 0')
        A('s_nop 0')
        A(f'v_cndmask_b32 v{m0}, v6, v5, vcc')
        A(f'v_cndmask_b32 v{m1}, v5, v6, vcc')

    def build(self):
        A = self.A
        o = self.o
        A(HEADER.rstrip('\n'))
        A(f'; @launch grid=(256,1,1) block=(512,1,1) lds={LDS_TOTAL}')
        A('.amdgcn_target "amdgcn-amd-amdhsa--gfx950"')
        A('.text')
        A(f'.globl {KN}_kernel')
        A('.p2align 8')
        A(f'.type {KN}_kernel,@function')
        A(f'{KN}_kernel:')
        A('s_cmp_ge_u32 s2, 256')
        A('s_cbranch_scc1 L_end')
        A('s_load_dwordx16 s[4:19], s[0:1], 0')
        A('s_load_dwordx8 s[20:27], s[0:1], 64')
        A('s_load_dwordx2 s[28:29], s[0:1], 96')
        self.stamp(0)
        A('v_lshrrev_b32 v1, 6, v0')
        A('v_and_b32 v0, 63, v0')
        A('v_readfirstlane_b32 s30, v1')
        if o['headmap'] == 'mod':
            A('s_and_b32 s31, s2, 7')
            A('s_lshr_b32 s32, s2, 3')
        elif o['headmap'] == 'rot':
            A('s_lshr_b32 s32, s2, 3')
            A('s_add_u32 s31, s2, s32')
            A('s_and_b32 s31, s31, 7')
        elif o['headmap'] == 'x4':
            A('s_lshr_b32 s31, s2, 3')
            A('s_lshr_b32 s32, s31, 3')
            A('s_and_b32 s31, s31, 7')
            A('s_and_b32 s3, s2, 7')
            A('s_lshl_b32 s3, s3, 2')
            A('s_add_u32 s32, s32, s3')
        elif o['headmap'] == 'div':
            A('s_lshr_b32 s31, s2, 5')
            A('s_and_b32 s32, s2, 31')
        else:
            m = int(o['headmap'])
            A(f's_and_b32 s31, s2, {7 & ~(m-1)}')
            A('s_lshr_b32 s32, s2, 3')
            A(f's_and_b32 s3, s32, {m-1}')
            A('s_or_b32 s31, s31, s3')
            A(f's_and_b32 s32, s32, {31 & ~(m-1)}')
            A(f's_and_b32 s3, s2, {m-1}')
            A('s_or_b32 s32, s32, s3')
        A('s_lshl_b32 s3, s31, 5')
        A('s_add_u32 s3, s3, s32')
        A('s_sub_u32 s33, s30, 4')
        A('s_lshr_b32 s34, s32, 3')
        A('s_and_b32 s35, s32, 7')
        A('s_cmp_lt_u32 s33, 2')
        A('s_cbranch_scc1 L_hq')
        A('s_cmp_ge_u32 s30, 4')
        A('s_cbranch_scc1 L_cover')
        TC = o['tc']
        TS = o['ts']
        o['pool'] = 128 - 4 * TS - 2 * TC
        assert TS % 4 == 0 and TC % 4 == 0 and o['pool'] % 4 == 0 and (o['pool'] == 0 or o['pool'] >= 12) and TS >= TC
        self.streamer(TS, TC, False)
        self.srd(W1, 16, 3584)
        self.srd(B1, 18, 3584)
        self.srd(W2, 20, 3584)
        self.mlp_weights_load()
        A('s_waitcnt lgkmcnt(0)')
        A('s_barrier')
        A('s_waitcnt vmcnt(0)')
        self.mlp_weights_prep()
        self.srd(WS, 28, WS_SIZE)
        self.srd(OUT, 24, 1024)
        A('v_lshlrev_b32 v1, 4, v0')
        A(f'v_mov_b32 v149, {LDS_H}')
        A('s_barrier')
        A('s_branch L_b4')
        A('L_cover:')
        self.streamer(TC, TC, True)
        self.srd(X, 4, 1024)
        self.srd(WS, 28, WS_SIZE)
        A('s_branch L_pref')
        A('L_hq:')
        self.helper_q()
        A('L_pref:')
        self.helper_tail()
        A('L_b4:')
        self.final()
        A('L_end:')
        A('s_endpgm')
        A('.section .rodata,"a"')
        A('.p2align 6')
        A(f'.amdhsa_kernel {KN}_kernel')
        A('  .amdhsa_next_free_vgpr 256')
        A('  .amdhsa_next_free_sgpr 102')
        A('  .amdhsa_accum_offset 256')
        A('  .amdhsa_group_segment_fixed_size 0')
        A('  .amdhsa_kernarg_size 104')
        A('  .amdhsa_user_sgpr_count 2')
        A('  .amdhsa_user_sgpr_kernarg_segment_ptr 1')
        A('  .amdhsa_system_sgpr_workgroup_id_x 1')
        A('  .amdhsa_float_denorm_mode_32 3')
        A('.end_amdhsa_kernel')
        return '\n'.join(self.L) + '\n'

    def write_stamps(self, n):
        if not self.o['stamps']:
            return
        A = self.A
        if self.o.get('dbgstamps'):
            A('s_waitcnt lgkmcnt(0)')
            A('s_mov_b64 exec, 1')
            self.srd(76, 26, 256)
            A('v_mov_b32 v1, 0')
            def amax(sreg, off, inv):
                A(f'v_mov_b32 v2, s{sreg}')
                if inv: A('v_not_b32 v2, v2')
                A(f'buffer_atomic_umax v2, v1, s[76:79], 0 offen offset:{off} sc1')
                A('s_nop 1')
            amax(self.sreg(10), 0, False)
            amax(self.sreg(0), 4, True)
            A('s_cmp_ge_u32 s30, 4')
            A('s_cbranch_scc1 L_dbg_x')
            amax(self.sreg(4), 8, False)
            amax(self.sreg(4), 12, True)
            amax(self.sreg(2), 16, False)
            amax(self.sreg(3), 20, False)
            amax(self.sreg(3), 24, True)
            A('L_dbg_x:')
            A('s_waitcnt vmcnt(0)')
            return
        A('s_waitcnt lgkmcnt(0)')
        A('s_mov_b64 exec, 1')
        A('s_lshl_b32 s33, s2, 3')
        A('s_add_u32 s33, s33, s30')
        A('s_lshl_b32 s33, s33, 7')
        A(f's_add_u32 s33, s33, {STAMP_OFF:#x}')
        self.srd(76, 28, WS_SIZE)
        A('v_mov_b32 v1, 0')
        for k in range(n):
            A(f'v_mov_b32 v2, s{self.sreg(k)}')
            A(f'v_mov_b32 v3, s{self.sreg(k)+1}')
            A(f'buffer_store_dwordx2 v[2:3], v1, s[76:79], s33 offen offset:{8*k}')
            A('s_nop 1')
        A('s_waitcnt vmcnt(0)')

    def mlp_weights_load(self):
        A = self.A
        A('v_lshlrev_b32 v4, 3, v0')
        A('s_lshl_b32 s14, s30, 9')
        A(f'buffer_load_dwordx2 v[{RAW}:{RAW+1}], v4, s[{W1}:{W1+3}], s14 offen')
        A(f'buffer_load_dwordx2 v[{RAW+2}:{RAW+3}], v4, s[{B1}:{B1+3}], s14 offen')
        A(f'buffer_load_dwordx2 v[{W2R}:{W2R+1}], v4, s[{W2}:{W2+3}], s14 offen')

    def mlp_weights_prep(self):
        A = self.A
        for k in range(2):
            A(f'v_lshlrev_b32 v{W1F+2*k}, 16, v{RAW+k}')
            A(f'v_and_b32 v{W1F+2*k+1}, 0xffff0000, v{RAW+k}')
            A(f'v_lshlrev_b32 v{B1F+2*k}, 16, v{RAW+2+k}')
            A(f'v_and_b32 v{B1F+2*k+1}, 0xffff0000, v{RAW+2+k}')
            A(f'v_mov_b32 v{GK0+k}, {f2u(GC0):#x}')
            A(f'v_mov_b32 v{GK1+k}, {f2u(GC1):#x}')
            A(f'v_mov_b32 v{GONE+k}, 1.0')

    def streamer(self, T, TC, cover):
        A = self.A
        o = self.o
        R = min(o['ring'], 2 * T)
        nt = o['nt']
        N = 2 * T
        RB = 64
        assert RB + 16 * R <= 256
        vK, vV = 1, 2
        Q = 4
        C = [20, 24]
        G = 28
        S2 = 30
        vmax, vl, vnm = 46, 47, 3
        ACC = 48
        D = 56
        M0, M1 = 60, 61
        TA = [20, 22, 24, 26]
        U = [28, 29, 62, 63]
        KT = [56, 57, 58, 59, 62, 63]
        stp = None if not cover else ()

        def tile_of(t):
            return 6 * t if t < TC else 6 * TC + 4 * (t - TC)

        A('v_and_b32 v4, 3, v0')
        A('v_lshlrev_b32 v4, 10, v4')
        A('v_bfe_u32 v5, v0, 2, 2')
        A('v_lshlrev_b32 v5, 8, v5')
        A('v_lshrrev_b32 v6, 4, v0')
        A('v_lshlrev_b32 v6, 4, v6')
        A(f'v_add3_u32 v{vK}, v4, v5, v6')
        A(f'v_lshlrev_b32 v{vV}, 4, v0')
        A('s_lshl_b32 s44, s31, 24')
        A('s_lshl_b32 s45, s32, 19')
        A('s_add_u32 s44, s44, s45')
        if cover:
            A(f's_setprio {o["cprio"]}')
            A('s_sub_u32 s46, s30, 2')
        else:
            A('s_mov_b32 s46, s30')
        A('s_lshl_b32 s45, s46, 12')
        A('s_add_u32 s44, s44, s45')
        A('s_waitcnt lgkmcnt(0)')
        self.srd(36, 6, 0x8000000)
        self.srd(40, 8, 0x8000000)

        def issue(n):
            r = RB + (n % R) * 16
            t = n % T
            A(f's_add_u32 s45, s44, {tile_of(t)*4096:#x}')
            for j in range(4):
                if n < T:
                    A(f'buffer_load_dwordx4 v[{r+4*j}:{r+4*j+3}], v{vK}, s[36:39], s45 offen offset:{64*j} {nt}')
                else:
                    A(f'buffer_load_dwordx4 v[{r+4*j}:{r+4*j+3}], v{vV}, s[40:43], s45 offen offset:{1024*j} {nt}')

        pre0, pre = o['pre0'], o['pre']
        for n in range(pre0):
            issue(n)
        A('s_barrier')
        for n in range(pre0, pre):
            issue(n)
        A('s_mov_b32 s50, 0x22222222'); A('s_mov_b32 s51, 0x22222222')
        A('s_mov_b32 s52, 0x44444444'); A('s_mov_b32 s53, 0x44444444')
        A('s_mov_b32 s54, 0x88888888'); A('s_mov_b32 s55, 0x88888888')
        A(f's_mov_b32 s56, {f2u(SCALE):#x}')
        A(f's_mov_b32 s57, {f2u(LOG2E):#x}')
        self.sel_masks(M0, M1)
        A(f'v_mov_b32 v{vmax}, 0xff800000')
        A(f'v_mov_b32 v{vl}, 0')
        for k in range(8):
            A(f'v_mov_b32 v{ACC+k}, 0')
        A('v_bfe_u32 v62, v0, 2, 2')
        A('v_lshlrev_b32 v62, 8, v62')
        A('v_lshrrev_b32 v63, 4, v0')
        A('v_lshl_add_u32 v62, v63, 4, v62')
        for n in range(pre, R):
            A(f's_waitcnt vmcnt({4*(pre-1)})')
            issue(n)
        self.stamp(1)
        A('s_barrier')
        for j in range(4):
            A(f'ds_read_b128 v[{Q+4*j}:{Q+4*j+3}], v62 offset:{LDS_Q + 64*j}')
        self.stamp(2)
        A('s_waitcnt lgkmcnt(0)')

        def kpost(t):
            c = C[t & 1]
            tt = t & 3
            if tt == 0:
                A(f'v_cvt_pk_bf16_f32 v{G}, v{c}, v{c+1}')
                A(f'v_cvt_pk_bf16_f32 v{G+1}, v{c+2}, v{c+3}')
            else:
                A(f'v_cvt_pk_bf16_f32 v{KT[4]}, v{c}, v{c+1}')
                A(f'v_cvt_pk_bf16_f32 v{KT[5]}, v{c+2}, v{c+3}')
                sm = 48 + 2 * tt
                A(f'v_cndmask_b32 v{G}, v{G}, v{KT[4]}, s[{sm}:{sm+1}]')
                A(f'v_cndmask_b32 v{G+1}, v{G+1}, v{KT[5]}, s[{sm}:{sm+1}]')
            if tt == 3:
                grp = t // 4
                u = KT[:4]
                A(f'v_lshlrev_b32 v{u[0]}, 16, v{G}')
                A(f'v_and_b32 v{u[1]}, 0xffff0000, v{G}')
                A(f'v_lshlrev_b32 v{u[2]}, 16, v{G+1}')
                A(f'v_and_b32 v{u[3]}, 0xffff0000, v{G+1}')
                for k in range(4):
                    A(f'v_mul_f32 v{u[k]}, s56, v{u[k]}')
                A(f'v_max3_f32 v{vmax}, v{vmax}, v{u[0]}, v{u[1]}')
                A(f'v_max3_f32 v{vmax}, v{vmax}, v{u[2]}, v{u[3]}')
                A(f'v_cvt_pk_bf16_f32 v{S2+2*grp}, v{u[0]}, v{u[1]}')
                A(f'v_cvt_pk_bf16_f32 v{S2+2*grp+1}, v{u[2]}, v{u[3]}')

        extra = [0]

        def wait_for(n):
            issued = min(n + R - 1, N - 1)
            A(f's_waitcnt vmcnt({4*(issued-n) + extra[0]})')

        def finish_l():
            self.dpp('v_add_f32', [vl], 'quad_perm:[1,0,3,2]')
            self.dpp('v_add_f32', [vl], 'quad_perm:[2,3,0,1]')
            self.swap_red('v_add_f32', [vl], [62], 16)
            self.swap_red('v_add_f32', [vl], [62], 32)
            A('s_lshl_b32 s45, s46, 11')
            A(f's_add_u32 s45, s45, {LDS_O}')
            A('v_lshlrev_b32 v28, 5, v0')
            A('v_add_u32 v28, s45, v28')
            A('s_lshl_b32 s45, s46, 5')
            A(f's_add_u32 s45, s45, {LDS_ML}')
            A('v_bfe_u32 v29, v0, 2, 2')
            A('v_lshlrev_b32 v29, 3, v29')
            A('v_add_u32 v29, s45, v29')
            A(f'ds_write_b64 v29, v[{vmax}:{vl}]')

        pool = (not cover) and o['pool'] > 0
        PBASE = 128 - o['pool']
        PQ = o['pool'] // 4 - 2
        NPOOL = 32 * PQ
        if pool:
            busy = {(N - 1 - k) % R for k in range(5)}
            free = [x for x in range(R) if x not in busy]
            PS = [(RB + 16 * free[2 * k], RB + 16 * free[2 * k + 1]) for k in range(3)]
        AI = [30, 31]
        vZ, vBP = 32, 33

        def atomic(k):
            A('s_mov_b64 exec, 1')
            A(f'v_mov_b32 v{AI[k & 1]}, 1')
            A(f'buffer_atomic_add v{AI[k & 1]}, v{vZ}, s[60:63], s58 offen sc0 sc1')
            A('s_mov_b64 exec, -1')

        def pool_loads(k):
            kr, vr = PS[k % 3]
            for j in range(4):
                A(f'buffer_load_dwordx4 v[{kr+4*j}:{kr+4*j+3}], v{vK}, s[36:39], s45 offen offset:{64*j} {nt}')
            for j in range(4):
                A(f'buffer_load_dwordx4 v[{vr+4*j}:{vr+4*j+3}], v{vV}, s[40:43], s45 offen offset:{1024*j} {nt}')

        def pool_issue(k):
            A(f'v_readfirstlane_b32 s45, v{AI[k & 1]}')
            A(f's_cmp_lt_u32 s45, {NPOOL}')
            A('s_cselect_b32 s59, s59, 0')
            A(f's_mov_b32 s{64 + k % 3}, s59')
            if PQ & (PQ - 1) == 0:
                A(f's_lshr_b32 s47, s45, {PQ.bit_length() - 1}')
                A(f's_and_b32 s45, s45, {PQ - 1}')
            else:
                A(f's_mul_hi_u32 s47, s45, {(1 << 32) // PQ + 1:#x}')
                A(f's_mul_i32 s48, s47, {PQ}')
                A('s_sub_u32 s45, s45, s48')
            A('s_lshl_b32 s47, s47, 19')
            A('s_lshl_b32 s45, s45, 14')
            A('s_add_u32 s45, s45, s47')
            A('s_add_u32 s45, s45, s67')
            A('s_cmp_lg_u32 s59, 0')
            A('s_cselect_b32 s45, s45, 0x10000000')
            A('s_cselect_b32 s58, s58, 0x30000000')
            atomic(k + 1)
            pool_loads(k)

        def pool_prologue(rem):
            if rem == 3:
                self.srd(60, 28, WS_SIZE)
                A('s_lshl_b32 s58, s31, 2')
                A('s_add_u32 s58, s58, s30')
                A('s_lshl_b32 s58, s58, 8')
                A(f's_add_u32 s58, s58, {WS_CNT:#x}')
                A('s_lshl_b32 s67, s31, 24')
                A('s_lshl_b32 s45, s30, 12')
                A('s_add_u32 s67, s67, s45')
                A(f's_add_u32 s67, s67, {(PBASE + 8) * 4096:#x}')
                A('s_mov_b32 s59, 1')
                A('s_mov_b32 s64, 1')
                A('s_mov_b32 s65, 1')
                A(f'v_mov_b32 v{vZ}, 0')
                A(f'v_lshrrev_b32 v{vBP}, 4, v0')
                A(f'v_lshlrev_b32 v{vBP}, 4, v{vBP}')
                A(f's_add_u32 s45, s44, {PBASE * 4096:#x}')
                pool_loads(0)
                extra[0] += 8
            elif rem == 1:
                A(f'v_mov_b32 v34, {LDS_F}')
                self.lds_wait(34, 4, vt=35, st=45)
                atomic(2)
                A(f's_add_u32 s45, s44, {(PBASE + 4) * 4096:#x}')
                pool_loads(1)
                extra[0] += 9

        def pool_loop():
            PC = 36
            PU = [40, 41, 42, 43]
            lp = self.label('pool')
            A(f'{lp}:')
            for u in range(6):
                kr, vr = PS[u % 3]
                A('s_waitcnt vmcnt(8)')
                A(f's_cmp_eq_u32 s{64 + u % 3}, 0')
                A(f's_cbranch_scc1 {lp}_x')
                for j in range(4):
                    cc = '0' if j == 0 else f'v[{PC}:{PC+3}]'
                    A(f'v_mfma_f32_16x16x32_bf16 v[{PC}:{PC+3}], v[{kr+4*j}:{kr+4*j+3}], v[{Q+4*j}:{Q+4*j+3}], {cc}')
                pool_issue(u + 2)
                A(f'v_cvt_pk_bf16_f32 v{PU[0]}, v{PC}, v{PC+1}')
                A(f'v_cvt_pk_bf16_f32 v{PU[2]}, v{PC+2}, v{PC+3}')
                A(f'v_and_b32 v{PU[1]}, 0xffff0000, v{PU[0]}')
                A(f'v_lshlrev_b32 v{PU[0]}, 16, v{PU[0]}')
                A(f'v_and_b32 v{PU[3]}, 0xffff0000, v{PU[2]}')
                A(f'v_lshlrev_b32 v{PU[2]}, 16, v{PU[2]}')
                for k in range(4):
                    A(f'v_mul_f32 v{PU[k]}, s56, v{PU[k]}')
                self.rnd_bf16_pair(PU[0], PU[1], PC)
                self.rnd_bf16_pair(PU[2], PU[3], PC + 1)
                A(f'v_max3_f32 v{PC}, v{PU[0]}, v{PU[1]}, v{PU[2]}')
                A(f'v_max_f32 v{PC}, v{PC}, v{PU[3]}')
                A(f'v_cmp_gt_f32 vcc, v{PC}, v{vmax}')
                A(f's_cbranch_vccz {lp}_k{u}')
                self.swap_red('v_max_f32', [PC], [PC + 1], 16)
                self.swap_red('v_max_f32', [PC], [PC + 1], 32)
                A(f'v_max_f32 v{PC}, v{PC}, v{vmax}')
                A(f'v_sub_f32 v{PC+1}, v{vmax}, v{PC}')
                A(f'v_mul_f32 v{PC+1}, s57, v{PC+1}')
                A(f'v_exp_f32 v{PC+1}, v{PC+1}')
                A(f'v_mov_b32 v{vmax}, v{PC}')
                A(f'v_mul_f32 v{vnm}, s57, v{PC}')
                A(f'v_sub_f32 v{vnm}, 0, v{vnm}')
                A(f'v_mul_f32 v{vl}, v{vl}, v{PC+1}')
                A(f'ds_bpermute_b32 v{PC+2}, v{vBP}, v{PC+1}')
                A('s_waitcnt lgkmcnt(0)')
                for k in range(8):
                    A(f'v_mul_f32 v{ACC+k}, v{ACC+k}, v{PC+2}')
                A(f'{lp}_k{u}:')
                for k in range(4):
                    A(f'v_fma_f32 v{PU[k]}, v{PU[k]}, s57, v{vnm}')
                for k in range(4):
                    A(f'v_exp_f32 v{PU[k]}, v{PU[k]}')
                self.nop(1)
                for k in range(4):
                    A(f'v_cvt_pk_bf16_f32 v{D+k}, v{PU[k]}, v{PU[k]}')
                for k in range(4):
                    A(f'v_and_b32 v{TA[k]}, v{D+k}, v{M0}')
                    A(f'v_and_b32 v{TA[k]+1}, v{D+k}, v{M1}')
                A(f'v_add_f32 v{PU[0]}, v{PU[0]}, v{PU[1]}')
                A(f'v_add_f32 v{PU[2]}, v{PU[2]}, v{PU[3]}')
                for k in range(4):
                    A(f'v_mfma_f32_16x16x16_bf16 v[{ACC}:{ACC+3}], v[{TA[k]}:{TA[k]+1}], v[{vr+4*k}:{vr+4*k+1}], v[{ACC}:{ACC+3}]')
                    A(f'v_mfma_f32_16x16x16_bf16 v[{ACC+4}:{ACC+7}], v[{TA[k]}:{TA[k]+1}], v[{vr+4*k+2}:{vr+4*k+3}], v[{ACC+4}:{ACC+7}]')
                A(f'v_add_f32 v{PU[0]}, v{PU[0]}, v{PU[2]}')
                A(f'v_fmac_f32 v{vl}, 0.25, v{PU[0]}')
            A(f's_branch {lp}')
            A(f'{lp}_x:')

        for n in range(T):
            r = RB + (n % R) * 16
            c = C[n & 1]
            wait_for(n)
            for j in range(4):
                cc = '0' if j == 0 else f'v[{c}:{c+3}]'
                A(f'v_mfma_f32_16x16x32_bf16 v[{c}:{c+3}], v[{r+4*j}:{r+4*j+3}], v[{Q+4*j}:{Q+4*j+3}], {cc}')
            if n + R < N:
                issue(n + R)
            else:
                self.nop(5)
            if n >= 1:
                kpost(n - 1)
        self.nop(9)
        kpost(T - 1)
        self.dpp('v_max_f32', [vmax], 'quad_perm:[1,0,3,2]')
        self.dpp('v_max_f32', [vmax], 'quad_perm:[2,3,0,1]')
        self.swap_red('v_max_f32', [vmax], [62], 16)
        self.swap_red('v_max_f32', [vmax], [62], 32)
        self.rnd_bf16(vmax, vmax)
        A(f'v_mul_f32 v{vnm}, s57, v{vmax}')
        A(f'v_sub_f32 v{vnm}, 0, v{vnm}')
        self.stamp(3)
        for t in range(T):
            n = T + t
            r = RB + (n % R) * 16
            tt = t & 3
            if tt == 0:
                grp = t // 4
                A(f'v_lshlrev_b32 v{U[0]}, 16, v{S2+2*grp}')
                A(f'v_and_b32 v{U[1]}, 0xffff0000, v{S2+2*grp}')
                A(f'v_lshlrev_b32 v{U[2]}, 16, v{S2+2*grp+1}')
                A(f'v_and_b32 v{U[3]}, 0xffff0000, v{S2+2*grp+1}')
                for k in range(4):
                    A(f'v_fma_f32 v{U[k]}, v{U[k]}, s57, v{vnm}')
                for k in range(4):
                    A(f'v_exp_f32 v{U[k]}, v{U[k]}')
                self.nop(1)
                for k in range(4):
                    A(f'v_cvt_pk_bf16_f32 v{D+k}, v{U[k]}, v{U[k]}')
                A(f'v_add_f32 v{U[0]}, v{U[0]}, v{U[1]}')
                A(f'v_add_f32 v{U[2]}, v{U[2]}, v{U[3]}')
                A(f'v_add_f32 v{vl}, v{vl}, v{U[0]}')
                A(f'v_add_f32 v{vl}, v{vl}, v{U[2]}')
            if pool and t >= T - 4:
                pool_prologue(T - 1 - t)
            if t == T - 1 and not pool:
                finish_l()
            qp = f'quad_perm:[{tt},{tt},{tt},{tt}] row_mask:0xf bank_mask:0xf'
            for k in range(4):
                A(f'v_and_b32_dpp v{TA[k]}, v{D+k}, v{M0} {qp}')
                A(f'v_and_b32_dpp v{TA[k]+1}, v{D+k}, v{M1} {qp}')
            wait_for(n)
            self.nop(1)
            for k in range(4):
                A(f'v_mfma_f32_16x16x16_bf16 v[{ACC}:{ACC+3}], v[{TA[k]}:{TA[k]+1}], v[{r+4*k}:{r+4*k+1}], v[{ACC}:{ACC+3}]')
                A(f'v_mfma_f32_16x16x16_bf16 v[{ACC+4}:{ACC+7}], v[{TA[k]}:{TA[k]+1}], v[{r+4*k+2}:{r+4*k+3}], v[{ACC+4}:{ACC+7}]')
            if n + R < N:
                issue(n + R)
        if pool:
            self.stamp(5)
            pool_loop()
            self.seg_begin('h')
            finish_l()
        else:
            if not cover: self.seg_begin('h')
            self.nop(7)
        self.stamp(4, None if not cover else ())
        A(f'ds_write_b128 v28, v[{ACC}:{ACC+3}]')
        A(f'ds_write_b128 v28, v[{ACC+4}:{ACC+7}] offset:16')
        if not cover: self.seg_end('h')

    def helper_q(self):
        A = self.A
        o = self.o
        nt = o['nt']
        spin = o['spin']
        A('s_setprio 3')
        A('v_lshlrev_b32 v1, 4, v0')
        A('v_and_b32 v2, 15, v0')
        A('v_lshrrev_b32 v3, 4, v0')
        A('s_lshr_b32 s99, s32, 2')
        A('s_waitcnt lgkmcnt(0)')
        A(f's_load_dwordx2 s[96:97], s[28:29], {WS_E:#x}')
        A('s_mov_b32 s0, s99')
        A('s_and_b32 s1, s32, 3')
        self.srd(X, 4, 1024)
        self.srd(WQ, 10, 0x400000)
        A('s_cmp_lg_u32 s33, 0')
        A('s_cbranch_scc1 L_h_b0')
        XA, XB, XP, WQR = 8, 12, 20, 64
        A('v_lshlrev_b32 v4, 17, v3')
        A('v_lshl_add_u32 v4, v2, 4, v4')
        A('s_lshl_b32 s14, s0, 19')
        A('s_lshl_b32 s15, s31, 2')
        A('s_add_u32 s15, s15, s1')
        A('s_lshl_b32 s15, s15, 8')
        A('s_add_u32 s14, s14, s15')
        A(f'buffer_load_dwordx4 v[{XA}:{XA+3}], v1, s[{X}:{X+3}], 0 offen')
        A('v_lshlrev_b32 v6, 5, v3')
        A('s_lshl_b32 s15, s0, 7')
        A(f'buffer_load_dwordx4 v[{XB}:{XB+3}], v6, s[{X}:{X+3}], s15 offen')
        A(f'buffer_load_dwordx4 v[{XB+4}:{XB+7}], v6, s[{X}:{X+3}], s15 offen offset:16')
        A('v_mov_b32 v5, 0')
        A(f'buffer_load_dword v{XP}, v5, s[{X}:{X+3}], 0 offen')
        for k in range(16):
            A(f'buffer_load_dwordx4 v[{WQR+4*k}:{WQR+4*k+3}], v4, s[{WQ}:{WQ+3}], s14 offen {nt}')
            A('s_add_u32 s14, s14, 8192')
        A(f'v_mov_b32 v7, {LDS_F}')
        A('ds_write_b32 v7, v5')
        A('ds_write_b32 v7, v5 offset:4')
        A('s_waitcnt lgkmcnt(0)')
        A('L_h_b0:')
        self.stamp(4, ('q',))
        A('s_barrier')
        self.srd(WS, 28, WS_SIZE)
        A('s_waitcnt lgkmcnt(0)')
        A(f's_add_u32 s96, s96, {TAGC & 0xffffffff:#x}')
        A(f's_addc_u32 s97, s97, {TAGC >> 32:#x}')
        A('s_cmp_lg_u32 s33, 0')
        A('s_cbranch_scc1 L_h_qgather')
        self.sel_masks(44, 45)
        A('v_lshlrev_b32 v46, 6, v2')
        A('v_lshl_add_u32 v46, v3, 4, v46')
        A('s_lshl_b32 s6, s31, 15')
        A('s_lshl_b32 s15, s0, 12')
        A('s_add_u32 s6, s6, s15')
        A('s_lshl_b32 s15, s1, 10')
        A('s_add_u32 s6, s6, s15')
        A('v_and_b32 v5, 1, v3')
        A('v_cmp_eq_u32 s[72:73], 1, v5')
        A('v_cmp_lt_u32 s[74:75], 1, v3')
        A('v_mov_b32 v26, s96')
        A('v_mov_b32 v27, s97')
        A('s_waitcnt vmcnt(16)')
        self.stamp(6, ('q',))
        V8 = list(range(28, 36))
        for k in range(4):
            A(f'v_lshlrev_b32 v{V8[2*k]}, 16, v{XA+k}')
            A(f'v_and_b32 v{V8[2*k+1]}, 0xffff0000, v{XA+k}')
        A(f'v_lshlrev_b32 v{XP}, 16, v{XP}')
        A(f'v_mov_b32 v{XP+1}, v{XP}')
        TT = list(range(48, 58))
        self.ln_moments(V8, XP, TT, 76, 77)
        self.ln_finish(TT[8], TT[9], 22, 23, 24)
        self.stamp(7, ('q',))
        V16 = list(range(28, 44))
        for k in range(8):
            A(f'v_lshlrev_b32 v{V16[2*k]}, 16, v{XB+k}')
            A(f'v_and_b32 v{V16[2*k+1]}, 0xffff0000, v{XB+k}')
        self.ln_apply(V16, V16, 22, 23, 24)
        QA = 48
        for k in range(16):
            a = 56 + 2 * (k & 3)
            A(f'v_cvt_pk_bf16_f32 v24, v{V16[k]}, v{V16[k]}')
            A(f'v_and_b32 v{a}, v24, v44')
            A(f'v_and_b32 v{a+1}, v24, v45')
            A(f's_waitcnt vmcnt({15 - k})')
            if k == 0: self.stamp(8, ('q',))
            if k == 15: self.stamp(9, ('q',))
            self.nop(1)
            c0 = '0' if k == 0 else f'v[{QA}:{QA+3}]'
            c1 = '0' if k == 0 else f'v[{QA+4}:{QA+7}]'
            A(f'v_mfma_f32_16x16x16_bf16 v[{QA}:{QA+3}], v[{a}:{a+1}], v[{WQR+4*k}:{WQR+4*k+1}], {c0}')
            A(f'v_mfma_f32_16x16x16_bf16 v[{QA+4}:{QA+7}], v[{a}:{a+1}], v[{WQR+4*k+2}:{WQR+4*k+3}], {c1}')
        self.nop(8)
        for k in range(4):
            A(f'v_cndmask_b32 v{QA+k}, v{QA+k}, v{QA+4+k}, s[74:75]')
        A(f'v_cndmask_b32 v24, v{QA}, v{QA+2}, s[72:73]')
        A(f'v_cndmask_b32 v25, v{QA+1}, v{QA+3}, s[72:73]')
        A(f'buffer_store_dwordx4 v[24:27], v46, s[{WS}:{WS+3}], s6 offen offset:{WS_QP} sc1')
        self.stamp(1)
        A('v_lshlrev_b32 v5, 10, v0')
        A('s_lshl_b32 s14, s31, 15')
        A('s_mov_b32 exec_hi, 0')
        A(f's_mov_b32 s15, {spin}')
        lp = self.label('probe')
        A(f'{lp}:')
        A(f's_sleep {o["pollsleep"]}')
        A(f'buffer_load_dwordx2 v[28:29], v5, s[{WS}:{WS+3}], s14 offen offset:{WS_QP+1016} sc1')
        A('s_sub_u32 s15, s15, 1')
        A('s_cmp_eq_u32 s15, 0')
        A(f's_cbranch_scc1 {lp}_x')
        A('s_waitcnt vmcnt(0)')
        A('v_cmp_ne_u64 vcc, s[96:97], v[28:29]')
        A('s_and_b64 exec, exec, vcc')
        A(f's_cbranch_execnz {lp}')
        A(f'{lp}_x:')
        A('s_mov_b64 exec, -1')
        A('v_mov_b32 v6, 1')
        A('ds_write_b32 v7, v6')
        self.stamp(5, ('q',))
        A('L_h_qgather:')
        A(f'v_mov_b32 v7, {LDS_F}')
        A('s_lshl_b32 s14, s31, 15')
        A('s_lshl_b32 s15, s33, 11')
        A('s_add_u32 s14, s14, s15')
        self.lds_wait(7, 0)
        A(f's_mov_b32 s15, {spin}')
        lp = self.label('pollqd')
        A(f'{lp}:')
        A('s_mov_b32 s8, s14')
        for k in range(8):
            A(f'buffer_load_dwordx4 v[{64+8*k}:{67+8*k}], v1, s[{WS}:{WS+3}], s8 offen offset:{WS_QP} sc1')
            A(f'buffer_load_dwordx4 v[{68+8*k}:{71+8*k}], v1, s[{WS}:{WS+3}], s8 offen offset:{WS_QP+1024} sc1')
            if k < 7:
                A('s_add_u32 s8, s8, 4096')
        A('s_sub_u32 s15, s15, 1')
        A('s_cmp_eq_u32 s15, 0')
        A(f's_cbranch_scc1 {lp}_x')
        for k in range(16):
            A(f's_waitcnt vmcnt({15-k})')
            if k == 0:
                A(f'v_cmp_ne_u64 s[76:77], s[96:97], v[{66+4*k}:{67+4*k}]')
            else:
                A(f'v_cmp_ne_u64 vcc, s[96:97], v[{66+4*k}:{67+4*k}]')
                A('s_or_b64 s[76:77], s[76:77], vcc')
        A('s_and_b64 exec, exec, s[76:77]')
        A(f's_cbranch_execz {lp}_x')
        A(f's_sleep {o["pollsleep"]}')
        A(f's_branch {lp}')
        A(f'{lp}_x:')
        A('s_mov_b64 exec, -1')
        A('s_waitcnt vmcnt(0)')
        self.stamp(2)
        for k in range(1, 8):
            A(f'v_pk_add_f32 v[64:65], v[64:65], v[{64+8*k}:{65+8*k}]')
            A(f'v_pk_add_f32 v[68:69], v[68:69], v[{68+8*k}:{69+8*k}]')
        A('v_cvt_pk_bf16_f32 v16, v64, v65')
        A('v_cvt_pk_bf16_f32 v17, v68, v69')
        A('s_lshl_b32 s15, s33, 9')
        A('v_lshl_add_u32 v5, v0, 2, s15')
        A(f'ds_write_b32 v5, v16 offset:{LDS_Q}')
        A(f'ds_write_b32 v5, v17 offset:{LDS_Q+256}')
        A('s_waitcnt lgkmcnt(0)')
        self.stamp(3)
        A('s_barrier')
        A('s_cmp_lg_u32 s33, 1')
        A('s_cbranch_scc1 L_pref')
        A('v_mov_b32 v24, -1'); A('v_mov_b32 v25, -1'); A('v_mov_b32 v26, -1'); A('v_mov_b32 v27, -1')
        A('s_lshl_b32 s14, s3, 11')
        A(f's_add_u32 s14, s14, {WS_P1:#x}')
        for k in range(2):
            A(f'buffer_store_dwordx4 v[24:27], v1, s[{WS}:{WS+3}], s14 offen offset:{1024*k} sc1')
        A('s_lshl_b32 s14, s31, 2')
        A('s_add_u32 s14, s14, s34')
        A('s_lshl_b32 s14, s14, 11')
        A('s_lshl_b32 s15, s35, 8')
        A('s_add_u32 s14, s14, s15')
        A(f's_add_u32 s14, s14, {WS_P2:#x}')
        A('v_lshlrev_b32 v5, 2, v0')
        A(f'buffer_store_dword v24, v5, s[{WS}:{WS+3}], s14 offen sc1')
        A('s_and_b32 s14, s3, 15')
        A('s_cmp_lg_u32 s14, 0')
        A('s_cbranch_scc1 L_h1_nohv')
        A('s_lshl_b32 s14, s3, 3')
        A(f's_add_u32 s14, s14, {WS_HV:#x}')
        A('v_lshrrev_b32 v5, 3, v0')
        A(f'v_mul_u32_u24 v5, {HVS}, v5')
        A('v_and_b32 v6, 7, v0')
        A('v_lshl_add_u32 v5, v6, 4, v5')
        A(f'buffer_store_dwordx4 v[24:27], v5, s[{WS}:{WS+3}], s14 offen sc1')
        A(f'v_mul_u32_u24 v5, {HVS}, v0')
        A(f's_add_u32 s14, s3, {WS_HV + 2048:#x}')
        A('s_mov_b64 exec, 0xff')
        A(f'buffer_store_dwordx4 v[24:27], v5, s[{WS}:{WS+3}], s14 offen sc1')
        A('s_mov_b64 exec, -1')
        A('L_h1_nohv:')
        A('s_cmp_lg_u32 s32, 0')
        A('s_cbranch_scc1 L_h1_nocnt')
        A('s_lshl_b32 s14, s31, 10')
        A(f's_add_u32 s14, s14, {WS_CNT:#x}')
        A('v_mov_b32 v32, 0'); A('v_mov_b32 v33, 0'); A('v_mov_b32 v34, 0'); A('v_mov_b32 v35, 0')
        A(f'buffer_store_dwordx4 v[32:35], v1, s[{WS}:{WS+3}], s14 offen sc1')
        A('L_h1_nocnt:')
        A('v_mov_b32 v28, s96')
        A('v_mov_b32 v29, s97')
        A('v_mov_b32 v5, 0')
        A('s_lshl_b32 s14, s3, 3')
        A(f's_add_u32 s14, s14, {WS_F:#x}')
        A('s_mov_b64 exec, 1')
        A('s_waitcnt vmcnt(0)')
        A(f'buffer_store_dwordx2 v[28:29], v5, s[{WS}:{WS+3}], s14 offen sc1')
        A('s_mov_b64 exec, -1')
        A(f's_mov_b32 s14, {WS_F:#x}')
        A(f's_mov_b32 s15, {spin}')
        lp = self.label('pollall')
        A(f'{lp}:')
        A('s_sleep 127')
        A('s_sleep 127')
        A(f'buffer_load_dwordx4 v[24:27], v1, s[{WS}:{WS+3}], s14 offen sc1')
        A(f'buffer_load_dwordx4 v[28:31], v1, s[{WS}:{WS+3}], s14 offen offset:1024 sc1')
        A('s_sub_u32 s15, s15, 1')
        A('s_cmp_eq_u32 s15, 0')
        A(f's_cbranch_scc1 {lp}_x')
        A('s_waitcnt vmcnt(0)')
        for k in range(4):
            if k == 0:
                A(f'v_cmp_ne_u64 s[76:77], s[96:97], v[{24+2*k}:{25+2*k}]')
            else:
                A(f'v_cmp_ne_u64 vcc, s[96:97], v[{24+2*k}:{25+2*k}]')
                A('s_or_b64 s[76:77], s[76:77], vcc')
        A('s_and_b64 exec, exec, s[76:77]')
        A(f's_cbranch_execnz {lp}')
        A(f'{lp}_x:')
        A('s_mov_b64 exec, -1')
        A('v_mov_b32 v6, 1')
        A('ds_write_b32 v7, v6 offset:4')
        A('s_waitcnt vmcnt(0)')

    def helper_tail(self):
        A = self.A
        o = self.o
        nt = o['nt']
        spin = o['spin']
        WOR, WOT, XR, B2R, XF = 64, 80, 108, 110, 128
        vOA, vMLA, vP1o, vP1m, vWw, vWr, vP2, vHw, vHo = 140, 141, 142, 143, 144, 145, 146, 147, 149
        A('s_setprio 3')
        self.srd(WO, 12, 0x400000)
        self.srd(W1, 16, 3584)
        self.srd(B1, 18, 3584)
        self.srd(W2, 20, 3584)
        self.srd(B2, 22, 2)
        self.srd(OUT, 24, 1024)
        A(f's_mov_b32 s9, {f2u(LOG2E):#x}')
        A('v_lshlrev_b32 v1, 4, v0')
        A('v_and_b32 v8, 7, v0')
        A('v_lshrrev_b32 v9, 3, v0')
        A('v_and_b32 v10, 31, v0')
        A('v_lshlrev_b32 v4, 12, v8')
        A('v_lshl_add_u32 v4, v9, 4, v4')
        A('s_lshl_b32 s8, s31, 2')
        A('s_add_u32 s8, s8, s34')
        A('s_lshl_b32 s14, s8, 17')
        A('s_lshl_b32 s15, s33, 15')
        A('s_add_u32 s14, s14, s15')
        A('s_lshl_b32 s15, s35, 7')
        A('s_add_u32 s14, s14, s15')
        for k in range(4):
            A(f'buffer_load_dwordx4 v[{WOR+4*k}:{WOR+4*k+3}], v4, s[{WO}:{WO+3}], s14 offen offset:{1024*k} {nt}')
        self.mlp_weights_load()
        A('v_lshlrev_b32 v5, 3, v8')
        A('s_lshr_b32 s14, s3, 4')
        A('s_lshl_b32 s14, s14, 6')
        A(f'buffer_load_dwordx2 v[{XR}:{XR+1}], v5, s[{X}:{X+3}], s14 offen')
        A('v_mov_b32 v5, 0')
        A(f'buffer_load_ushort v{B2R}, v5, s[{B2}:{B2+3}], 0 offen')
        A('s_lshl_b32 s14, s33, 9')
        A(f's_add_u32 s14, s14, {LDS_O}')
        A(f'v_lshl_add_u32 v{vOA}, v10, 4, s14')
        A('s_lshl_b32 s14, s33, 3')
        A(f's_add_u32 s14, s14, {LDS_ML}')
        A(f'v_mov_b32 v{vMLA}, s14')
        A(f'v_lshlrev_b32 v{vP1o}, 11, v9')
        A('s_lshl_b32 s14, s33, 7')
        A(f'v_lshl_add_u32 v{vP1o}, v8, 4, v{vP1o}')
        A(f'v_add_u32 v{vP1o}, s14, v{vP1o}')
        A('s_lshl_b32 s14, s33, 8')
        A(f's_add_u32 s14, s14, {LDS_W}')
        A(f'v_lshl_add_u32 v{vWw}, v9, 5, s14')
        A(f'v_lshlrev_b32 v{vWr}, 2, v0')
        A('v_lshlrev_b32 v4, 13, v9')
        A(f'v_lshl_add_u32 v{vP2}, v8, 4, v4')
        A('s_lshr_b32 s14, s3, 4')
        A('s_lshl_b32 s14, s14, 7')
        A(f's_add_u32 s6, s14, {WS_P2:#x}')
        A('s_add_u32 s7, s6, 4096')
        A(f's_add_u32 s24, s14, {WS_HV:#x}')
        A('s_and_b32 s15, s2, 7')
        A(f's_mul_i32 s15, s15, {HVS}')
        A(f's_add_u32 s25, s15, {WS_HV:#x}')
        A(f's_add_u32 s48, s3, {WS_HV + 2048:#x}')
        A(f'v_mul_u32_u24 v143, {HVS}, v9')
        A(f'v_mul_u32_u24 v148, {HVS}, v9')
        A('v_lshl_add_u32 v148, v8, 4, v148')
        A('s_lshr_b32 s14, s2, 1')
        A('s_lshl_b32 s14, s14, 4')
        A('v_mov_b32 v4, s14')
        A(f'v_add_u32 v{vHw}, 0x800, v1')
        A('v_cmp_lt_u32 vcc, 15, v0')
        A(f'v_mov_b32 v{vHo}, {LDS_H}')
        A('s_nop 0')
        A(f'v_cndmask_b32 v{vHw}, v{vHw}, v4, vcc')
        A('s_lshl_b32 s14, s3, 11')
        A('s_lshl_b32 s15, s33, 9')
        A('s_add_u32 s14, s14, s15')
        A(f's_add_u32 s16, s14, {WS_P1:#x}')
        A('s_lshl_b32 s14, s31, 16')
        A('s_lshl_b32 s15, s34, 9')
        A('s_add_u32 s14, s14, s15')
        A(f's_add_u32 s10, s14, {WS_P1:#x}')
        A('s_add_u32 s11, s10, 16384')
        A('s_add_u32 s12, s10, 32768')
        A('s_add_u32 s13, s10, 49152')
        A('s_lshl_b32 s14, s8, 11')
        A('s_lshl_b32 s15, s35, 8')
        A('s_add_u32 s14, s14, s15')
        A(f's_add_u32 s17, s14, {WS_P2:#x}')
        A('s_waitcnt vmcnt(0)')
        A('s_mov_b32 s14, 0x05040100')
        A('s_mov_b32 s15, 0x07060302')
        for p in range(2):
            for dw in range(4):
                lo, hi = WOR + 8 * p + dw, WOR + 8 * p + 4 + dw
                A(f'v_perm_b32 v{WOT+8*p+2*dw}, v{hi}, v{lo}, s14')
                A(f'v_perm_b32 v{WOT+8*p+2*dw+1}, v{hi}, v{lo}, s15')
        self.mlp_weights_prep()
        for k in range(2):
            A(f'v_lshlrev_b32 v{XF+2*k}, 16, v{XR+k}')
            A(f'v_and_b32 v{XF+2*k+1}, 0xffff0000, v{XR+k}')
        A(f'v_lshlrev_b32 v{B2R}, 16, v{B2R}')
        A('v_cmp_lt_u32 s[18:19], 31, v0')
        if o['warm']:
            A('s_cmp_lg_u32 s33, 0')
            A('s_cbranch_scc1 L_nowarm')
            self.warm_pass(['h', 'a', 'b', 'c', 'd1', 'd2', 'e', 'f', 'g'])
            self.srd(WS, 28, WS_SIZE)
            A('L_nowarm:')
        for k in range(4):
            A(f's_mov_b64 s[{72+2*k}:{73+2*k}], -1')
        A('s_waitcnt lgkmcnt(0)')
        A('s_barrier')
        self.seg_begin('a')
        self.stamp(4, (True,))
        NP = NPART
        ML, OO = 16, 28
        for w in range(NP):
            A(f'ds_read_b64 v[{ML+2*w}:{ML+2*w+1}], v{vMLA} offset:{32*w}')
        for w in range(NP):
            A(f'ds_read_b128 v[{OO+4*w}:{OO+4*w+3}], v{vOA} offset:{2048*w}')
        A(f's_waitcnt lgkmcnt({NP})')
        A(f'v_max3_f32 v12, v{ML}, v{ML+2}, v{ML+4}')
        A(f'v_max3_f32 v13, v{ML+6}, v{ML+8}, v{ML+10}')
        A('v_max_f32 v12, v12, v13')
        A('v_mul_f32 v13, s9, v12')
        for w in range(NP):
            A(f'v_fma_f32 v{ML+2*w}, v{ML+2*w}, s9, -v13')
        for w in range(NP):
            A(f'v_exp_f32 v{ML+2*w}, v{ML+2*w}')
        A(f'v_mul_f32 v13, v{ML}, v{ML+1}')
        for w in range(1, NP):
            A(f'v_fmac_f32 v13, v{ML+2*w}, v{ML+2*w+1}')
        A('s_waitcnt lgkmcnt(0)')
        for c in range(4):
            A(f'v_mul_f32 v{52+c}, v{ML}, v{OO+c}')
        for w in range(1, NP):
            for c in range(4):
                A(f'v_fmac_f32 v{52+c}, v{ML+2*w}, v{OO+4*w+c}')
        A('v_cvt_pk_bf16_f32 v52, v52, v53')
        A('v_cvt_pk_bf16_f32 v53, v54, v55')
        A('v_min_u32 v54, 0xfffffffe, v12')
        A('v_min_u32 v55, 0xfffffffe, v13')
        self.canon([52, 53])
        self.seg_end('a')
        A('s_mov_b32 exec_hi, 0')
        A(f'buffer_store_dwordx4 v[52:55], v1, s[{WS}:{WS+3}], s16 offen sc1')
        self.stamp(5, (True,))
        GO = 16
        A(f's_mov_b32 s15, {spin}')
        lp = self.label('poll1')
        A(f'{lp}:')
        for k in range(4):
            A(f's_mov_b64 exec, s[{72+2*k}:{73+2*k}]')
            A(f's_cbranch_execz {lp}_l{k}')
            A(f'buffer_load_dwordx4 v[{GO+4*k}:{GO+4*k+3}], v{vP1o}, s[{WS}:{WS+3}], s{10+k} offen sc1')
            A(f'{lp}_l{k}:')
        A('s_sub_u32 s15, s15, 1')
        A('s_cmp_eq_u32 s15, 0')
        A(f's_cbranch_scc1 {lp}_x')
        A('s_waitcnt vmcnt(0)')
        for k in range(4):
            A(f's_mov_b64 exec, s[{72+2*k}:{73+2*k}]')
            A(f'v_max3_u32 v12, v{GO+4*k}, v{GO+4*k+1}, v{GO+4*k+2}')
            A(f'v_max_u32 v12, v12, v{GO+4*k+3}')
            A(f'v_cmp_eq_u32 s[{72+2*k}:{73+2*k}], -1, v12')
        A('s_or_b64 s[20:21], s[72:73], s[74:75]')
        A('s_or_b64 vcc, s[76:77], s[78:79]')
        A('s_or_b64 s[20:21], s[20:21], vcc')
        A(f's_cbranch_scc0 {lp}_x')
        A('s_bcnt1_i32_b64 s14, s[20:21]')
        A('s_cmp_gt_u32 s14, 16')
        A(f's_cbranch_scc1 {lp}_s')
        if o['sleep_few']:
            A(f's_sleep {o["sleep_few"]}')
        A(f's_branch {lp}')
        A(f'{lp}_s:')
        A(f's_sleep {o["sleep_many"]}')
        A(f's_branch {lp}')
        A(f'{lp}_x:')
        A('s_mov_b64 exec, -1')
        A('s_waitcnt vmcnt(0)')
        self.seg_begin('b')
        self.stamp(6, (True,))
        A(f'v_max3_f32 v12, v{GO+2}, v{GO+6}, v{GO+10}')
        A(f'v_max_f32 v12, v12, v{GO+14}')
        for k in range(2):
            A(f'v_lshlrev_b32 v{32+4*k}, 16, v{GO+4*k}')
            A(f'v_and_b32 v{33+4*k}, 0xffff0000, v{GO+4*k}')
        A('v_max_f32_dpp v12, v12, v12 row_ror:8 row_mask:0xf bank_mask:0xf')
        A('v_mov_b32 v13, v12')
        for k in range(2):
            A(f'v_lshlrev_b32 v{34+4*k}, 16, v{GO+4*k+1}')
            A(f'v_and_b32 v{35+4*k}, 0xffff0000, v{GO+4*k+1}')
        A('v_permlane16_swap_b32 v12, v13')
        for k in range(2, 4):
            A(f'v_lshlrev_b32 v{44+4*k}, 16, v{GO+4*k}')
            A(f'v_and_b32 v{45+4*k}, 0xffff0000, v{GO+4*k}')
        A('v_max_f32 v12, v12, v13')
        A('v_mov_b32 v13, v12')
        for k in range(2, 4):
            A(f'v_lshlrev_b32 v{46+4*k}, 16, v{GO+4*k+1}')
            A(f'v_and_b32 v{47+4*k}, 0xffff0000, v{GO+4*k+1}')
        A('v_permlane32_swap_b32 v12, v13')
        self.nop(2)
        A('v_max_f32 v12, v12, v13')
        A('v_mul_f32 v12, s9, v12')
        OU = [32, 36, 52, 56]
        for k in range(4):
            A(f'v_fma_f32 v{GO+4*k+2}, v{GO+4*k+2}, s9, -v12')
        for k in range(4):
            A(f'v_exp_f32 v{GO+4*k+2}, v{GO+4*k+2}')
        self.nop(1)
        A(f'v_mul_f32 v44, v{GO+2}, v{GO+3}')
        A(f'v_pk_mul_f32 v[40:41], v[{OU[0]}:{OU[0]+1}], v[{GO+2}:{GO+3}] op_sel_hi:[1,0]')
        A(f'v_pk_mul_f32 v[42:43], v[{OU[0]+2}:{OU[0]+3}], v[{GO+2}:{GO+3}] op_sel_hi:[1,0]')
        for k in range(1, 4):
            f = GO + 4 * k + 2
            A(f'v_fmac_f32 v44, v{f}, v{f+1}')
            A(f'v_pk_fma_f32 v[40:41], v[{OU[k]}:{OU[k]+1}], v[{f}:{f+1}], v[40:41] op_sel_hi:[1,0,1]')
            A(f'v_pk_fma_f32 v[42:43], v[{OU[k]+2}:{OU[k]+3}], v[{f}:{f+1}], v[42:43] op_sel_hi:[1,0,1]')
        self.nop(1)
        R5 = [44, 40, 41, 42, 43]
        T5 = [45, 46, 47, 48, 49]
        self.dpp('v_add_f32', R5, 'row_ror:8')
        self.swap_red('v_add_f32', R5, T5, 16)
        self.swap_red('v_add_f32', R5, T5, 32)
        A('v_rcp_f32 v44, v44')
        self.nop(1)
        for c in range(4):
            A(f'v_mul_f32 v{40+c}, v{40+c}, v44')
        A('v_cvt_pk_bf16_f32 v40, v40, v41')
        A('v_cvt_pk_bf16_f32 v41, v42, v43')
        for c in range(8):
            A(f'v_dot2_f32_bf16 v{16+c}, v40, v{WOT+c}, 0')
        for c in range(8):
            A(f'v_dot2_f32_bf16 v{16+c}, v41, v{WOT+8+c}, v{16+c}')
        R8 = list(range(16, 24))
        self.dpp('v_add_f32', R8, 'quad_perm:[1,0,3,2]')
        self.dpp('v_add_f32', R8, 'quad_perm:[2,3,0,1]')
        self.dpp('v_add_f32', R8, 'row_half_mirror')
        A(f'ds_write_b128 v{vWw}, v[16:19]')
        A(f'ds_write_b128 v{vWw}, v[20:23] offset:16')
        A('s_waitcnt lgkmcnt(0)')
        self.seg_end('b')
        A('s_barrier')
        A('s_cmp_lg_u32 s33, 0')
        A('s_cbranch_scc1 L_hop2')
        self.seg_begin('c')
        for w in range(4):
            A(f'ds_read_b32 v{16+w}, v{vWr} offset:{LDS_W + 256*w}')
        A('s_waitcnt lgkmcnt(0)')
        A('v_add_f32 v16, v16, v17')
        A('v_add_f32 v18, v18, v19')
        A('v_add_f32 v16, v16, v18')
        self.canon([16])
        self.seg_end('c')
        A(f'buffer_store_dword v16, v{vWr}, s[{WS}:{WS+3}], s17 offen sc1')
        A('L_hop2:')
        self.stamp(7, (True,))
        A('s_cmp_lg_u32 s33, 1')
        A('s_cbranch_scc1 L_hop2b')
        A('s_and_b32 s14, s3, 15')
        A('s_cmp_lg_u32 s14, 0')
        A('s_cbranch_scc1 L_hop2b')
        A(f's_mov_b32 s15, {spin}')
        lp = self.label('poll2a')
        A(f'{lp}:')
        for k in range(4):
            A(f'buffer_load_dwordx4 v[{16+4*k}:{19+4*k}], v{vP2}, s[{WS}:{WS+3}], s{6+(k>>1)} offen offset:{2048*(k&1)} sc1')
        A('s_sub_u32 s15, s15, 1')
        A('s_cmp_eq_u32 s15, 0')
        A(f's_cbranch_scc1 {lp}_x')
        A('s_waitcnt vmcnt(0)')
        A('v_max3_u32 v12, v16, v17, v18')
        A('v_max3_u32 v13, v19, v20, v21')
        A('v_max3_u32 v12, v12, v22, v23')
        A('v_max3_u32 v13, v13, v24, v25')
        A('v_max3_u32 v12, v12, v26, v27')
        A('v_max3_u32 v13, v13, v28, v29')
        A('v_max3_u32 v12, v12, v30, v31')
        A('v_max_u32 v12, v12, v13')
        A('v_cmp_eq_u32 vcc, -1, v12')
        A('s_and_b64 exec, exec, vcc')
        A(f's_cbranch_execnz {lp}')
        A(f'{lp}_x:')
        A('s_mov_b64 exec, -1')
        A('s_waitcnt vmcnt(0)')
        self.seg_begin('d1')
        A('v_pk_add_f32 v[16:17], v[16:17], v[20:21]')
        A('v_pk_add_f32 v[18:19], v[18:19], v[22:23]')
        A('v_pk_add_f32 v[24:25], v[24:25], v[28:29]')
        A('v_pk_add_f32 v[26:27], v[26:27], v[30:31]')
        A('v_pk_add_f32 v[16:17], v[16:17], v[24:25]')
        A('v_pk_add_f32 v[18:19], v[18:19], v[26:27]')
        R4 = [16, 17, 18, 19]
        self.nop(1)
        self.dpp('v_add_f32', R4, 'row_ror:8')
        self.swap_red('v_add_f32', R4, [20, 21, 22, 23], 16)
        self.swap_red('v_add_f32', R4, [20, 21, 22, 23], 32)
        self.rnd_bf16_pair(16, 17, 20)
        self.rnd_bf16_pair(18, 19, 21)
        A(f'v_pk_add_f32 v[16:17], v[16:17], v[{XF}:{XF+1}]')
        A(f'v_pk_add_f32 v[18:19], v[18:19], v[{XF+2}:{XF+3}]')
        self.rnd_bf16_pair(16, 17, 20)
        self.rnd_bf16_pair(18, 19, 21)
        self.seg_end('d1')
        A(f'buffer_store_dwordx4 v[16:19], v148, s[{WS}:{WS+3}], s24 offen sc1')
        self.seg_begin('d2')
        A('v_readfirstlane_b32 s14, v16')
        self.nop(2)
        for c in range(4):
            A(f'v_subrev_f32 v{20+c}, s14, v{16+c}')
        A('v_add_f32 v25, v20, v21')
        A('v_mul_f32 v26, v20, v20')
        A('v_add_f32 v24, v22, v23')
        A('v_fmac_f32 v26, v21, v21')
        A('v_add_f32 v25, v25, v24')
        A('v_fmac_f32 v26, v22, v22')
        A('v_mov_b32 v24, s14')
        A('v_fmac_f32 v26, v23, v23')
        A('v_mov_b32 v27, 0')
        self.dpp('v_add_f32', [25, 26], 'quad_perm:[1,0,3,2]')
        self.dpp('v_add_f32', [25, 26], 'quad_perm:[2,3,0,1]')
        self.dpp('v_add_f32', [25, 26], 'row_half_mirror')
        self.canon([25, 26])
        self.seg_end('d2')
        A('s_mov_b32 exec_lo, 0x01010101')
        A('s_mov_b32 exec_hi, 0x01010101')
        A(f'buffer_store_dwordx4 v[24:27], v143, s[{WS}:{WS+3}], s48 offen sc1')
        A('s_mov_b64 exec, -1')
        A('L_hop2b:')
        A('s_cmp_lg_u32 s33, 0')
        A('s_cbranch_scc1 L_b4')
        A('s_mov_b64 exec, 0x1ffff')
        A(f's_mov_b32 s15, {spin}')
        lp = self.label('poll2b')
        A(f'{lp}:')
        A(f'buffer_load_dwordx4 v[16:19], v{vHw}, s[{WS}:{WS+3}], s25 offen sc1')
        A('s_sub_u32 s15, s15, 1')
        A('s_cmp_eq_u32 s15, 0')
        A(f's_cbranch_scc1 {lp}_x')
        A('s_waitcnt vmcnt(0)')
        A('v_max3_u32 v12, v16, v17, v18')
        A('v_max_u32 v12, v12, v19')
        A('v_cmp_eq_u32 vcc, -1, v12')
        A('s_and_b64 exec, exec, vcc')
        A(f's_cbranch_execz {lp}_x')
        if o['sleep2b']:
            A(f's_sleep {o["sleep2b"]}')
        A(f's_branch {lp}')
        A(f'{lp}_x:')
        A('s_mov_b64 exec, -1')
        A('s_waitcnt vmcnt(0)')
        self.seg_begin('e')
        self.stamp(8, (True,))
        A('v_readlane_b32 s14, v16, 0')
        A('v_readlane_b32 s72, v16, 16')
        A('v_readlane_b32 s73, v17, 16')
        A('v_readlane_b32 s74, v18, 16')
        A('v_readlane_b32 s75, v19, 16')
        A('v_subrev_f32 v20, s14, v16')
        A('v_mul_f32 v21, 0x42000000, v20')
        A('v_fma_f32 v22, 2.0, v17, v21')
        A('v_fmac_f32 v18, v20, v22')
        A('v_add_f32 v17, v17, v21')
        A('s_bitcmp1_b32 s2, 0')
        A('s_cselect_b32 s72, s74, s72')
        A('s_cselect_b32 s73, s75, s73')
        self.dpp('v_add_f32', [18, 17], 'quad_perm:[1,0,3,2]')
        self.dpp('v_add_f32', [18, 17], 'quad_perm:[2,3,0,1]')
        self.dpp('v_add_f32', [18, 17], 'row_half_mirror')
        self.dpp('v_add_f32', [18, 17], 'row_mirror')
        A('v_mov_b32 v24, s72')
        A('v_mov_b32 v25, s73')
        A('v_readlane_b32 s76, v17, 0')
        A('v_readlane_b32 s77, v18, 0')
        inv = f2u(1.0 / 512)
        A(f'v_mov_b32 v48, {inv:#x}')
        self.nop(1)
        A('v_mul_f32 v49, s77, v48')
        A('v_mul_f32 v48, s76, v48')
        A('v_fma_f32 v49, -v48, v48, v49')
        A('v_max_f32 v49, 0, v49')
        A('v_add_f32 v48, s14, v48')
        mean, var = 48, 49
        self.ln_finish(mean, var, 12, 13, 14)
        self.ln_apply([24, 25], [36, 37], 12, 13, 14)
        A(f'v_sub_f32 v{mean}, v{mean}, v12')
        A(f'v_mul_f32 v{var}, v{var}, v13')
        A(f'v_mul_f32 v{mean}, v{mean}, v13')
        A(f'v_mul_f32 v{var}, v{var}, v13')
        self.ln_finish(mean, var, 12, 13, 14)
        self.ln_apply([36, 37], [36, 37], 12, 13, 14)
        A(f'ds_write_b64 v{vHo}, v[36:37]')
        A('s_waitcnt lgkmcnt(0)')
        self.seg_end('e')

    def final(self):
        A = self.A
        o = self.o
        B2R, vHo = 110, 149
        A('s_setprio 0')
        A('s_barrier')
        self.seg_begin('f')
        A(f'ds_read_b64 v[36:37], v{vHo}')
        A('s_waitcnt lgkmcnt(0)')
        self.stamp(9, (True,))
        YA = [30, 31]
        ch = [(d, p) for d in range(2) for p in range(2)]
        U = {c: 40 + 6 * n for n, c in enumerate(ch)}

        def each(f):
            for c in ch:
                f(c[0], c[1], U[c], U[c] + 2, U[c] + 4)
        each(lambda d, p, u, t, z: (A(f'v_mul_f32 v{u}, v{36+d}, v{W1F+2*p}'), A(f'v_mul_f32 v{u+1}, v{36+d}, v{W1F+2*p+1}')))
        each(lambda d, p, u, t, z: self.rnd_bf16_pair(u, u + 1, t))
        each(lambda d, p, u, t, z: A(f'v_pk_add_f32 v[{u}:{u+1}], v[{u}:{u+1}], v[{B1F+2*p}:{B1F+2*p+1}]'))
        each(lambda d, p, u, t, z: self.rnd_bf16_pair(u, u + 1, t))
        each(lambda d, p, u, t, z: A(f'v_pk_mul_f32 v[{t}:{t+1}], v[{u}:{u+1}], v[{u}:{u+1}]'))
        each(lambda d, p, u, t, z: A(f'v_pk_fma_f32 v[{t}:{t+1}], v[{t}:{t+1}], v[{GK1}:{GK1+1}], v[{GK0}:{GK0+1}]'))
        each(lambda d, p, u, t, z: A(f'v_pk_mul_f32 v[{z}:{z+1}], v[{t}:{t+1}], v[{u}:{u+1}]'))
        each(lambda d, p, u, t, z: (A(f'v_exp_f32 v{z}, v{z}'), A(f'v_exp_f32 v{z+1}, v{z+1}')))
        each(lambda d, p, u, t, z: A(f'v_pk_add_f32 v[{z}:{z+1}], v[{z}:{z+1}], v[{GONE}:{GONE+1}]'))
        each(lambda d, p, u, t, z: (A(f'v_rcp_f32 v{z}, v{z}'), A(f'v_rcp_f32 v{z+1}, v{z+1}')))
        each(lambda d, p, u, t, z: A(f'v_pk_mul_f32 v[{u}:{u+1}], v[{u}:{u+1}], v[{z}:{z+1}]'))
        each(lambda d, p, u, t, z: A(f'v_cvt_pk_bf16_f32 v{u}, v{u}, v{u+1}'))
        for d in range(2):
            A(f'v_dot2_f32_bf16 v{YA[d]}, v{U[(d,0)]}, v{W2R}, 0')
        for d in range(2):
            A(f'v_dot2_f32_bf16 v{YA[d]}, v{U[(d,1)]}, v{W2R+1}, v{YA[d]}')
        self.nop(2)
        self.wave_sum_to_sgpr(YA, [76, 77])
        A('v_mov_b32 v16, s76')
        A('v_mov_b32 v17, s77')
        A('s_lshl_b32 s14, s30, 3')
        A(f's_add_u32 s14, s14, {LDS_Y}')
        A('v_mov_b32 v18, s14')
        A('ds_write_b64 v18, v[16:17]')
        A('s_waitcnt lgkmcnt(0)')
        self.seg_end('f')
        A('s_barrier')
        A('s_cmp_lg_u32 s30, 4')
        lend = self.label('hend')
        A(f's_cbranch_scc1 {lend}')
        self.seg_begin('g')
        A(f'v_mov_b32 v12, {LDS_Y}')
        for k in range(4):
            A(f'ds_read_b128 v[{40+4*k}:{43+4*k}], v12 offset:{16*k}')
        A('s_waitcnt lgkmcnt(0)')
        for k in range(4):
            A(f'v_pk_add_f32 v[{40+4*k}:{41+4*k}], v[{40+4*k}:{41+4*k}], v[{42+4*k}:{43+4*k}]')
        A('v_pk_add_f32 v[40:41], v[40:41], v[44:45]')
        A('v_pk_add_f32 v[48:49], v[48:49], v[52:53]')
        A('v_pk_add_f32 v[16:17], v[40:41], v[48:49]')
        self.rnd_bf16_pair(16, 17, 20)
        A(f'v_add_f32 v16, v16, v{B2R}')
        A(f'v_add_f32 v17, v17, v{B2R}')
        self.rnd_bf16_pair(16, 17, 20)
        A('v_pk_add_f32 v[16:17], v[16:17], v[24:25]')
        A('v_cvt_pk_bf16_f32 v16, v16, v17')
        A('s_lshl_b32 s14, s2, 2')
        A('v_mov_b32 v18, 0')
        self.seg_end('g')
        A('s_mov_b64 exec, 1')
        A(f'buffer_store_dword v16, v18, s[{OUT}:{OUT+3}], s14 offen')
        A('s_cmp_lg_u32 s2, 0')
        A(f's_cbranch_scc1 {lend}')
        A('v_mov_b32 v20, s96')
        A('v_mov_b32 v21, s97')
        A(f's_mov_b32 s14, {WS_E:#x}')
        A(f'buffer_store_dwordx2 v[20:21], v18, s[{WS}:{WS+3}], s14 offen sc1')
        A(f'{lend}:')
        self.stamp(10)
        self.write_stamps(11)


if __name__ == '__main__':
    out = sys.argv[1]
    kw = json.loads(sys.argv[2]) if len(sys.argv) > 2 else {}
    open(out, 'w').write(Gen(**kw).build())
```

```python
import sys, json, struct

KN = 'sequential_preLN__gqa_block_cached__mixer_token_mlp__decode'
HEADER = open('cdna_kernels/' + KN + '.s.ref').read().split('; Override launch')[0]


def f2u(x):
    return struct.unpack('<I', struct.pack('<f', x))[0]


LOG2E = 1.4426950408889634
SCALE = 128 ** -0.5
GC0 = -2.0 * (2.0 / 3.141592653589793) ** 0.5 * LOG2E
GC1 = GC0 * 0.044715

WS_QP = 0x0
WS_E = 0x40000
WS_F = 0x41000
WS_P1 = 0x42000
WS_P2 = 0x110000
WS_HV = 0x120000
HVS = 2048 + 256 + 128
WS_CNT = 0x128000
WS_SIZE = 0x20000000
STAMP_OFF = 0x10000000
TAGC = 0x9E3779B97F4A7C15
NPART = 6
LDS_Q = 0
LDS_O = 1024
LDS_ML = LDS_O + NPART * 2048
LDS_W = LDS_ML + 256
LDS_H = LDS_W + 1024
LDS_Y = LDS_H + 2048
LDS_F = LDS_Y + 64
LDS_TOTAL = LDS_F + 16

X, WQ, WS, WO, W1, B1, W2, B2, OUT = 36, 40, 44, 48, 52, 56, 60, 64, 68
W1F, B1F, W2R, RAW, GK0, GK1, GONE = 224, 228, 232, 234, 238, 240, 242


class Gen:
    def __init__(self, **kw):
        self.L = []
        self.o = dict(ring=12, pre=4, pre0=1, stamps=False, nt='nt', headmap='mod', pollsleep=8, spin=20000,
                      tc=8, sleep_many=16, sleep_few=1, cprio=2, sleep2b=2, sleep_most=32, ts=20, stageA=16, warm=True, fast=True)
        self.o.update(kw)
        self.lab = 0
        self.role = 'S'

    def A(self, s):
        self.L.append(s)

    def nop(self, n):
        if n > 0:
            self.A(f's_nop {n-1}')

    def label(self, base):
        self.lab += 1
        return f'L_{base}_{self.lab}'

    def srd(self, r, ptr, size):
        A = self.A
        A(f's_mov_b32 s{r}, s{ptr}')
        A(f's_and_b32 s{r+1}, s{ptr+1}, 0xffff')
        A(f's_mov_b32 s{r+2}, {size:#x}')
        A(f's_mov_b32 s{r+3}, 0x20000')

    def sreg(self, idx):
        return 80 + 2 * idx if idx < 8 else [98, 100, 22][idx - 8]

    def stamp(self, idx, sets=None):
        st = self.o['stamps']
        if not st:
            return
        if sets is not None and st not in sets:
            return
        r = self.sreg(idx)
        self.A(f's_memrealtime s[{r}:{r+1}]')

    def dpp(self, op, regs, ctrl, rm='0xf'):
        n = len(regs)
        if n < 3:
            self.nop(3 - n)
        for r in regs:
            self.A(f'{op}_dpp v{r}, v{r}, v{r} {ctrl} row_mask:{rm} bank_mask:0xf')

    def swap_red(self, op, regs, tmps, width):
        A = self.A
        for r, t in zip(regs, tmps):
            A(f'v_mov_b32 v{t}, v{r}')
        self.nop(2)
        for r, t in zip(regs, tmps):
            A(f'v_permlane{width}_swap_b32 v{r}, v{t}')
        if len(regs) < 3:
            self.nop(2)
        for r, t in zip(regs, tmps):
            A(f'{op} v{r}, v{r}, v{t}')

    def wave_sum_to_sgpr(self, regs, sregs):
        A = self.A
        self.dpp('v_add_f32', regs, 'quad_perm:[1,0,3,2]')
        self.dpp('v_add_f32', regs, 'quad_perm:[2,3,0,1]')
        self.dpp('v_add_f32', regs, 'row_half_mirror')
        self.dpp('v_add_f32', regs, 'row_mirror')
        self.dpp('v_add_f32', regs, 'row_bcast:15', '0xa')
        self.dpp('v_add_f32', regs, 'row_bcast:31', '0xc')
        self.nop(1)
        for r, s in zip(regs, sregs):
            A(f'v_readlane_b32 s{s}, v{r}, 63')
        self.nop(2)

    def rnd_bf16(self, dst, src):
        self.A(f'v_cvt_pk_bf16_f32 v{dst}, v{src}, v{src}')
        self.A(f'v_lshlrev_b32 v{dst}, 16, v{dst}')

    def rnd_bf16_pair(self, a, b, t):
        self.A(f'v_cvt_pk_bf16_f32 v{t}, v{a}, v{b}')
        self.A(f'v_lshlrev_b32 v{a}, 16, v{t}')
        self.A(f'v_and_b32 v{b}, 0xffff0000, v{t}')

    def ln_moments(self, vals, piv, t, s_a, s_b):
        A = self.A
        d = t[:8]
        s1, s2 = t[8], t[9]
        for k in range(0, 8, 2):
            A(f'v_pk_add_f32 v[{d[k]}:{d[k+1]}], v[{vals[k]}:{vals[k+1]}], v[{piv}:{piv+1}] neg_lo:[0,1] neg_hi:[0,1]')
        A(f'v_pk_mul_f32 v[{s1}:{s2}], v[{d[0]}:{d[1]}], v[{d[0]}:{d[1]}]')
        for k in range(2, 8, 2):
            A(f'v_pk_fma_f32 v[{s1}:{s2}], v[{d[k]}:{d[k+1]}], v[{d[k]}:{d[k+1]}], v[{s1}:{s2}]')
        A(f'v_pk_add_f32 v[{d[0]}:{d[1]}], v[{d[0]}:{d[1]}], v[{d[2]}:{d[3]}]')
        A(f'v_pk_add_f32 v[{d[4]}:{d[5]}], v[{d[4]}:{d[5]}], v[{d[6]}:{d[7]}]')
        A(f'v_add_f32 v{s2}, v{s1}, v{s2}')
        A(f'v_pk_add_f32 v[{d[0]}:{d[1]}], v[{d[0]}:{d[1]}], v[{d[4]}:{d[5]}]')
        A(f'v_add_f32 v{s1}, v{d[0]}, v{d[1]}')
        self.wave_sum_to_sgpr([s1, s2], [s_a, s_b])
        inv = f2u(1.0 / 512)
        A(f'v_mov_b32 v{s1}, {inv:#x}')
        A(f'v_mul_f32 v{s2}, s{s_b}, v{s1}')
        A(f'v_mul_f32 v{s1}, s{s_a}, v{s1}')
        A(f'v_fma_f32 v{s2}, -v{s1}, v{s1}, v{s2}')
        A(f'v_max_f32 v{s2}, 0, v{s2}')
        A(f'v_add_f32 v{s1}, v{s1}, v{piv}')

    def ln_finish(self, mean, var, vm, vr, t):
        A = self.A
        A(f'v_cvt_pk_bf16_f32 v{t}, v{mean}, v{var}')
        A(f'v_lshlrev_b32 v{vm}, 16, v{t}')
        A(f'v_and_b32 v{vr}, 0xffff0000, v{t}')
        A(f'v_add_f32 v{vr}, {f2u(1e-5):#x}, v{vr}')
        self.rnd_bf16(vr, vr)
        A(f'v_sqrt_f32 v{vr}, v{vr}')
        self.nop(1)
        self.rnd_bf16(vr, vr)
        A(f'v_rcp_f32 v{vr}, v{vr}')
        self.nop(1)

    def ln_apply(self, vals, outs, vm, vr, t):
        A = self.A
        for k in range(0, len(vals), 2):
            a, b = outs[k], outs[k + 1]
            A(f'v_sub_f32 v{a}, v{vals[k]}, v{vm}')
            A(f'v_sub_f32 v{b}, v{vals[k+1]}, v{vm}')
            self.rnd_bf16_pair(a, b, t)
            A(f'v_mul_f32 v{a}, v{a}, v{vr}')
            A(f'v_mul_f32 v{b}, v{b}, v{vr}')
            self.rnd_bf16_pair(a, b, t)

    def lds_wait(self, vaddr, off, vt=11, st=15):
        A = self.A
        lp = self.label('ldsw')
        A(f's_mov_b32 s{st}, {self.o["spin"]*20}')
        A(f'{lp}:')
        A(f'ds_read_b32 v{vt}, v{vaddr} offset:{off}')
        A(f's_sub_u32 s{st}, s{st}, 1')
        A(f's_cmp_eq_u32 s{st}, 0')
        A(f's_cbranch_scc1 {lp}_x')
        A('s_waitcnt lgkmcnt(0)')
        A(f'v_cmp_eq_u32 vcc, 0, v{vt}')
        A(f's_cbranch_vccz {lp}_x')
        A('s_sleep 1')
        A(f's_branch {lp}')
        A(f'{lp}_x:')
        A('s_waitcnt lgkmcnt(0)')

    def seg_begin(self, name):
        self.A(f'L_seg_{name}:')

    def seg_end(self, name):
        if self.o['warm']:
            self.A(f's_cbranch_execz L_ret_{name}')

    def warm_pass(self, names):
        if not self.o['warm']:
            return
        A = self.A
        A('s_mov_b64 exec, 0')
        for n in names:
            A(f's_branch L_seg_{n}')
            A(f'L_ret_{n}:')
        A('s_mov_b64 exec, -1')

    def canon(self, regs):
        for r in regs:
            self.A(f'v_min_u32 v{r}, 0xfffffffe, v{r}')

    def sel_masks(self, m0, m1):
        A = self.A
        A('v_and_b32 v4, 1, v0')
        A('v_lshlrev_b32 v4, 4, v4')
        A('v_mov_b32 v5, 0xffff')
        A('v_lshlrev_b32 v5, v4, v5')
        A('v_and_b32 v4, 2, v0')
        A('v_cmp_eq_u32 vcc, 0, v4')
        A('v_mov_b32 v6, 0')
        A('s_nop 0')
        A(f'v_cndmask_b32 v{m0}, v6, v5, vcc')
        A(f'v_cndmask_b32 v{m1}, v5, v6, vcc')

    def build(self):
        A = self.A
        o = self.o
        A(HEADER.rstrip('\n'))
        A(f'; @launch grid=(256,1,1) block=(512,1,1) lds={LDS_TOTAL}')
        A('.amdgcn_target "amdgcn-amd-amdhsa--gfx950"')
        A('.text')
        A(f'.globl {KN}_kernel')
        A('.p2align 8')
        A(f'.type {KN}_kernel,@function')
        A(f'{KN}_kernel:')
        A('s_cmp_ge_u32 s2, 256')
        A('s_cbranch_scc1 L_end')
        A('s_load_dwordx16 s[4:19], s[0:1], 0')
        A('s_load_dwordx8 s[20:27], s[0:1], 64')
        A('s_load_dwordx2 s[28:29], s[0:1], 96')
        self.stamp(0)
        A('v_lshrrev_b32 v1, 6, v0')
        A('v_and_b32 v0, 63, v0')
        A('v_readfirstlane_b32 s30, v1')
        if o['headmap'] == 'mod':
            A('s_and_b32 s31, s2, 7')
            A('s_lshr_b32 s32, s2, 3')
        elif o['headmap'] == 'rot':
            A('s_lshr_b32 s32, s2, 3')
            A('s_add_u32 s31, s2, s32')
            A('s_and_b32 s31, s31, 7')
        elif o['headmap'] == 'x4':
            A('s_lshr_b32 s31, s2, 3')
            A('s_lshr_b32 s32, s31, 3')
            A('s_and_b32 s31, s31, 7')
            A('s_and_b32 s3, s2, 7')
            A('s_lshl_b32 s3, s3, 2')
            A('s_add_u32 s32, s32, s3')
        elif o['headmap'] == 'div':
            A('s_lshr_b32 s31, s2, 5')
            A('s_and_b32 s32, s2, 31')
        else:
            m = int(o['headmap'])
            A(f's_and_b32 s31, s2, {7 & ~(m-1)}')
            A('s_lshr_b32 s32, s2, 3')
            A(f's_and_b32 s3, s32, {m-1}')
            A('s_or_b32 s31, s31, s3')
            A(f's_and_b32 s32, s32, {31 & ~(m-1)}')
            A(f's_and_b32 s3, s2, {m-1}')
            A('s_or_b32 s32, s32, s3')
        A('s_lshl_b32 s3, s31, 5')
        A('s_add_u32 s3, s3, s32')
        A('s_sub_u32 s33, s30, 4')
        A('s_lshr_b32 s34, s32, 3')
        A('s_and_b32 s35, s32, 7')
        A('s_cmp_lt_u32 s33, 2')
        A('s_cbranch_scc1 L_hq')
        A('s_cmp_ge_u32 s30, 4')
        A('s_cbranch_scc1 L_cover')
        TC = o['tc']
        TS = o['ts']
        o['pool'] = 128 - 4 * TS - 2 * TC
        assert TS % 4 == 0 and TC % 4 == 0 and o['pool'] % 4 == 0 and (o['pool'] == 0 or o['pool'] >= 12) and TS >= TC
        self.streamer(TS, TC, False)
        self.srd(W1, 16, 3584)
        self.srd(B1, 18, 3584)
        self.srd(W2, 20, 3584)
        self.mlp_weights_load()
        A('s_waitcnt lgkmcnt(0)')
        A('s_barrier')
        A('s_waitcnt vmcnt(0)')
        self.mlp_weights_prep()
        self.srd(WS, 28, WS_SIZE)
        self.srd(OUT, 24, 1024)
        A('v_lshlrev_b32 v1, 4, v0')
        A(f'v_mov_b32 v149, {LDS_H}')
        A('s_barrier')
        A('s_branch L_b4')
        A('L_cover:')
        self.streamer(TC, TC, True)
        self.srd(X, 4, 1024)
        self.srd(WS, 28, WS_SIZE)
        A('s_branch L_pref')
        A('L_hq:')
        self.helper_q()
        A('L_pref:')
        self.helper_tail()
        A('L_b4:')
        self.final()
        A('L_end:')
        A('s_endpgm')
        A('.section .rodata,"a"')
        A('.p2align 6')
        A(f'.amdhsa_kernel {KN}_kernel')
        A('  .amdhsa_next_free_vgpr 256')
        A('  .amdhsa_next_free_sgpr 102')
        A('  .amdhsa_accum_offset 256')
        A('  .amdhsa_group_segment_fixed_size 0')
        A('  .amdhsa_kernarg_size 104')
        A('  .amdhsa_user_sgpr_count 2')
        A('  .amdhsa_user_sgpr_kernarg_segment_ptr 1')
        A('  .amdhsa_system_sgpr_workgroup_id_x 1')
        A('  .amdhsa_float_denorm_mode_32 3')
        A('.end_amdhsa_kernel')
        return '\n'.join(self.L) + '\n'

    def write_stamps(self, n):
        if not self.o['stamps']:
            return
        A = self.A
        if self.o.get('dbgstamps'):
            A('s_waitcnt lgkmcnt(0)')
            A('s_mov_b64 exec, 1')
            self.srd(76, 26, 256)
            A('v_mov_b32 v1, 0')
            def amax(sreg, off, inv):
                A(f'v_mov_b32 v2, s{sreg}')
                if inv: A('v_not_b32 v2, v2')
                A(f'buffer_atomic_umax v2, v1, s[76:79], 0 offen offset:{off} sc1')
                A('s_nop 1')
            amax(self.sreg(10), 0, False)
            amax(self.sreg(0), 4, True)
            A('s_cmp_ge_u32 s30, 4')
            A('s_cbranch_scc1 L_dbg_x')
            amax(self.sreg(4), 8, False)
            amax(self.sreg(4), 12, True)
            amax(self.sreg(2), 16, False)
            amax(self.sreg(3), 20, False)
            amax(self.sreg(3), 24, True)
            A('L_dbg_x:')
            A('s_waitcnt vmcnt(0)')
            return
        A('s_waitcnt lgkmcnt(0)')
        A('s_mov_b64 exec, 1')
        A('s_lshl_b32 s33, s2, 3')
        A('s_add_u32 s33, s33, s30')
        A('s_lshl_b32 s33, s33, 7')
        A(f's_add_u32 s33, s33, {STAMP_OFF:#x}')
        self.srd(76, 28, WS_SIZE)
        A('v_mov_b32 v1, 0')
        for k in range(n):
            A(f'v_mov_b32 v2, s{self.sreg(k)}')
            A(f'v_mov_b32 v3, s{self.sreg(k)+1}')
            A(f'buffer_store_dwordx2 v[2:3], v1, s[76:79], s33 offen offset:{8*k}')
            A('s_nop 1')
        A('s_waitcnt vmcnt(0)')

    def mlp_weights_load(self):
        A = self.A
        A('v_lshlrev_b32 v4, 3, v0')
        A('s_lshl_b32 s14, s30, 9')
        A(f'buffer_load_dwordx2 v[{RAW}:{RAW+1}], v4, s[{W1}:{W1+3}], s14 offen')
        A(f'buffer_load_dwordx2 v[{RAW+2}:{RAW+3}], v4, s[{B1}:{B1+3}], s14 offen')
        A(f'buffer_load_dwordx2 v[{W2R}:{W2R+1}], v4, s[{W2}:{W2+3}], s14 offen')

    def mlp_weights_prep(self):
        A = self.A
        for k in range(2):
            A(f'v_lshlrev_b32 v{W1F+2*k}, 16, v{RAW+k}')
            A(f'v_and_b32 v{W1F+2*k+1}, 0xffff0000, v{RAW+k}')
            A(f'v_lshlrev_b32 v{B1F+2*k}, 16, v{RAW+2+k}')
            A(f'v_and_b32 v{B1F+2*k+1}, 0xffff0000, v{RAW+2+k}')
            A(f'v_mov_b32 v{GK0+k}, {f2u(GC0):#x}')
            A(f'v_mov_b32 v{GK1+k}, {f2u(GC1):#x}')
            A(f'v_mov_b32 v{GONE+k}, 1.0')

    def streamer(self, T, TC, cover):
        A = self.A
        o = self.o
        R = min(o['ring'], 2 * T)
        nt = o['nt']
        N = 2 * T
        RB = 64
        assert RB + 16 * R <= 256
        vK, vV = 1, 2
        Q = 4
        C = [20, 24]
        G = 28
        S2 = 30
        vmax, vl, vnm = 46, 47, 3
        ACC = 48
        D = 56
        M0, M1 = 60, 61
        TA = [20, 22, 24, 26]
        U = [28, 29, 62, 63]
        KT = [56, 57, 58, 59, 62, 63]
        stp = None if not cover else ()

        def tile_of(t):
            return 6 * t if t < TC else 6 * TC + 4 * (t - TC)

        A('v_and_b32 v4, 3, v0')
        A('v_lshlrev_b32 v4, 10, v4')
        A('v_bfe_u32 v5, v0, 2, 2')
        A('v_lshlrev_b32 v5, 8, v5')
        A('v_lshrrev_b32 v6, 4, v0')
        A('v_lshlrev_b32 v6, 4, v6')
        A(f'v_add3_u32 v{vK}, v4, v5, v6')
        A(f'v_lshlrev_b32 v{vV}, 4, v0')
        A('s_lshl_b32 s44, s31, 24')
        A('s_lshl_b32 s45, s32, 19')
        A('s_add_u32 s44, s44, s45')
        if cover:
            A(f's_setprio {o["cprio"]}')
            A('s_sub_u32 s46, s30, 2')
        else:
            A('s_mov_b32 s46, s30')
        A('s_lshl_b32 s45, s46, 12')
        A('s_add_u32 s44, s44, s45')
        A('s_waitcnt lgkmcnt(0)')
        self.srd(36, 6, 0x8000000)
        self.srd(40, 8, 0x8000000)

        def issue(n):
            r = RB + (n % R) * 16
            t = n % T
            A(f's_add_u32 s45, s44, {tile_of(t)*4096:#x}')
            for j in range(4):
                if n < T:
                    A(f'buffer_load_dwordx4 v[{r+4*j}:{r+4*j+3}], v{vK}, s[36:39], s45 offen offset:{64*j} {nt}')
                else:
                    A(f'buffer_load_dwordx4 v[{r+4*j}:{r+4*j+3}], v{vV}, s[40:43], s45 offen offset:{1024*j} {nt}')

        pre0, pre = o['pre0'], o['pre']
        for n in range(pre0):
            issue(n)
        A('s_barrier')
        for n in range(pre0, pre):
            issue(n)
        A('s_mov_b32 s50, 0x22222222'); A('s_mov_b32 s51, 0x22222222')
        A('s_mov_b32 s52, 0x44444444'); A('s_mov_b32 s53, 0x44444444')
        A('s_mov_b32 s54, 0x88888888'); A('s_mov_b32 s55, 0x88888888')
        A(f's_mov_b32 s56, {f2u(SCALE):#x}')
        A(f's_mov_b32 s57, {f2u(LOG2E):#x}')
        self.sel_masks(M0, M1)
        A(f'v_mov_b32 v{vmax}, 0xff800000')
        A(f'v_mov_b32 v{vl}, 0')
        for k in range(8):
            A(f'v_mov_b32 v{ACC+k}, 0')
        A('v_bfe_u32 v62, v0, 2, 2')
        A('v_lshlrev_b32 v62, 8, v62')
        A('v_lshrrev_b32 v63, 4, v0')
        A('v_lshl_add_u32 v62, v63, 4, v62')
        for n in range(pre, R):
            A(f's_waitcnt vmcnt({4*(pre-1)})')
            issue(n)
        self.stamp(1)
        A('s_barrier')
        for j in range(4):
            A(f'ds_read_b128 v[{Q+4*j}:{Q+4*j+3}], v62 offset:{LDS_Q + 64*j}')
        self.stamp(2)
        A('s_waitcnt lgkmcnt(0)')

        def kpost(t):
            c = C[t & 1]
            tt = t & 3
            if tt == 0:
                A(f'v_cvt_pk_bf16_f32 v{G}, v{c}, v{c+1}')
                A(f'v_cvt_pk_bf16_f32 v{G+1}, v{c+2}, v{c+3}')
            else:
                A(f'v_cvt_pk_bf16_f32 v{KT[4]}, v{c}, v{c+1}')
                A(f'v_cvt_pk_bf16_f32 v{KT[5]}, v{c+2}, v{c+3}')
                sm = 48 + 2 * tt
                A(f'v_cndmask_b32 v{G}, v{G}, v{KT[4]}, s[{sm}:{sm+1}]')
                A(f'v_cndmask_b32 v{G+1}, v{G+1}, v{KT[5]}, s[{sm}:{sm+1}]')
            if tt == 3:
                grp = t // 4
                u = KT[:4]
                A(f'v_lshlrev_b32 v{u[0]}, 16, v{G}')
                A(f'v_and_b32 v{u[1]}, 0xffff0000, v{G}')
                A(f'v_lshlrev_b32 v{u[2]}, 16, v{G+1}')
                A(f'v_and_b32 v{u[3]}, 0xffff0000, v{G+1}')
                for k in range(4):
                    A(f'v_mul_f32 v{u[k]}, s56, v{u[k]}')
                A(f'v_max3_f32 v{vmax}, v{vmax}, v{u[0]}, v{u[1]}')
                A(f'v_max3_f32 v{vmax}, v{vmax}, v{u[2]}, v{u[3]}')
                A(f'v_cvt_pk_bf16_f32 v{S2+2*grp}, v{u[0]}, v{u[1]}')
                A(f'v_cvt_pk_bf16_f32 v{S2+2*grp+1}, v{u[2]}, v{u[3]}')

        extra = [0]

        def wait_for(n):
            issued = min(n + R - 1, N - 1)
            A(f's_waitcnt vmcnt({4*(issued-n) + extra[0]})')

        def finish_l():
            self.dpp('v_add_f32', [vl], 'quad_perm:[1,0,3,2]')
            self.dpp('v_add_f32', [vl], 'quad_perm:[2,3,0,1]')
            self.swap_red('v_add_f32', [vl], [62], 16)
            self.swap_red('v_add_f32', [vl], [62], 32)
            A('s_lshl_b32 s45, s46, 11')
            A(f's_add_u32 s45, s45, {LDS_O}')
            A('v_lshlrev_b32 v28, 5, v0')
            A('v_add_u32 v28, s45, v28')
            A('s_lshl_b32 s45, s46, 5')
            A(f's_add_u32 s45, s45, {LDS_ML}')
            A('v_bfe_u32 v29, v0, 2, 2')
            A('v_lshlrev_b32 v29, 3, v29')
            A('v_add_u32 v29, s45, v29')
            A(f'ds_write_b64 v29, v[{vmax}:{vl}]')

        pool = (not cover) and o['pool'] > 0
        PBASE = 128 - o['pool']
        PQ = o['pool'] // 4 - 2
        NPOOL = 32 * PQ
        if pool:
            busy = {(N - 1 - k) % R for k in range(5)}
            free = [x for x in range(R) if x not in busy]
            PS = [(RB + 16 * free[2 * k], RB + 16 * free[2 * k + 1]) for k in range(3)]
        AI = [30, 31]
        vZ, vBP = 32, 33

        def atomic(k):
            A('s_mov_b64 exec, 1')
            A(f'v_mov_b32 v{AI[k & 1]}, 1')
            A(f'buffer_atomic_add v{AI[k & 1]}, v{vZ}, s[60:63], s58 offen sc0 sc1')
            A('s_mov_b64 exec, -1')

        def pool_loads(k):
            kr, vr = PS[k % 3]
            for j in range(4):
                A(f'buffer_load_dwordx4 v[{kr+4*j}:{kr+4*j+3}], v{vK}, s[36:39], s45 offen offset:{64*j} {nt}')
            for j in range(4):
                A(f'buffer_load_dwordx4 v[{vr+4*j}:{vr+4*j+3}], v{vV}, s[40:43], s45 offen offset:{1024*j} {nt}')

        def pool_issue(k):
            A(f'v_readfirstlane_b32 s45, v{AI[k & 1]}')
            A(f's_cmp_lt_u32 s45, {NPOOL}')
            A('s_cselect_b32 s59, s59, 0')
            A(f's_mov_b32 s{64 + k % 3}, s59')
            if PQ & (PQ - 1) == 0:
                A(f's_lshr_b32 s47, s45, {PQ.bit_length() - 1}')
                A(f's_and_b32 s45, s45, {PQ - 1}')
            else:
                A(f's_mul_hi_u32 s47, s45, {(1 << 32) // PQ + 1:#x}')
                A(f's_mul_i32 s48, s47, {PQ}')
                A('s_sub_u32 s45, s45, s48')
            A('s_lshl_b32 s47, s47, 19')
            A('s_lshl_b32 s45, s45, 14')
            A('s_add_u32 s45, s45, s47')
            A('s_add_u32 s45, s45, s67')
            A('s_cmp_lg_u32 s59, 0')
            A('s_cselect_b32 s45, s45, 0x10000000')
            A('s_cselect_b32 s58, s58, 0x30000000')
            atomic(k + 1)
            pool_loads(k)

        def pool_prologue(rem):
            if rem == 3:
                self.srd(60, 28, WS_SIZE)
                A('s_lshl_b32 s58, s31, 2')
                A('s_add_u32 s58, s58, s30')
                A('s_lshl_b32 s58, s58, 8')
                A(f's_add_u32 s58, s58, {WS_CNT:#x}')
                A('s_lshl_b32 s67, s31, 24')
                A('s_lshl_b32 s45, s30, 12')
                A('s_add_u32 s67, s67, s45')
                A(f's_add_u32 s67, s67, {(PBASE + 8) * 4096:#x}')
                A('s_mov_b32 s59, 1')
                A('s_mov_b32 s64, 1')
                A('s_mov_b32 s65, 1')
                A(f'v_mov_b32 v{vZ}, 0')
                A(f'v_lshrrev_b32 v{vBP}, 4, v0')
                A(f'v_lshlrev_b32 v{vBP}, 4, v{vBP}')
                A(f's_add_u32 s45, s44, {PBASE * 4096:#x}')
                pool_loads(0)
                extra[0] += 8
            elif rem == 1:
                A(f'v_mov_b32 v34, {LDS_F}')
                self.lds_wait(34, 4, vt=35, st=45)
                atomic(2)
                A(f's_add_u32 s45, s44, {(PBASE + 4) * 4096:#x}')
                pool_loads(1)
                extra[0] += 9

        def pool_loop():
            PC = 36
            PU = [40, 41, 42, 43]
            lp = self.label('pool')
            A(f'{lp}:')
            for u in range(6):
                kr, vr = PS[u % 3]
                A('s_waitcnt vmcnt(8)')
                A(f's_cmp_eq_u32 s{64 + u % 3}, 0')
                A(f's_cbranch_scc1 {lp}_x')
                for j in range(4):
                    cc = '0' if j == 0 else f'v[{PC}:{PC+3}]'
                    A(f'v_mfma_f32_16x16x32_bf16 v[{PC}:{PC+3}], v[{kr+4*j}:{kr+4*j+3}], v[{Q+4*j}:{Q+4*j+3}], {cc}')
                pool_issue(u + 2)
                A(f'v_cvt_pk_bf16_f32 v{PU[0]}, v{PC}, v{PC+1}')
                A(f'v_cvt_pk_bf16_f32 v{PU[2]}, v{PC+2}, v{PC+3}')
                A(f'v_and_b32 v{PU[1]}, 0xffff0000, v{PU[0]}')
                A(f'v_lshlrev_b32 v{PU[0]}, 16, v{PU[0]}')
                A(f'v_and_b32 v{PU[3]}, 0xffff0000, v{PU[2]}')
                A(f'v_lshlrev_b32 v{PU[2]}, 16, v{PU[2]}')
                for k in range(4):
                    A(f'v_mul_f32 v{PU[k]}, s56, v{PU[k]}')
                self.rnd_bf16_pair(PU[0], PU[1], PC)
                self.rnd_bf16_pair(PU[2], PU[3], PC + 1)
                A(f'v_max3_f32 v{PC}, v{PU[0]}, v{PU[1]}, v{PU[2]}')
                A(f'v_max_f32 v{PC}, v{PC}, v{PU[3]}')
                A(f'v_cmp_gt_f32 vcc, v{PC}, v{vmax}')
                A(f's_cbranch_vccz {lp}_k{u}')
                self.swap_red('v_max_f32', [PC], [PC + 1], 16)
                self.swap_red('v_max_f32', [PC], [PC + 1], 32)
                A(f'v_max_f32 v{PC}, v{PC}, v{vmax}')
                A(f'v_sub_f32 v{PC+1}, v{vmax}, v{PC}')
                A(f'v_mul_f32 v{PC+1}, s57, v{PC+1}')
                A(f'v_exp_f32 v{PC+1}, v{PC+1}')
                A(f'v_mov_b32 v{vmax}, v{PC}')
                A(f'v_mul_f32 v{vnm}, s57, v{PC}')
                A(f'v_sub_f32 v{vnm}, 0, v{vnm}')
                A(f'v_mul_f32 v{vl}, v{vl}, v{PC+1}')
                A(f'ds_bpermute_b32 v{PC+2}, v{vBP}, v{PC+1}')
                A('s_waitcnt lgkmcnt(0)')
                for k in range(8):
                    A(f'v_mul_f32 v{ACC+k}, v{ACC+k}, v{PC+2}')
                A(f'{lp}_k{u}:')
                for k in range(4):
                    A(f'v_fma_f32 v{PU[k]}, v{PU[k]}, s57, v{vnm}')
                for k in range(4):
                    A(f'v_exp_f32 v{PU[k]}, v{PU[k]}')
                self.nop(1)
                for k in range(4):
                    A(f'v_cvt_pk_bf16_f32 v{D+k}, v{PU[k]}, v{PU[k]}')
                for k in range(4):
                    A(f'v_and_b32 v{TA[k]}, v{D+k}, v{M0}')
                    A(f'v_and_b32 v{TA[k]+1}, v{D+k}, v{M1}')
                A(f'v_add_f32 v{PU[0]}, v{PU[0]}, v{PU[1]}')
                A(f'v_add_f32 v{PU[2]}, v{PU[2]}, v{PU[3]}')
                for k in range(4):
                    A(f'v_mfma_f32_16x16x16_bf16 v[{ACC}:{ACC+3}], v[{TA[k]}:{TA[k]+1}], v[{vr+4*k}:{vr+4*k+1}], v[{ACC}:{ACC+3}]')
                    A(f'v_mfma_f32_16x16x16_bf16 v[{ACC+4}:{ACC+7}], v[{TA[k]}:{TA[k]+1}], v[{vr+4*k+2}:{vr+4*k+3}], v[{ACC+4}:{ACC+7}]')
                A(f'v_add_f32 v{PU[0]}, v{PU[0]}, v{PU[2]}')
                A(f'v_fmac_f32 v{vl}, 0.25, v{PU[0]}')
            A(f's_branch {lp}')
            A(f'{lp}_x:')

        for n in range(T):
            r = RB + (n % R) * 16
            c = C[n & 1]
            wait_for(n)
            for j in range(4):
                cc = '0' if j == 0 else f'v[{c}:{c+3}]'
                A(f'v_mfma_f32_16x16x32_bf16 v[{c}:{c+3}], v[{r+4*j}:{r+4*j+3}], v[{Q+4*j}:{Q+4*j+3}], {cc}')
            if n + R < N:
                issue(n + R)
            else:
                self.nop(5)
            if n >= 1:
                kpost(n - 1)
        self.nop(9)
        kpost(T - 1)
        self.dpp('v_max_f32', [vmax], 'quad_perm:[1,0,3,2]')
        self.dpp('v_max_f32', [vmax], 'quad_perm:[2,3,0,1]')
        self.swap_red('v_max_f32', [vmax], [62], 16)
        self.swap_red('v_max_f32', [vmax], [62], 32)
        self.rnd_bf16(vmax, vmax)
        A(f'v_mul_f32 v{vnm}, s57, v{vmax}')
        A(f'v_sub_f32 v{vnm}, 0, v{vnm}')
        self.stamp(3)
        for t in range(T):
            n = T + t
            r = RB + (n % R) * 16
            tt = t & 3
            if tt == 0:
                grp = t // 4
                A(f'v_lshlrev_b32 v{U[0]}, 16, v{S2+2*grp}')
                A(f'v_and_b32 v{U[1]}, 0xffff0000, v{S2+2*grp}')
                A(f'v_lshlrev_b32 v{U[2]}, 16, v{S2+2*grp+1}')
                A(f'v_and_b32 v{U[3]}, 0xffff0000, v{S2+2*grp+1}')
                for k in range(4):
                    A(f'v_fma_f32 v{U[k]}, v{U[k]}, s57, v{vnm}')
                for k in range(4):
                    A(f'v_exp_f32 v{U[k]}, v{U[k]}')
                self.nop(1)
                for k in range(4):
                    A(f'v_cvt_pk_bf16_f32 v{D+k}, v{U[k]}, v{U[k]}')
                A(f'v_add_f32 v{U[0]}, v{U[0]}, v{U[1]}')
                A(f'v_add_f32 v{U[2]}, v{U[2]}, v{U[3]}')
                A(f'v_add_f32 v{vl}, v{vl}, v{U[0]}')
                A(f'v_add_f32 v{vl}, v{vl}, v{U[2]}')
            if pool and t >= T - 4:
                pool_prologue(T - 1 - t)
            if t == T - 1 and not pool:
                finish_l()
            qp = f'quad_perm:[{tt},{tt},{tt},{tt}] row_mask:0xf bank_mask:0xf'
            for k in range(4):
                A(f'v_and_b32_dpp v{TA[k]}, v{D+k}, v{M0} {qp}')
                A(f'v_and_b32_dpp v{TA[k]+1}, v{D+k}, v{M1} {qp}')
            wait_for(n)
            self.nop(1)
            for k in range(4):
                A(f'v_mfma_f32_16x16x16_bf16 v[{ACC}:{ACC+3}], v[{TA[k]}:{TA[k]+1}], v[{r+4*k}:{r+4*k+1}], v[{ACC}:{ACC+3}]')
                A(f'v_mfma_f32_16x16x16_bf16 v[{ACC+4}:{ACC+7}], v[{TA[k]}:{TA[k]+1}], v[{r+4*k+2}:{r+4*k+3}], v[{ACC+4}:{ACC+7}]')
            if n + R < N:
                issue(n + R)
        if pool:
            self.stamp(5)
            pool_loop()
            self.seg_begin('h')
            finish_l()
        else:
            if not cover: self.seg_begin('h')
            self.nop(7)
        self.stamp(4, None if not cover else ())
        A(f'ds_write_b128 v28, v[{ACC}:{ACC+3}]')
        A(f'ds_write_b128 v28, v[{ACC+4}:{ACC+7}] offset:16')
        if not cover: self.seg_end('h')

    def helper_q(self):
        A = self.A
        o = self.o
        nt = o['nt']
        spin = o['spin']
        A('s_setprio 3')
        A('v_lshlrev_b32 v1, 4, v0')
        A('v_and_b32 v2, 15, v0')
        A('v_lshrrev_b32 v3, 4, v0')
        A('s_lshr_b32 s99, s32, 2')
        A('s_waitcnt lgkmcnt(0)')
        A(f's_load_dwordx2 s[96:97], s[28:29], {WS_E:#x}')
        A('s_mov_b32 s0, s99')
        A('s_and_b32 s1, s32, 3')
        self.srd(X, 4, 1024)
        self.srd(WQ, 10, 0x400000)
        A('s_cmp_lg_u32 s33, 0')
        A('s_cbranch_scc1 L_h_b0')
        XA, XB, XP, WQR = 8, 12, 20, 64
        A('v_lshlrev_b32 v4, 17, v3')
        A('v_lshl_add_u32 v4, v2, 4, v4')
        A('s_lshl_b32 s14, s0, 19')
        A('s_lshl_b32 s15, s31, 2')
        A('s_add_u32 s15, s15, s1')
        A('s_lshl_b32 s15, s15, 8')
        A('s_add_u32 s14, s14, s15')
        A(f'buffer_load_dwordx4 v[{XA}:{XA+3}], v1, s[{X}:{X+3}], 0 offen')
        A('v_lshlrev_b32 v6, 5, v3')
        A('s_lshl_b32 s15, s0, 7')
        A(f'buffer_load_dwordx4 v[{XB}:{XB+3}], v6, s[{X}:{X+3}], s15 offen')
        A(f'buffer_load_dwordx4 v[{XB+4}:{XB+7}], v6, s[{X}:{X+3}], s15 offen offset:16')
        A('v_mov_b32 v5, 0')
        A(f'buffer_load_dword v{XP}, v5, s[{X}:{X+3}], 0 offen')
        for k in range(16):
            A(f'buffer_load_dwordx4 v[{WQR+4*k}:{WQR+4*k+3}], v4, s[{WQ}:{WQ+3}], s14 offen {nt}')
            A('s_add_u32 s14, s14, 8192')
        A(f'v_mov_b32 v7, {LDS_F}')
        A('ds_write_b32 v7, v5')
        A('ds_write_b32 v7, v5 offset:4')
        A('s_waitcnt lgkmcnt(0)')
        A('L_h_b0:')
        self.stamp(4, ('q',))
        A('s_barrier')
        self.srd(WS, 28, WS_SIZE)
        A('s_waitcnt lgkmcnt(0)')
        A(f's_add_u32 s96, s96, {TAGC & 0xffffffff:#x}')
        A(f's_addc_u32 s97, s97, {TAGC >> 32:#x}')
        A('s_cmp_lg_u32 s33, 0')
        A('s_cbranch_scc1 L_h_qgather')
        self.sel_masks(44, 45)
        A('v_lshlrev_b32 v46, 6, v2')
        A('v_lshl_add_u32 v46, v3, 4, v46')
        A('s_lshl_b32 s6, s31, 15')
        A('s_lshl_b32 s15, s0, 12')
        A('s_add_u32 s6, s6, s15')
        A('s_lshl_b32 s15, s1, 10')
        A('s_add_u32 s6, s6, s15')
        A('v_and_b32 v5, 1, v3')
        A('v_cmp_eq_u32 s[72:73], 1, v5')
        A('v_cmp_lt_u32 s[74:75], 1, v3')
        A('v_mov_b32 v26, s96')
        A('v_mov_b32 v27, s97')
        A('s_waitcnt vmcnt(16)')
        self.stamp(6, ('q',))
        V8 = list(range(28, 36))
        for k in range(4):
            A(f'v_lshlrev_b32 v{V8[2*k]}, 16, v{XA+k}')
            A(f'v_and_b32 v{V8[2*k+1]}, 0xffff0000, v{XA+k}')
        A(f'v_lshlrev_b32 v{XP}, 16, v{XP}')
        A(f'v_mov_b32 v{XP+1}, v{XP}')
        TT = list(range(48, 58))
        self.ln_moments(V8, XP, TT, 76, 77)
        self.ln_finish(TT[8], TT[9], 22, 23, 24)
        self.stamp(7, ('q',))
        V16 = list(range(28, 44))
        for k in range(8):
            A(f'v_lshlrev_b32 v{V16[2*k]}, 16, v{XB+k}')
            A(f'v_and_b32 v{V16[2*k+1]}, 0xffff0000, v{XB+k}')
        self.ln_apply(V16, V16, 22, 23, 24)
        QA = 48
        for k in range(16):
            a = 56 + 2 * (k & 3)
            A(f'v_cvt_pk_bf16_f32 v24, v{V16[k]}, v{V16[k]}')
            A(f'v_and_b32 v{a}, v24, v44')
            A(f'v_and_b32 v{a+1}, v24, v45')
            A(f's_waitcnt vmcnt({15 - k})')
            if k == 0: self.stamp(8, ('q',))
            if k == 15: self.stamp(9, ('q',))
            self.nop(1)
            c0 = '0' if k == 0 else f'v[{QA}:{QA+3}]'
            c1 = '0' if k == 0 else f'v[{QA+4}:{QA+7}]'
            A(f'v_mfma_f32_16x16x16_bf16 v[{QA}:{QA+3}], v[{a}:{a+1}], v[{WQR+4*k}:{WQR+4*k+1}], {c0}')
            A(f'v_mfma_f32_16x16x16_bf16 v[{QA+4}:{QA+7}], v[{a}:{a+1}], v[{WQR+4*k+2}:{WQR+4*k+3}], {c1}')
        self.nop(8)
        for k in range(4):
            A(f'v_cndmask_b32 v{QA+k}, v{QA+k}, v{QA+4+k}, s[74:75]')
        A(f'v_cndmask_b32 v24, v{QA}, v{QA+2}, s[72:73]')
        A(f'v_cndmask_b32 v25, v{QA+1}, v{QA+3}, s[72:73]')
        A(f'buffer_store_dwordx4 v[24:27], v46, s[{WS}:{WS+3}], s6 offen offset:{WS_QP} sc1')
        self.stamp(1)
        A('v_lshlrev_b32 v5, 10, v0')
        A('s_lshl_b32 s14, s31, 15')
        A('s_mov_b32 exec_hi, 0')
        A(f's_mov_b32 s15, {spin}')
        lp = self.label('probe')
        A(f'{lp}:')
        A(f's_sleep {o["pollsleep"]}')
        A(f'buffer_load_dwordx2 v[28:29], v5, s[{WS}:{WS+3}], s14 offen offset:{WS_QP+1016} sc1')
        A('s_sub_u32 s15, s15, 1')
        A('s_cmp_eq_u32 s15, 0')
        A(f's_cbranch_scc1 {lp}_x')
        A('s_waitcnt vmcnt(0)')
        A('v_cmp_ne_u64 vcc, s[96:97], v[28:29]')
        A('s_and_b64 exec, exec, vcc')
        A(f's_cbranch_execnz {lp}')
        A(f'{lp}_x:')
        A('s_mov_b64 exec, -1')
        A('v_mov_b32 v6, 1')
        A('ds_write_b32 v7, v6')
        self.stamp(5, ('q',))
        A('L_h_qgather:')
        A(f'v_mov_b32 v7, {LDS_F}')
        A('s_lshl_b32 s14, s31, 15')
        A('s_lshl_b32 s15, s33, 11')
        A('s_add_u32 s14, s14, s15')
        self.lds_wait(7, 0)
        A(f's_mov_b32 s15, {spin}')
        lp = self.label('pollqd')
        A(f'{lp}:')
        A('s_mov_b32 s8, s14')
        for k in range(8):
            A(f'buffer_load_dwordx4 v[{64+8*k}:{67+8*k}], v1, s[{WS}:{WS+3}], s8 offen offset:{WS_QP} sc1')
            A(f'buffer_load_dwordx4 v[{68+8*k}:{71+8*k}], v1, s[{WS}:{WS+3}], s8 offen offset:{WS_QP+1024} sc1')
            if k < 7:
                A('s_add_u32 s8, s8, 4096')
        A('s_sub_u32 s15, s15, 1')
        A('s_cmp_eq_u32 s15, 0')
        A(f's_cbranch_scc1 {lp}_x')
        for k in range(16):
            A(f's_waitcnt vmcnt({15-k})')
            if k == 0:
                A(f'v_cmp_ne_u64 s[76:77], s[96:97], v[{66+4*k}:{67+4*k}]')
            else:
                A(f'v_cmp_ne_u64 vcc, s[96:97], v[{66+4*k}:{67+4*k}]')
                A('s_or_b64 s[76:77], s[76:77], vcc')
        A('s_and_b64 exec, exec, s[76:77]')
        A(f's_cbranch_execz {lp}_x')
        A(f's_sleep {o["pollsleep"]}')
        A(f's_branch {lp}')
        A(f'{lp}_x:')
        A('s_mov_b64 exec, -1')
        A('s_waitcnt vmcnt(0)')
        self.stamp(2)
        for k in range(1, 8):
            A(f'v_pk_add_f32 v[64:65], v[64:65], v[{64+8*k}:{65+8*k}]')
            A(f'v_pk_add_f32 v[68:69], v[68:69], v[{68+8*k}:{69+8*k}]')
        A('v_cvt_pk_bf16_f32 v16, v64, v65')
        A('v_cvt_pk_bf16_f32 v17, v68, v69')
        A('s_lshl_b32 s15, s33, 9')
        A('v_lshl_add_u32 v5, v0, 2, s15')
        A(f'ds_write_b32 v5, v16 offset:{LDS_Q}')
        A(f'ds_write_b32 v5, v17 offset:{LDS_Q+256}')
        A('s_waitcnt lgkmcnt(0)')
        self.stamp(3)
        A('s_barrier')
        A('s_cmp_lg_u32 s33, 1')
        A('s_cbranch_scc1 L_pref')
        A('v_mov_b32 v24, -1'); A('v_mov_b32 v25, -1'); A('v_mov_b32 v26, -1'); A('v_mov_b32 v27, -1')
        A('s_lshl_b32 s14, s3, 11')
        A(f's_add_u32 s14, s14, {WS_P1:#x}')
        for k in range(2):
            A(f'buffer_store_dwordx4 v[24:27], v1, s[{WS}:{WS+3}], s14 offen offset:{1024*k} sc1')
        A('s_lshl_b32 s14, s31, 2')
        A('s_add_u32 s14, s14, s34')
        A('s_lshl_b32 s14, s14, 11')
        A('s_lshl_b32 s15, s35, 8')
        A('s_add_u32 s14, s14, s15')
        A(f's_add_u32 s14, s14, {WS_P2:#x}')
        A('v_lshlrev_b32 v5, 2, v0')
        A(f'buffer_store_dword v24, v5, s[{WS}:{WS+3}], s14 offen sc1')
        A('s_cmp_ge_u32 s32, 16')
        A('s_cbranch_scc1 L_h1_nohv')
        A(f's_mul_i32 s14, s31, {HVS}')
        A(f's_add_u32 s14, s14, {WS_HV:#x}')
        A('s_lshl_b32 s15, s32, 7')
        A('v_add_u32 v5, s15, v1')
        A('s_lshl_b32 s15, s32, 4')
        A('s_add_u32 s15, s15, 2048')
        A('v_mov_b32 v6, s15')
        A('v_cmp_eq_u32 vcc, 8, v0')
        self.nop(2)
        A('v_cndmask_b32 v5, v5, v6, vcc')
        A('s_mov_b64 exec, 0x1ff')
        A(f'buffer_store_dwordx4 v[24:27], v5, s[{WS}:{WS+3}], s14 offen sc1')
        A('s_mov_b64 exec, -1')
        A('L_h1_nohv:')
        A('s_cmp_lg_u32 s32, 0')
        A('s_cbranch_scc1 L_h1_nocnt')
        A('s_lshl_b32 s14, s31, 10')
        A(f's_add_u32 s14, s14, {WS_CNT:#x}')
        A('v_mov_b32 v32, 0'); A('v_mov_b32 v33, 0'); A('v_mov_b32 v34, 0'); A('v_mov_b32 v35, 0')
        A(f'buffer_store_dwordx4 v[32:35], v1, s[{WS}:{WS+3}], s14 offen sc1')
        A('L_h1_nocnt:')
        A('s_getreg_b32 s8, hwreg(HW_REG_XCC_ID, 0, 4)')
        A('v_mov_b32 v28, s96')
        A('v_mov_b32 v29, s97')
        A('v_mov_b32 v30, s8')
        A('v_mov_b32 v31, 0')
        A('v_mov_b32 v5, 0')
        A('s_lshl_b32 s14, s3, 4')
        A(f's_add_u32 s14, s14, {WS_F:#x}')
        A('s_mov_b64 exec, 1')
        A('s_waitcnt vmcnt(0)')
        A(f'buffer_store_dwordx4 v[28:31], v5, s[{WS}:{WS+3}], s14 offen sc1')
        A('s_mov_b64 exec, -1')
        A(f's_mov_b32 s14, {WS_F:#x}')
        A(f's_mov_b32 s15, {spin}')
        lp = self.label('pollall')
        A(f'{lp}:')
        A('s_sleep 127')
        A('s_sleep 127')
        for k in range(4):
            A(f'buffer_load_dwordx2 v[{24+2*k}:{25+2*k}], v1, s[{WS}:{WS+3}], s14 offen offset:{1024*k} sc1')
        A('s_sub_u32 s15, s15, 1')
        A('s_cmp_eq_u32 s15, 0')
        A(f's_cbranch_scc1 {lp}_x')
        A('s_waitcnt vmcnt(0)')
        for k in range(4):
            if k == 0:
                A(f'v_cmp_ne_u64 s[76:77], s[96:97], v[{24+2*k}:{25+2*k}]')
            else:
                A(f'v_cmp_ne_u64 vcc, s[96:97], v[{24+2*k}:{25+2*k}]')
                A('s_or_b64 s[76:77], s[76:77], vcc')
        A('s_and_b64 exec, exec, s[76:77]')
        A(f's_cbranch_execnz {lp}')
        A(f'{lp}_x:')
        A('s_mov_b64 exec, -1')
        A('v_mov_b32 v6, 1')
        A('ds_write_b32 v7, v6 offset:4')
        A('s_lshl_b32 s14, s31, 9')
        A(f's_add_u32 s14, s14, {WS_F:#x}')
        A('s_mov_b32 exec_hi, 0')
        A(f'buffer_load_dwordx4 v[24:27], v1, s[{WS}:{WS+3}], s14 offen sc1')
        A('s_waitcnt vmcnt(0)')
        A('v_cmp_ne_u64 s[76:77], s[96:97], v[24:25]')
        A('v_cmp_ne_u32 vcc, s8, v26')
        A('s_or_b64 s[76:77], s[76:77], vcc')
        A('s_cselect_b32 s14, 0, 1')
        if not o['fast']:
            A('s_mov_b32 s14, 0')
        A('s_mov_b64 exec, -1')
        A('v_mov_b32 v6, s14')
        A('ds_write_b32 v7, v6 offset:8')

    def helper_tail(self):
        A = self.A
        o = self.o
        nt = o['nt']
        spin = o['spin']
        WOR, WOT, XR, B2R, XF = 64, 80, 108, 110, 128
        vOA, vMLA, vP1o, vP1m, vWw, vWr, vP2, vHw, vHo = 140, 141, 142, 143, 144, 145, 146, 147, 149
        A('s_setprio 3')
        self.srd(WO, 12, 0x400000)
        self.srd(W1, 16, 3584)
        self.srd(B1, 18, 3584)
        self.srd(W2, 20, 3584)
        self.srd(B2, 22, 2)
        self.srd(OUT, 24, 1024)
        A(f's_mov_b32 s9, {f2u(LOG2E):#x}')
        A('v_lshlrev_b32 v1, 4, v0')
        A('v_and_b32 v8, 7, v0')
        A('v_lshrrev_b32 v9, 3, v0')
        A('v_and_b32 v10, 31, v0')
        A('v_lshlrev_b32 v4, 12, v8')
        A('v_lshl_add_u32 v4, v9, 4, v4')
        A('s_lshl_b32 s8, s31, 2')
        A('s_add_u32 s8, s8, s34')
        A('s_lshl_b32 s14, s8, 17')
        A('s_lshl_b32 s15, s33, 15')
        A('s_add_u32 s14, s14, s15')
        A('s_lshl_b32 s15, s35, 7')
        A('s_add_u32 s14, s14, s15')
        for k in range(4):
            A(f'buffer_load_dwordx4 v[{WOR+4*k}:{WOR+4*k+3}], v4, s[{WO}:{WO+3}], s14 offen offset:{1024*k} {nt}')
        self.mlp_weights_load()
        A('v_lshlrev_b32 v5, 3, v8')
        A('s_and_b32 s14, s32, 15')
        A('s_lshl_b32 s14, s14, 6')
        A(f'buffer_load_dwordx2 v[{XR}:{XR+1}], v5, s[{X}:{X+3}], s14 offen')
        A('v_mov_b32 v5, 0')
        A(f'buffer_load_ushort v{B2R}, v5, s[{B2}:{B2+3}], 0 offen')
        A('s_lshl_b32 s14, s33, 9')
        A(f's_add_u32 s14, s14, {LDS_O}')
        A(f'v_lshl_add_u32 v{vOA}, v10, 4, s14')
        A('s_lshl_b32 s14, s33, 3')
        A(f's_add_u32 s14, s14, {LDS_ML}')
        A(f'v_mov_b32 v{vMLA}, s14')
        A(f'v_lshlrev_b32 v{vP1o}, 11, v9')
        A('s_lshl_b32 s14, s33, 7')
        A(f'v_lshl_add_u32 v{vP1o}, v8, 4, v{vP1o}')
        A(f'v_add_u32 v{vP1o}, s14, v{vP1o}')
        A('s_lshl_b32 s14, s33, 8')
        A(f's_add_u32 s14, s14, {LDS_W}')
        A(f'v_lshl_add_u32 v{vWw}, v9, 5, s14')
        A(f'v_lshlrev_b32 v{vWr}, 2, v0')
        A('v_lshlrev_b32 v4, 13, v9')
        A(f'v_lshl_add_u32 v{vP2}, v8, 4, v4')
        A('s_and_b32 s15, s32, 15')
        A('s_lshl_b32 s14, s15, 7')
        A(f's_add_u32 s6, s14, {WS_P2:#x}')
        A('s_add_u32 s7, s6, 4096')
        A(f's_mul_i32 s25, s31, {HVS}')
        A(f's_add_u32 s25, s25, {WS_HV:#x}')
        A('v_add_u32 v148, s14, v1')
        A('s_lshl_b32 s15, s15, 4')
        A('s_add_u32 s15, s15, 2048')
        A('v_mov_b32 v4, s15')
        A('v_cmp_eq_u32 s[48:49], 8, v0')
        self.nop(2)
        A('v_cndmask_b32 v148, v148, v4, s[48:49]')
        A('s_lshr_b32 s14, s2, 1')
        A('s_lshl_b32 s14, s14, 4')
        A('v_mov_b32 v4, s14')
        A(f'v_add_u32 v{vHw}, 0x800, v1')
        A('v_cmp_lt_u32 vcc, 15, v0')
        A(f'v_mov_b32 v{vHo}, {LDS_H}')
        A('s_nop 0')
        A(f'v_cndmask_b32 v{vHw}, v{vHw}, v4, vcc')
        A('s_lshl_b32 s14, s3, 11')
        A('s_lshl_b32 s15, s33, 9')
        A('s_add_u32 s14, s14, s15')
        A(f's_add_u32 s16, s14, {WS_P1:#x}')
        A('s_lshl_b32 s14, s31, 16')
        A('s_lshl_b32 s15, s34, 9')
        A('s_add_u32 s14, s14, s15')
        A(f's_add_u32 s10, s14, {WS_P1:#x}')
        A('s_add_u32 s11, s10, 16384')
        A('s_add_u32 s12, s10, 32768')
        A('s_add_u32 s13, s10, 49152')
        A('s_lshl_b32 s14, s8, 11')
        A('s_lshl_b32 s15, s35, 8')
        A('s_add_u32 s14, s14, s15')
        A(f's_add_u32 s17, s14, {WS_P2:#x}')
        A('s_waitcnt vmcnt(0)')
        A('s_mov_b32 s14, 0x05040100')
        A('s_mov_b32 s15, 0x07060302')
        for p in range(2):
            for dw in range(4):
                lo, hi = WOR + 8 * p + dw, WOR + 8 * p + 4 + dw
                A(f'v_perm_b32 v{WOT+8*p+2*dw}, v{hi}, v{lo}, s14')
                A(f'v_perm_b32 v{WOT+8*p+2*dw+1}, v{hi}, v{lo}, s15')
        self.mlp_weights_prep()
        for k in range(2):
            A(f'v_lshlrev_b32 v{XF+2*k}, 16, v{XR+k}')
            A(f'v_and_b32 v{XF+2*k+1}, 0xffff0000, v{XR+k}')
        A(f'v_lshlrev_b32 v{B2R}, 16, v{B2R}')
        A('v_cmp_lt_u32 s[18:19], 31, v0')
        if o['warm']:
            A('s_cmp_lg_u32 s33, 0')
            A('s_cbranch_scc1 L_nowarm')
            self.warm_pass(['h', 'a', 'b', 'c', 'd1', 'e', 'f', 'g'])
            self.srd(WS, 28, WS_SIZE)
            A('L_nowarm:')
        for k in range(4):
            A(f's_mov_b64 s[{72+2*k}:{73+2*k}], -1')
        A('s_waitcnt lgkmcnt(0)')
        A('s_barrier')
        self.seg_begin('a')
        self.stamp(4, (True,))
        NP = NPART
        ML, OO = 16, 28
        A(f'ds_read_b32 v14, v{vHo} offset:{LDS_F + 8 - LDS_H}')
        for w in range(NP):
            A(f'ds_read_b64 v[{ML+2*w}:{ML+2*w+1}], v{vMLA} offset:{32*w}')
        for w in range(NP):
            A(f'ds_read_b128 v[{OO+4*w}:{OO+4*w+3}], v{vOA} offset:{2048*w}')
        A(f's_waitcnt lgkmcnt({NP})')
        A(f'v_max3_f32 v12, v{ML}, v{ML+2}, v{ML+4}')
        A(f'v_max3_f32 v13, v{ML+6}, v{ML+8}, v{ML+10}')
        A('v_max_f32 v12, v12, v13')
        A('v_readfirstlane_b32 s24, v14')
        A('v_mul_f32 v13, s9, v12')
        for w in range(NP):
            A(f'v_fma_f32 v{ML+2*w}, v{ML+2*w}, s9, -v13')
        for w in range(NP):
            A(f'v_exp_f32 v{ML+2*w}, v{ML+2*w}')
        A(f'v_mul_f32 v13, v{ML}, v{ML+1}')
        for w in range(1, NP):
            A(f'v_fmac_f32 v13, v{ML+2*w}, v{ML+2*w+1}')
        A('s_waitcnt lgkmcnt(0)')
        for c in range(4):
            A(f'v_mul_f32 v{52+c}, v{ML}, v{OO+c}')
        for w in range(1, NP):
            for c in range(4):
                A(f'v_fmac_f32 v{52+c}, v{ML+2*w}, v{OO+4*w+c}')
        A('v_cvt_pk_bf16_f32 v52, v52, v53')
        A('v_cvt_pk_bf16_f32 v53, v54, v55')
        A('v_min_u32 v54, 0xfffffffe, v12')
        A('v_min_u32 v55, 0xfffffffe, v13')
        self.canon([52, 53])
        self.seg_end('a')
        A('s_mov_b32 exec_hi, 0')
        A('s_cmp_eq_u32 s24, 0')
        lb = self.label('st')
        A(f's_cbranch_scc1 {lb}')
        A(f'buffer_store_dwordx4 v[52:55], v1, s[{WS}:{WS+3}], s16 offen')
        A(f's_branch {lb}_x')
        A(f'{lb}:')
        A(f'buffer_store_dwordx4 v[52:55], v1, s[{WS}:{WS+3}], s16 offen sc1')
        A(f'{lb}_x:')
        self.stamp(5, (True,))
        GO = 16
        A(f's_mov_b32 s15, {spin}')
        lp = self.label('poll1')
        A(f'{lp}:')
        for k in range(4):
            A(f's_mov_b64 exec, s[{72+2*k}:{73+2*k}]')
            A(f's_cbranch_execz {lp}_l{k}')
            A(f'buffer_load_dwordx4 v[{GO+4*k}:{GO+4*k+3}], v{vP1o}, s[{WS}:{WS+3}], s{10+k} offen sc1')
            A(f'{lp}_l{k}:')
        A('s_sub_u32 s15, s15, 1')
        A('s_cmp_eq_u32 s15, 0')
        A(f's_cbranch_scc1 {lp}_x')
        A('s_waitcnt vmcnt(0)')
        for k in range(4):
            A(f's_mov_b64 exec, s[{72+2*k}:{73+2*k}]')
            A(f'v_max3_u32 v12, v{GO+4*k}, v{GO+4*k+1}, v{GO+4*k+2}')
            A(f'v_max_u32 v12, v12, v{GO+4*k+3}')
            A(f'v_cmp_eq_u32 s[{72+2*k}:{73+2*k}], -1, v12')
        A('s_or_b64 s[20:21], s[72:73], s[74:75]')
        A('s_or_b64 vcc, s[76:77], s[78:79]')
        A('s_or_b64 s[20:21], s[20:21], vcc')
        A(f's_cbranch_scc0 {lp}_x')
        A('s_bcnt1_i32_b64 s14, s[20:21]')
        A('s_cmp_gt_u32 s14, 16')
        A(f's_cbranch_scc1 {lp}_s')
        if o['sleep_few']:
            A(f's_sleep {o["sleep_few"]}')
        A(f's_branch {lp}')
        A(f'{lp}_s:')
        A(f's_sleep {o["sleep_many"]}')
        A(f's_branch {lp}')
        A(f'{lp}_x:')
        A('s_mov_b64 exec, -1')
        A('s_waitcnt vmcnt(0)')
        self.seg_begin('b')
        self.stamp(6, (True,))
        A(f'v_max3_f32 v12, v{GO+2}, v{GO+6}, v{GO+10}')
        A(f'v_max_f32 v12, v12, v{GO+14}')
        for k in range(2):
            A(f'v_lshlrev_b32 v{32+4*k}, 16, v{GO+4*k}')
            A(f'v_and_b32 v{33+4*k}, 0xffff0000, v{GO+4*k}')
        A('v_max_f32_dpp v12, v12, v12 row_ror:8 row_mask:0xf bank_mask:0xf')
        A('v_mov_b32 v13, v12')
        for k in range(2):
            A(f'v_lshlrev_b32 v{34+4*k}, 16, v{GO+4*k+1}')
            A(f'v_and_b32 v{35+4*k}, 0xffff0000, v{GO+4*k+1}')
        A('v_permlane16_swap_b32 v12, v13')
        for k in range(2, 4):
            A(f'v_lshlrev_b32 v{44+4*k}, 16, v{GO+4*k}')
            A(f'v_and_b32 v{45+4*k}, 0xffff0000, v{GO+4*k}')
        A('v_max_f32 v12, v12, v13')
        A('v_mov_b32 v13, v12')
        for k in range(2, 4):
            A(f'v_lshlrev_b32 v{46+4*k}, 16, v{GO+4*k+1}')
            A(f'v_and_b32 v{47+4*k}, 0xffff0000, v{GO+4*k+1}')
        A('v_permlane32_swap_b32 v12, v13')
        self.nop(2)
        A('v_max_f32 v12, v12, v13')
        A('v_mul_f32 v12, s9, v12')
        OU = [32, 36, 52, 56]
        for k in range(4):
            A(f'v_fma_f32 v{GO+4*k+2}, v{GO+4*k+2}, s9, -v12')
        for k in range(4):
            A(f'v_exp_f32 v{GO+4*k+2}, v{GO+4*k+2}')
        self.nop(1)
        A(f'v_mul_f32 v44, v{GO+2}, v{GO+3}')
        A(f'v_pk_mul_f32 v[40:41], v[{OU[0]}:{OU[0]+1}], v[{GO+2}:{GO+3}] op_sel_hi:[1,0]')
        A(f'v_pk_mul_f32 v[42:43], v[{OU[0]+2}:{OU[0]+3}], v[{GO+2}:{GO+3}] op_sel_hi:[1,0]')
        for k in range(1, 4):
            f = GO + 4 * k + 2
            A(f'v_fmac_f32 v44, v{f}, v{f+1}')
            A(f'v_pk_fma_f32 v[40:41], v[{OU[k]}:{OU[k]+1}], v[{f}:{f+1}], v[40:41] op_sel_hi:[1,0,1]')
            A(f'v_pk_fma_f32 v[42:43], v[{OU[k]+2}:{OU[k]+3}], v[{f}:{f+1}], v[42:43] op_sel_hi:[1,0,1]')
        self.nop(1)
        R5 = [44, 40, 41, 42, 43]
        T5 = [45, 46, 47, 48, 49]
        self.dpp('v_add_f32', R5, 'row_ror:8')
        self.swap_red('v_add_f32', R5, T5, 16)
        self.swap_red('v_add_f32', R5, T5, 32)
        A('v_rcp_f32 v44, v44')
        self.nop(1)
        for c in range(4):
            A(f'v_mul_f32 v{40+c}, v{40+c}, v44')
        A('v_cvt_pk_bf16_f32 v40, v40, v41')
        A('v_cvt_pk_bf16_f32 v41, v42, v43')
        for c in range(8):
            A(f'v_dot2_f32_bf16 v{16+c}, v40, v{WOT+c}, 0')
        for c in range(8):
            A(f'v_dot2_f32_bf16 v{16+c}, v41, v{WOT+8+c}, v{16+c}')
        R8 = list(range(16, 24))
        self.dpp('v_add_f32', R8, 'quad_perm:[1,0,3,2]')
        self.dpp('v_add_f32', R8, 'quad_perm:[2,3,0,1]')
        self.dpp('v_add_f32', R8, 'row_half_mirror')
        A(f'ds_write_b128 v{vWw}, v[16:19]')
        A(f'ds_write_b128 v{vWw}, v[20:23] offset:16')
        A('s_waitcnt lgkmcnt(0)')
        self.seg_end('b')
        A('s_barrier')
        A('s_cmp_lg_u32 s33, 0')
        A('s_cbranch_scc1 L_hop2')
        self.seg_begin('c')
        for w in range(4):
            A(f'ds_read_b32 v{16+w}, v{vWr} offset:{LDS_W + 256*w}')
        A('s_waitcnt lgkmcnt(0)')
        A('v_add_f32 v16, v16, v17')
        A('v_add_f32 v18, v18, v19')
        A('v_add_f32 v16, v16, v18')
        self.canon([16])
        self.seg_end('c')
        A(f'buffer_store_dword v16, v{vWr}, s[{WS}:{WS+3}], s17 offen sc1')
        A('L_hop2:')
        self.stamp(7, (True,))
        A('s_cmp_lg_u32 s33, 1')
        A('s_cbranch_scc1 L_hop2b')
        A('s_cmp_ge_u32 s32, 16')
        A('s_cbranch_scc1 L_hop2b')
        A(f's_mov_b32 s15, {spin}')
        lp = self.label('poll2a')
        A(f'{lp}:')
        for k in range(4):
            A(f'buffer_load_dwordx4 v[{16+4*k}:{19+4*k}], v{vP2}, s[{WS}:{WS+3}], s{6+(k>>1)} offen offset:{2048*(k&1)} sc1')
        A('s_sub_u32 s15, s15, 1')
        A('s_cmp_eq_u32 s15, 0')
        A(f's_cbranch_scc1 {lp}_x')
        A('s_waitcnt vmcnt(0)')
        A('v_max3_u32 v12, v16, v17, v18')
        A('v_max3_u32 v13, v19, v20, v21')
        A('v_max3_u32 v12, v12, v22, v23')
        A('v_max3_u32 v13, v13, v24, v25')
        A('v_max3_u32 v12, v12, v26, v27')
        A('v_max3_u32 v13, v13, v28, v29')
        A('v_max3_u32 v12, v12, v30, v31')
        A('v_max_u32 v12, v12, v13')
        A('v_cmp_eq_u32 vcc, -1, v12')
        A('s_and_b64 exec, exec, vcc')
        A(f's_cbranch_execnz {lp}')
        A(f'{lp}_x:')
        A('s_mov_b64 exec, -1')
        A('s_waitcnt vmcnt(0)')
        self.seg_begin('d1')
        A('v_pk_add_f32 v[16:17], v[16:17], v[20:21]')
        A('v_pk_add_f32 v[18:19], v[18:19], v[22:23]')
        A('v_pk_add_f32 v[24:25], v[24:25], v[28:29]')
        A('v_pk_add_f32 v[26:27], v[26:27], v[30:31]')
        A('v_pk_add_f32 v[16:17], v[16:17], v[24:25]')
        A('v_pk_add_f32 v[18:19], v[18:19], v[26:27]')
        R4 = [16, 17, 18, 19]
        self.nop(1)
        self.dpp('v_add_f32', R4, 'row_ror:8')
        self.swap_red('v_add_f32', R4, [20, 21, 22, 23], 16)
        self.swap_red('v_add_f32', R4, [20, 21, 22, 23], 32)
        self.rnd_bf16_pair(16, 17, 20)
        self.rnd_bf16_pair(18, 19, 21)
        A(f'v_pk_add_f32 v[16:17], v[16:17], v[{XF}:{XF+1}]')
        A(f'v_pk_add_f32 v[18:19], v[18:19], v[{XF+2}:{XF+3}]')
        self.rnd_bf16_pair(16, 17, 20)
        self.rnd_bf16_pair(18, 19, 21)
        A('v_readfirstlane_b32 s14, v16')
        self.nop(2)
        for c in range(4):
            A(f'v_subrev_f32 v{20+c}, s14, v{16+c}')
        A('v_add_f32 v25, v20, v21')
        A('v_mul_f32 v26, v20, v20')
        A('v_add_f32 v24, v22, v23')
        A('v_fmac_f32 v26, v21, v21')
        A('v_add_f32 v25, v25, v24')
        A('v_fmac_f32 v26, v22, v22')
        A('v_mov_b32 v24, s14')
        A('v_fmac_f32 v26, v23, v23')
        A('v_cndmask_b32 v16, v16, v24, s[48:49]')
        self.dpp('v_add_f32', [25, 26], 'quad_perm:[1,0,3,2]')
        self.dpp('v_add_f32', [25, 26], 'quad_perm:[2,3,0,1]')
        self.dpp('v_add_f32', [25, 26], 'row_half_mirror')
        self.canon([25, 26])
        A('v_cndmask_b32 v17, v17, v25, s[48:49]')
        A('v_cndmask_b32 v18, v18, v26, s[48:49]')
        self.seg_end('d1')
        A('s_mov_b64 exec, 0x1ff')
        A('s_cmp_eq_u32 s24, 0')
        lb = self.label('st')
        A(f's_cbranch_scc1 {lb}')
        A(f'buffer_store_dwordx4 v[16:19], v148, s[{WS}:{WS+3}], s25 offen')
        A(f's_branch {lb}_x')
        A(f'{lb}:')
        A(f'buffer_store_dwordx4 v[16:19], v148, s[{WS}:{WS+3}], s25 offen sc1')
        A(f'{lb}_x:')
        A('s_mov_b64 exec, -1')
        A('L_hop2b:')
        A('s_cmp_lg_u32 s33, 0')
        A('s_cbranch_scc1 L_b4')
        A('s_mov_b64 exec, 0x1ffff')
        A(f's_mov_b32 s15, {spin}')
        lp = self.label('poll2b')
        A(f'{lp}:')
        A(f'buffer_load_dwordx4 v[16:19], v{vHw}, s[{WS}:{WS+3}], s25 offen sc1')
        A('s_sub_u32 s15, s15, 1')
        A('s_cmp_eq_u32 s15, 0')
        A(f's_cbranch_scc1 {lp}_x')
        A('s_waitcnt vmcnt(0)')
        A('v_max3_u32 v12, v16, v17, v18')
        A('v_max_u32 v12, v12, v19')
        A('v_cmp_eq_u32 vcc, -1, v12')
        A('s_and_b64 exec, exec, vcc')
        A(f's_cbranch_execz {lp}_x')
        if o['sleep2b']:
            A(f's_sleep {o["sleep2b"]}')
        A(f's_branch {lp}')
        A(f'{lp}_x:')
        A('s_mov_b64 exec, -1')
        A('s_waitcnt vmcnt(0)')
        self.seg_begin('e')
        self.stamp(8, (True,))
        A('v_readlane_b32 s14, v16, 0')
        A('v_readlane_b32 s72, v16, 16')
        A('v_readlane_b32 s73, v17, 16')
        A('v_readlane_b32 s74, v18, 16')
        A('v_readlane_b32 s75, v19, 16')
        A('v_subrev_f32 v20, s14, v16')
        A('v_mul_f32 v21, 0x42000000, v20')
        A('v_fma_f32 v22, 2.0, v17, v21')
        A('v_fmac_f32 v18, v20, v22')
        A('v_add_f32 v17, v17, v21')
        A('s_bitcmp1_b32 s2, 0')
        A('s_cselect_b32 s72, s74, s72')
        A('s_cselect_b32 s73, s75, s73')
        self.dpp('v_add_f32', [18, 17], 'quad_perm:[1,0,3,2]')
        self.dpp('v_add_f32', [18, 17], 'quad_perm:[2,3,0,1]')
        self.dpp('v_add_f32', [18, 17], 'row_half_mirror')
        self.dpp('v_add_f32', [18, 17], 'row_mirror')
        A('v_mov_b32 v24, s72')
        A('v_mov_b32 v25, s73')
        A('v_readlane_b32 s76, v17, 0')
        A('v_readlane_b32 s77, v18, 0')
        inv = f2u(1.0 / 512)
        A(f'v_mov_b32 v48, {inv:#x}')
        self.nop(1)
        A('v_mul_f32 v49, s77, v48')
        A('v_mul_f32 v48, s76, v48')
        A('v_fma_f32 v49, -v48, v48, v49')
        A('v_max_f32 v49, 0, v49')
        A('v_add_f32 v48, s14, v48')
        mean, var = 48, 49
        self.ln_finish(mean, var, 12, 13, 14)
        self.ln_apply([24, 25], [36, 37], 12, 13, 14)
        A(f'v_sub_f32 v{mean}, v{mean}, v12')
        A(f'v_mul_f32 v{var}, v{var}, v13')
        A(f'v_mul_f32 v{mean}, v{mean}, v13')
        A(f'v_mul_f32 v{var}, v{var}, v13')
        self.ln_finish(mean, var, 12, 13, 14)
        self.ln_apply([36, 37], [36, 37], 12, 13, 14)
        A(f'ds_write_b64 v{vHo}, v[36:37]')
        A('s_waitcnt lgkmcnt(0)')
        self.seg_end('e')

    def final(self):
        A = self.A
        o = self.o
        B2R, vHo = 110, 149
        A('s_setprio 0')
        A('s_barrier')
        self.seg_begin('f')
        A(f'ds_read_b64 v[36:37], v{vHo}')
        A('s_waitcnt lgkmcnt(0)')
        self.stamp(9, (True,))
        YA = [30, 31]
        ch = [(d, p) for d in range(2) for p in range(2)]
        U = {c: 40 + 6 * n for n, c in enumerate(ch)}

        def each(f):
            for c in ch:
                f(c[0], c[1], U[c], U[c] + 2, U[c] + 4)
        each(lambda d, p, u, t, z: (A(f'v_mul_f32 v{u}, v{36+d}, v{W1F+2*p}'), A(f'v_mul_f32 v{u+1}, v{36+d}, v{W1F+2*p+1}')))
        each(lambda d, p, u, t, z: self.rnd_bf16_pair(u, u + 1, t))
        each(lambda d, p, u, t, z: A(f'v_pk_add_f32 v[{u}:{u+1}], v[{u}:{u+1}], v[{B1F+2*p}:{B1F+2*p+1}]'))
        each(lambda d, p, u, t, z: self.rnd_bf16_pair(u, u + 1, t))
        each(lambda d, p, u, t, z: A(f'v_pk_mul_f32 v[{t}:{t+1}], v[{u}:{u+1}], v[{u}:{u+1}]'))
        each(lambda d, p, u, t, z: A(f'v_pk_fma_f32 v[{t}:{t+1}], v[{t}:{t+1}], v[{GK1}:{GK1+1}], v[{GK0}:{GK0+1}]'))
        each(lambda d, p, u, t, z: A(f'v_pk_mul_f32 v[{z}:{z+1}], v[{t}:{t+1}], v[{u}:{u+1}]'))
        each(lambda d, p, u, t, z: (A(f'v_exp_f32 v{z}, v{z}'), A(f'v_exp_f32 v{z+1}, v{z+1}')))
        each(lambda d, p, u, t, z: A(f'v_pk_add_f32 v[{z}:{z+1}], v[{z}:{z+1}], v[{GONE}:{GONE+1}]'))
        each(lambda d, p, u, t, z: (A(f'v_rcp_f32 v{z}, v{z}'), A(f'v_rcp_f32 v{z+1}, v{z+1}')))
        each(lambda d, p, u, t, z: A(f'v_pk_mul_f32 v[{u}:{u+1}], v[{u}:{u+1}], v[{z}:{z+1}]'))
        each(lambda d, p, u, t, z: A(f'v_cvt_pk_bf16_f32 v{u}, v{u}, v{u+1}'))
        for d in range(2):
            A(f'v_dot2_f32_bf16 v{YA[d]}, v{U[(d,0)]}, v{W2R}, 0')
        for d in range(2):
            A(f'v_dot2_f32_bf16 v{YA[d]}, v{U[(d,1)]}, v{W2R+1}, v{YA[d]}')
        self.nop(2)
        self.wave_sum_to_sgpr(YA, [76, 77])
        A('v_mov_b32 v16, s76')
        A('v_mov_b32 v17, s77')
        A('s_lshl_b32 s14, s30, 3')
        A(f's_add_u32 s14, s14, {LDS_Y}')
        A('v_mov_b32 v18, s14')
        A('ds_write_b64 v18, v[16:17]')
        A('s_waitcnt lgkmcnt(0)')
        self.seg_end('f')
        A('s_barrier')
        A('s_cmp_lg_u32 s30, 4')
        lend = self.label('hend')
        A(f's_cbranch_scc1 {lend}')
        self.seg_begin('g')
        A(f'v_mov_b32 v12, {LDS_Y}')
        for k in range(4):
            A(f'ds_read_b128 v[{40+4*k}:{43+4*k}], v12 offset:{16*k}')
        A('s_waitcnt lgkmcnt(0)')
        for k in range(4):
            A(f'v_pk_add_f32 v[{40+4*k}:{41+4*k}], v[{40+4*k}:{41+4*k}], v[{42+4*k}:{43+4*k}]')
        A('v_pk_add_f32 v[40:41], v[40:41], v[44:45]')
        A('v_pk_add_f32 v[48:49], v[48:49], v[52:53]')
        A('v_pk_add_f32 v[16:17], v[40:41], v[48:49]')
        self.rnd_bf16_pair(16, 17, 20)
        A(f'v_add_f32 v16, v16, v{B2R}')
        A(f'v_add_f32 v17, v17, v{B2R}')
        self.rnd_bf16_pair(16, 17, 20)
        A('v_pk_add_f32 v[16:17], v[16:17], v[24:25]')
        A('v_cvt_pk_bf16_f32 v16, v16, v17')
        A('s_lshl_b32 s14, s2, 2')
        A('v_mov_b32 v18, 0')
        self.seg_end('g')
        A('s_mov_b64 exec, 1')
        A(f'buffer_store_dword v16, v18, s[{OUT}:{OUT+3}], s14 offen')
        A('s_cmp_lg_u32 s2, 0')
        A(f's_cbranch_scc1 {lend}')
        A('v_mov_b32 v20, s96')
        A('v_mov_b32 v21, s97')
        A(f's_mov_b32 s14, {WS_E:#x}')
        A(f'buffer_store_dwordx2 v[20:21], v18, s[{WS}:{WS+3}], s14 offen sc1')
        A(f'{lend}:')
        self.stamp(10)
        self.write_stamps(11)


if __name__ == '__main__':
    out = sys.argv[1]
    kw = json.loads(sys.argv[2]) if len(sys.argv) > 2 else {}
    open(out, 'w').write(Gen(**kw).build())
```

```python
import sys, json, struct

KN = 'sequential_preLN__gqa_block_cached__mixer_token_mlp__decode'
HEADER = open('cdna_kernels/' + KN + '.s.ref').read().split('; Override launch')[0]


def f2u(x):
    return struct.unpack('<I', struct.pack('<f', x))[0]


LOG2E = 1.4426950408889634
SCALE = 128 ** -0.5
GC0 = -2.0 * (2.0 / 3.141592653589793) ** 0.5 * LOG2E
GC1 = GC0 * 0.044715

WS_QP = 0x0
WS_E = 0x40000
WS_F = 0x41000
WS_P1 = 0x42000
WS_P2 = 0x110000
WS_HV = 0x120000
HVS = 2048 + 256 + 128
WS_CNT = 0x128000
WS_QL = 0x140000
WS_SIZE = 0x20000000
STAMP_OFF = 0x10000000
TAGC = 0x9E3779B97F4A7C15
NPART = 6
LDS_Q = 0
LDS_O = 1024
LDS_ML = LDS_O + NPART * 2048
LDS_W = LDS_ML + 256
LDS_H = LDS_W + 1024
LDS_Y = LDS_H + 2048
LDS_F = LDS_Y + 64
LDS_TOTAL = LDS_F + 16

X, WQ, WS, WO, W1, B1, W2, B2, OUT = 36, 40, 44, 48, 52, 56, 60, 64, 68
W1F, B1F, W2R, RAW, GK0, GK1, GONE = 224, 228, 232, 234, 238, 240, 242


class Gen:
    def __init__(self, **kw):
        self.L = []
        self.o = dict(ring=12, pre=3, pre0=2, stamps=False, nt='nt', headmap='mod', pollsleep=8, spin=200000,
                      tc=8, sleep_many=1, sleep_few=0, cprio=2, sleep2b=0, sleep_most=32, ts=22, stageA=16, warm=False, fast=True, qlocal=False, nred=3)
        self.o.update(kw)
        self.lab = 0
        self.role = 'S'

    def A(self, s):
        self.L.append(s)

    def nop(self, n):
        if n > 0:
            self.A(f's_nop {n-1}')

    def label(self, base):
        self.lab += 1
        return f'L_{base}_{self.lab}'

    def srd(self, r, ptr, size):
        A = self.A
        A(f's_mov_b32 s{r}, s{ptr}')
        A(f's_and_b32 s{r+1}, s{ptr+1}, 0xffff')
        A(f's_mov_b32 s{r+2}, {size:#x}')
        A(f's_mov_b32 s{r+3}, 0x20000')

    def sreg(self, idx):
        return 80 + 2 * idx if idx < 8 else [98, 100, 22][idx - 8]

    def stamp(self, idx, sets=None):
        st = self.o['stamps']
        if not st:
            return
        if sets is not None and st not in sets:
            return
        r = self.sreg(idx)
        self.A(f's_memrealtime s[{r}:{r+1}]')

    def dpp(self, op, regs, ctrl, rm='0xf'):
        n = len(regs)
        if n < 3:
            self.nop(3 - n)
        for r in regs:
            self.A(f'{op}_dpp v{r}, v{r}, v{r} {ctrl} row_mask:{rm} bank_mask:0xf')

    def swap_red(self, op, regs, tmps, width):
        A = self.A
        for r, t in zip(regs, tmps):
            A(f'v_mov_b32 v{t}, v{r}')
        self.nop(2)
        for r, t in zip(regs, tmps):
            A(f'v_permlane{width}_swap_b32 v{r}, v{t}')
        if len(regs) < 3:
            self.nop(2)
        for r, t in zip(regs, tmps):
            A(f'{op} v{r}, v{r}, v{t}')

    def wave_sum_to_sgpr(self, regs, sregs):
        A = self.A
        self.dpp('v_add_f32', regs, 'quad_perm:[1,0,3,2]')
        self.dpp('v_add_f32', regs, 'quad_perm:[2,3,0,1]')
        self.dpp('v_add_f32', regs, 'row_half_mirror')
        self.dpp('v_add_f32', regs, 'row_mirror')
        self.dpp('v_add_f32', regs, 'row_bcast:15', '0xa')
        self.dpp('v_add_f32', regs, 'row_bcast:31', '0xc')
        self.nop(1)
        for r, s in zip(regs, sregs):
            A(f'v_readlane_b32 s{s}, v{r}, 63')
        self.nop(2)

    def rnd_bf16(self, dst, src):
        self.A(f'v_cvt_pk_bf16_f32 v{dst}, v{src}, v{src}')
        self.A(f'v_lshlrev_b32 v{dst}, 16, v{dst}')

    def rnd_bf16_pair(self, a, b, t):
        self.A(f'v_cvt_pk_bf16_f32 v{t}, v{a}, v{b}')
        self.A(f'v_lshlrev_b32 v{a}, 16, v{t}')
        self.A(f'v_and_b32 v{b}, 0xffff0000, v{t}')

    def ln_moments(self, vals, piv, t, s_a, s_b):
        A = self.A
        d = t[:8]
        s1, s2 = t[8], t[9]
        for k in range(0, 8, 2):
            A(f'v_pk_add_f32 v[{d[k]}:{d[k+1]}], v[{vals[k]}:{vals[k+1]}], v[{piv}:{piv+1}] neg_lo:[0,1] neg_hi:[0,1]')
        A(f'v_pk_mul_f32 v[{s1}:{s2}], v[{d[0]}:{d[1]}], v[{d[0]}:{d[1]}]')
        for k in range(2, 8, 2):
            A(f'v_pk_fma_f32 v[{s1}:{s2}], v[{d[k]}:{d[k+1]}], v[{d[k]}:{d[k+1]}], v[{s1}:{s2}]')
        A(f'v_pk_add_f32 v[{d[0]}:{d[1]}], v[{d[0]}:{d[1]}], v[{d[2]}:{d[3]}]')
        A(f'v_pk_add_f32 v[{d[4]}:{d[5]}], v[{d[4]}:{d[5]}], v[{d[6]}:{d[7]}]')
        A(f'v_add_f32 v{s2}, v{s1}, v{s2}')
        A(f'v_pk_add_f32 v[{d[0]}:{d[1]}], v[{d[0]}:{d[1]}], v[{d[4]}:{d[5]}]')
        A(f'v_add_f32 v{s1}, v{d[0]}, v{d[1]}')
        self.wave_sum_to_sgpr([s2, s1], [s_b, s_a])
        inv = f2u(1.0 / 512)
        A(f'v_mov_b32 v{s1}, {inv:#x}')
        A(f'v_mul_f32 v{s2}, s{s_b}, v{s1}')
        A(f'v_mul_f32 v{s1}, s{s_a}, v{s1}')
        A(f'v_fma_f32 v{s2}, -v{s1}, v{s1}, v{s2}')
        A(f'v_max_f32 v{s2}, 0, v{s2}')
        A(f'v_add_f32 v{s1}, v{s1}, v{piv}')

    def ln_finish(self, mean, var, vm, vr, t):
        A = self.A
        A(f'v_cvt_pk_bf16_f32 v{t}, v{mean}, v{var}')
        A(f'v_lshlrev_b32 v{vm}, 16, v{t}')
        A(f'v_and_b32 v{vr}, 0xffff0000, v{t}')
        A(f'v_add_f32 v{vr}, {f2u(1e-5):#x}, v{vr}')
        self.rnd_bf16(vr, vr)
        A(f'v_sqrt_f32 v{vr}, v{vr}')
        self.nop(1)
        self.rnd_bf16(vr, vr)
        A(f'v_rcp_f32 v{vr}, v{vr}')
        self.nop(1)

    def ln_apply(self, vals, outs, vm, vr, t):
        A = self.A
        for k in range(0, len(vals), 2):
            a, b = outs[k], outs[k + 1]
            A(f'v_sub_f32 v{a}, v{vals[k]}, v{vm}')
            A(f'v_sub_f32 v{b}, v{vals[k+1]}, v{vm}')
            self.rnd_bf16_pair(a, b, t)
            A(f'v_mul_f32 v{a}, v{a}, v{vr}')
            A(f'v_mul_f32 v{b}, v{b}, v{vr}')
            self.rnd_bf16_pair(a, b, t)

    def lds_wait(self, vaddr, off, vt=11, st=15):
        A = self.A
        lp = self.label('ldsw')
        A(f's_mov_b32 s{st}, {self.o["spin"]*20}')
        A(f'{lp}:')
        A(f'ds_read_b32 v{vt}, v{vaddr} offset:{off}')
        A(f's_sub_u32 s{st}, s{st}, 1')
        A(f's_cmp_eq_u32 s{st}, 0')
        A(f's_cbranch_scc1 {lp}_x')
        A('s_waitcnt lgkmcnt(0)')
        A(f'v_cmp_eq_u32 vcc, 0, v{vt}')
        A(f's_cbranch_vccz {lp}_x')
        A('s_sleep 1')
        A(f's_branch {lp}')
        A(f'{lp}_x:')
        A('s_waitcnt lgkmcnt(0)')

    def seg_begin(self, name):
        self.A(f'L_seg_{name}:')

    def seg_end(self, name):
        if self.o['warm']:
            self.A(f's_cbranch_execz L_ret_{name}')

    def warm_pass(self, names):
        if not self.o['warm']:
            return
        A = self.A
        A('s_mov_b64 exec, 0')
        for n in names:
            A(f's_branch L_seg_{n}')
            A(f'L_ret_{n}:')
        A('s_mov_b64 exec, -1')

    def canon(self, regs):
        for r in regs:
            self.A(f'v_min_u32 v{r}, 0xfffffffe, v{r}')

    def sel_masks(self, m0, m1):
        A = self.A
        A('v_and_b32 v4, 1, v0')
        A('v_lshlrev_b32 v4, 4, v4')
        A('v_mov_b32 v5, 0xffff')
        A('v_lshlrev_b32 v5, v4, v5')
        A('v_and_b32 v4, 2, v0')
        A('v_cmp_eq_u32 vcc, 0, v4')
        A('v_mov_b32 v6, 0')
        A('s_nop 0')
        A(f'v_cndmask_b32 v{m0}, v6, v5, vcc')
        A(f'v_cndmask_b32 v{m1}, v5, v6, vcc')

    def build(self):
        A = self.A
        o = self.o
        A(HEADER.rstrip('\n'))
        A(f'; @launch grid=(256,1,1) block=(512,1,1) lds={LDS_TOTAL}')
        A('.amdgcn_target "amdgcn-amd-amdhsa--gfx950"')
        A('.text')
        A(f'.globl {KN}_kernel')
        A('.p2align 8')
        A(f'.type {KN}_kernel,@function')
        A(f'{KN}_kernel:')
        A('s_cmp_ge_u32 s2, 256')
        A('s_cbranch_scc1 L_end')
        A('s_load_dwordx16 s[4:19], s[0:1], 0')
        A('s_load_dwordx8 s[20:27], s[0:1], 64')
        A('s_load_dwordx2 s[28:29], s[0:1], 96')
        self.stamp(0)
        A('v_lshrrev_b32 v1, 6, v0')
        A('v_and_b32 v0, 63, v0')
        A('v_readfirstlane_b32 s30, v1')
        if o['headmap'] == 'mod':
            A('s_and_b32 s31, s2, 7')
            A('s_lshr_b32 s32, s2, 3')
        elif o['headmap'] == 'rot':
            A('s_lshr_b32 s32, s2, 3')
            A('s_add_u32 s31, s2, s32')
            A('s_and_b32 s31, s31, 7')
        elif o['headmap'] == 'x4':
            A('s_lshr_b32 s31, s2, 3')
            A('s_lshr_b32 s32, s31, 3')
            A('s_and_b32 s31, s31, 7')
            A('s_and_b32 s3, s2, 7')
            A('s_lshl_b32 s3, s3, 2')
            A('s_add_u32 s32, s32, s3')
        elif o['headmap'] == 'div':
            A('s_lshr_b32 s31, s2, 5')
            A('s_and_b32 s32, s2, 31')
        else:
            m = int(o['headmap'])
            A(f's_and_b32 s31, s2, {7 & ~(m-1)}')
            A('s_lshr_b32 s32, s2, 3')
            A(f's_and_b32 s3, s32, {m-1}')
            A('s_or_b32 s31, s31, s3')
            A(f's_and_b32 s32, s32, {31 & ~(m-1)}')
            A(f's_and_b32 s3, s2, {m-1}')
            A('s_or_b32 s32, s32, s3')
        A('s_lshl_b32 s3, s31, 5')
        A('s_add_u32 s3, s3, s32')
        A('s_sub_u32 s33, s30, 4')
        A('s_lshr_b32 s34, s32, 3')
        A('s_and_b32 s35, s32, 7')
        A('s_cmp_lt_u32 s33, 2')
        A('s_cbranch_scc1 L_hq')
        A('s_cmp_ge_u32 s30, 4')
        A('s_cbranch_scc1 L_cover')
        TC = o['tc']
        TS = o['ts']
        o['pool'] = 128 - 4 * TS - 2 * TC
        assert TC % 2 == 0 and o['pool'] % 4 == 0 and (o['pool'] == 0 or o['pool'] >= 12) and TS >= TC
        self.streamer(TS, TC, False)
        A('s_waitcnt lgkmcnt(0)')
        A('s_barrier')
        self.srd(W1, 16, 3584)
        self.srd(B1, 18, 3584)
        self.srd(W2, 20, 3584)
        self.mlp_weights_load()
        self.srd(WS, 28, WS_SIZE)
        self.srd(OUT, 24, 1024)
        A('s_barrier')
        A('s_waitcnt vmcnt(0)')
        A(f'v_mov_b32 v149, {LDS_H}')
        self.mlp_weights_prep()
        A('s_branch L_b4')
        A('L_cover:')
        self.streamer(TC, TC, True)
        self.srd(X, 4, 1024)
        self.srd(WS, 28, WS_SIZE)
        A('s_branch L_pref')
        A('L_hq:')
        self.helper_q()
        A('L_pref:')
        self.helper_tail()
        A('L_b4:')
        self.final()
        A('L_end:')
        A('s_endpgm')
        A('.section .rodata,"a"')
        A('.p2align 6')
        A(f'.amdhsa_kernel {KN}_kernel')
        A('  .amdhsa_next_free_vgpr 256')
        A('  .amdhsa_next_free_sgpr 102')
        A('  .amdhsa_accum_offset 256')
        A('  .amdhsa_group_segment_fixed_size 0')
        A('  .amdhsa_kernarg_size 104')
        A('  .amdhsa_user_sgpr_count 2')
        A('  .amdhsa_user_sgpr_kernarg_segment_ptr 1')
        A('  .amdhsa_system_sgpr_workgroup_id_x 1')
        A('  .amdhsa_float_denorm_mode_32 3')
        A('.end_amdhsa_kernel')
        return '\n'.join(self.L) + '\n'

    def write_stamps(self, n):
        if not self.o['stamps']:
            return
        A = self.A
        if self.o.get('dbgstamps'):
            A('s_waitcnt lgkmcnt(0)')
            A('s_mov_b64 exec, 1')
            self.srd(76, 26, 256)
            A('v_mov_b32 v1, 0')
            def amax(sreg, off, inv):
                A(f'v_mov_b32 v2, s{sreg}')
                if inv: A('v_not_b32 v2, v2')
                A(f'buffer_atomic_umax v2, v1, s[76:79], 0 offen offset:{off} sc1')
                A('s_nop 1')
            amax(self.sreg(10), 0, False)
            amax(self.sreg(0), 4, True)
            A('s_cmp_ge_u32 s30, 4')
            A('s_cbranch_scc1 L_dbg_x')
            amax(self.sreg(4), 8, False)
            amax(self.sreg(4), 12, True)
            amax(self.sreg(2), 16, False)
            amax(self.sreg(3), 20, False)
            amax(self.sreg(3), 24, True)
            A('L_dbg_x:')
            A('s_waitcnt vmcnt(0)')
            return
        A('s_waitcnt lgkmcnt(0)')
        A('s_mov_b64 exec, 1')
        A('s_lshl_b32 s33, s2, 3')
        A('s_add_u32 s33, s33, s30')
        A('s_lshl_b32 s33, s33, 7')
        A(f's_add_u32 s33, s33, {STAMP_OFF:#x}')
        self.srd(76, 28, WS_SIZE)
        A('v_mov_b32 v1, 0')
        for k in range(n):
            A(f'v_mov_b32 v2, s{self.sreg(k)}')
            A(f'v_mov_b32 v3, s{self.sreg(k)+1}')
            A(f'buffer_store_dwordx2 v[2:3], v1, s[76:79], s33 offen offset:{8*k}')
            A('s_nop 1')
        A('s_waitcnt vmcnt(0)')

    def mlp_weights_load(self):
        A = self.A
        A('v_lshlrev_b32 v4, 3, v0')
        A('s_lshl_b32 s14, s30, 9')
        A(f'buffer_load_dwordx2 v[{RAW}:{RAW+1}], v4, s[{W1}:{W1+3}], s14 offen')
        A(f'buffer_load_dwordx2 v[{RAW+2}:{RAW+3}], v4, s[{B1}:{B1+3}], s14 offen')
        A(f'buffer_load_dwordx2 v[{W2R}:{W2R+1}], v4, s[{W2}:{W2+3}], s14 offen')

    def mlp_weights_prep(self):
        A = self.A
        for k in range(2):
            A(f'v_lshlrev_b32 v{W1F+2*k}, 16, v{RAW+k}')
            A(f'v_and_b32 v{W1F+2*k+1}, 0xffff0000, v{RAW+k}')
            A(f'v_lshlrev_b32 v{B1F+2*k}, 16, v{RAW+2+k}')
            A(f'v_and_b32 v{B1F+2*k+1}, 0xffff0000, v{RAW+2+k}')
            A(f'v_mov_b32 v{GK0+k}, {f2u(GC0):#x}')
            A(f'v_mov_b32 v{GK1+k}, {f2u(GC1):#x}')
            A(f'v_mov_b32 v{GONE+k}, 1.0')

    def streamer(self, T, TC, cover):
        A = self.A
        o = self.o
        R = min(o['ring'], 2 * T)
        nt = o['nt']
        N = 2 * T
        RB = 64
        assert RB + 16 * R <= 256
        vK, vV = 1, 2
        Q = 4
        C = [20, 24]
        G = 28
        S2 = 30
        vmax, vl, vnm = 46, 47, 3
        ACC = 48
        D = 56
        M0, M1 = 60, 61
        TA = [20, 22, 24, 26]
        U = [28, 29, 62, 63]
        KT = [56, 57, 58, 59, 62, 63]
        stp = None if not cover else ()

        def tile_of(t):
            return 6 * t if t < TC else 6 * TC + 4 * (t - TC)

        A('v_and_b32 v4, 3, v0')
        A('v_lshlrev_b32 v4, 10, v4')
        A('v_bfe_u32 v5, v0, 2, 2')
        A('v_lshlrev_b32 v5, 8, v5')
        A('v_lshrrev_b32 v6, 4, v0')
        A('v_lshlrev_b32 v6, 4, v6')
        A(f'v_add3_u32 v{vK}, v4, v5, v6')
        A(f'v_lshlrev_b32 v{vV}, 4, v0')
        A('s_lshl_b32 s44, s31, 24')
        A('s_lshl_b32 s45, s32, 19')
        A('s_add_u32 s44, s44, s45')
        if cover:
            A(f's_setprio {o["cprio"]}')
            A('s_sub_u32 s46, s30, 2')
        else:
            A('s_mov_b32 s46, s30')
        A('s_lshl_b32 s45, s46, 12')
        A('s_add_u32 s44, s44, s45')
        A('s_waitcnt lgkmcnt(0)')
        self.srd(36, 6, 0x8000000)
        self.srd(40, 8, 0x8000000)

        def issue(n):
            r = RB + (n % R) * 16
            t = n % T
            A(f's_add_u32 s45, s44, {tile_of(t)*4096:#x}')
            for j in range(4):
                if n < T:
                    A(f'buffer_load_dwordx4 v[{r+4*j}:{r+4*j+3}], v{vK}, s[36:39], s45 offen offset:{64*j} {nt}')
                else:
                    A(f'buffer_load_dwordx4 v[{r+4*j}:{r+4*j+3}], v{vV}, s[40:43], s45 offen offset:{1024*j} {nt}')

        pre0, pre = o['pre0'], o['pre']
        self.stamp(6, ('q',))
        for n in range(pre0):
            issue(n)
        self.stamp(7, ('q',))
        A('s_barrier')
        self.stamp(8, ('q',))
        for n in range(pre0, pre):
            issue(n)
        A('s_mov_b32 s48, 0x11111111'); A('s_mov_b32 s49, 0x11111111')
        A('s_mov_b32 s50, 0x22222222'); A('s_mov_b32 s51, 0x22222222')
        A('s_mov_b32 s52, 0x44444444'); A('s_mov_b32 s53, 0x44444444')
        A('s_mov_b32 s54, 0x88888888'); A('s_mov_b32 s55, 0x88888888')
        A(f's_mov_b32 s56, {f2u(SCALE):#x}')
        A(f's_mov_b32 s57, {f2u(LOG2E):#x}')
        self.sel_masks(M0, M1)
        A(f'v_mov_b32 v{vmax}, 0xff800000')
        A(f'v_mov_b32 v{vl}, 0')
        for k in range(8):
            A(f'v_mov_b32 v{ACC+k}, 0')
        A('v_bfe_u32 v62, v0, 2, 2')
        A('v_lshlrev_b32 v62, 8, v62')
        A('v_lshrrev_b32 v63, 4, v0')
        A('v_lshl_add_u32 v62, v63, 4, v62')
        for n in range(pre, R):
            A(f's_waitcnt vmcnt({4*(pre-1)})')
            if n == pre: self.stamp(9, ('q',))
            issue(n)
        self.stamp(1)
        A('s_barrier')
        for j in range(4):
            A(f'ds_read_b128 v[{Q+4*j}:{Q+4*j+3}], v62 offset:{LDS_Q + 64*j}')
        self.stamp(2)
        A('s_waitcnt lgkmcnt(0)')

        def kpost(t):
            c = C[t & 1]
            tt = t & 3
            part = (t // 4) * 4 + 4 > T
            if tt == 0 and not part:
                A(f'v_cvt_pk_bf16_f32 v{G}, v{c}, v{c+1}')
                A(f'v_cvt_pk_bf16_f32 v{G+1}, v{c+2}, v{c+3}')
            else:
                if tt == 0:
                    A(f'v_mov_b32 v{G}, 0xff80ff80')
                    A(f'v_mov_b32 v{G+1}, 0xff80ff80')
                A(f'v_cvt_pk_bf16_f32 v{KT[4]}, v{c}, v{c+1}')
                A(f'v_cvt_pk_bf16_f32 v{KT[5]}, v{c+2}, v{c+3}')
                sm = 48 + 2 * tt
                A(f'v_cndmask_b32 v{G}, v{G}, v{KT[4]}, s[{sm}:{sm+1}]')
                A(f'v_cndmask_b32 v{G+1}, v{G+1}, v{KT[5]}, s[{sm}:{sm+1}]')
            if tt == 3 or t == T - 1:
                grp = t // 4
                u = KT[:4]
                A(f'v_lshlrev_b32 v{u[0]}, 16, v{G}')
                A(f'v_and_b32 v{u[1]}, 0xffff0000, v{G}')
                A(f'v_lshlrev_b32 v{u[2]}, 16, v{G+1}')
                A(f'v_and_b32 v{u[3]}, 0xffff0000, v{G+1}')
                for k in range(4):
                    A(f'v_mul_f32 v{u[k]}, s56, v{u[k]}')
                A(f'v_max3_f32 v{vmax}, v{vmax}, v{u[0]}, v{u[1]}')
                A(f'v_max3_f32 v{vmax}, v{vmax}, v{u[2]}, v{u[3]}')
                A(f'v_cvt_pk_bf16_f32 v{S2+2*grp}, v{u[0]}, v{u[1]}')
                A(f'v_cvt_pk_bf16_f32 v{S2+2*grp+1}, v{u[2]}, v{u[3]}')

        extra = [0]

        def wait_for(n):
            issued = min(n + R - 1, N - 1)
            A(f's_waitcnt vmcnt({4*(issued-n) + extra[0]})')

        def finish_l():
            self.dpp('v_add_f32', [vl], 'quad_perm:[1,0,3,2]')
            self.dpp('v_add_f32', [vl], 'quad_perm:[2,3,0,1]')
            self.swap_red('v_add_f32', [vl], [62], 16)
            self.swap_red('v_add_f32', [vl], [62], 32)
            A('s_lshl_b32 s45, s46, 11')
            A(f's_add_u32 s45, s45, {LDS_O}')
            A('v_lshlrev_b32 v28, 5, v0')
            A('v_add_u32 v28, s45, v28')
            A('s_lshl_b32 s45, s46, 5')
            A(f's_add_u32 s45, s45, {LDS_ML}')
            A('v_bfe_u32 v29, v0, 2, 2')
            A('v_lshlrev_b32 v29, 3, v29')
            A('v_add_u32 v29, s45, v29')
            A(f'ds_write_b64 v29, v[{vmax}:{vl}]')

        pool = (not cover) and o['pool'] > 0
        PBASE = 128 - o['pool']
        PQ = o['pool'] // 4 - 2
        NPOOL = 32 * PQ
        if pool:
            busy = {(N - 1 - k) % R for k in range(5)}
            free = [x for x in range(R) if x not in busy]
            PS = [(RB + 16 * free[2 * k], RB + 16 * free[2 * k + 1]) for k in range(3)]
        AI = [30, 31]
        vZ, vBP = 32, 33

        def atomic(k):
            A('s_mov_b64 exec, 1')
            A(f'v_mov_b32 v{AI[k & 1]}, 1')
            A(f'buffer_atomic_add v{AI[k & 1]}, v{vZ}, s[60:63], s58 offen sc0 sc1')
            A('s_mov_b64 exec, -1')

        def pool_loads(k):
            kr, vr = PS[k % 3]
            for j in range(4):
                A(f'buffer_load_dwordx4 v[{kr+4*j}:{kr+4*j+3}], v{vK}, s[36:39], s45 offen offset:{64*j} {nt}')
            for j in range(4):
                A(f'buffer_load_dwordx4 v[{vr+4*j}:{vr+4*j+3}], v{vV}, s[40:43], s45 offen offset:{1024*j} {nt}')

        def pool_issue(k):
            A(f'v_readfirstlane_b32 s45, v{AI[k & 1]}')
            A(f's_cmp_lt_u32 s45, {NPOOL}')
            A('s_cselect_b32 s59, s59, 0')
            A(f's_mov_b32 s{64 + k % 3}, s59')
            if PQ & (PQ - 1) == 0:
                A(f's_lshr_b32 s47, s45, {PQ.bit_length() - 1}')
                A(f's_and_b32 s45, s45, {PQ - 1}')
            else:
                A(f's_mul_hi_u32 s47, s45, {(1 << 32) // PQ + 1:#x}')
                A(f's_mul_i32 s48, s47, {PQ}')
                A('s_sub_u32 s45, s45, s48')
            A('s_lshl_b32 s47, s47, 19')
            A('s_lshl_b32 s45, s45, 14')
            A('s_add_u32 s45, s45, s47')
            A('s_add_u32 s45, s45, s67')
            A('s_cmp_lg_u32 s59, 0')
            A('s_cselect_b32 s45, s45, 0x10000000')
            A('s_cselect_b32 s58, s58, 0x30000000')
            atomic(k + 1)
            pool_loads(k)

        def pool_prologue(rem):
            if rem == 3:
                self.srd(60, 28, WS_SIZE)
                A('s_lshl_b32 s58, s31, 2')
                A('s_add_u32 s58, s58, s30')
                A('s_lshl_b32 s58, s58, 8')
                A(f's_add_u32 s58, s58, {WS_CNT:#x}')
                A('s_lshl_b32 s67, s31, 24')
                A('s_lshl_b32 s45, s30, 12')
                A('s_add_u32 s67, s67, s45')
                A(f's_add_u32 s67, s67, {(PBASE + 8) * 4096:#x}')
                A('s_mov_b32 s59, 1')
                A('s_mov_b32 s64, 1')
                A('s_mov_b32 s65, 1')
                A(f'v_mov_b32 v{vZ}, 0')
                A(f'v_lshrrev_b32 v{vBP}, 4, v0')
                A(f'v_lshlrev_b32 v{vBP}, 4, v{vBP}')
                A(f's_add_u32 s45, s44, {PBASE * 4096:#x}')
                pool_loads(0)
                extra[0] += 8
            elif rem == 1:
                A(f'v_mov_b32 v34, {LDS_F}')
                self.lds_wait(34, 4, vt=35, st=45)
                atomic(2)
                A(f's_add_u32 s45, s44, {(PBASE + 4) * 4096:#x}')
                pool_loads(1)
                extra[0] += 9

        def pool_loop():
            PC = 36
            PU = [40, 41, 42, 43]
            lp = self.label('pool')
            A(f'{lp}:')
            for u in range(6):
                kr, vr = PS[u % 3]
                A('s_waitcnt vmcnt(8)')
                A(f's_cmp_eq_u32 s{64 + u % 3}, 0')
                A(f's_cbranch_scc1 {lp}_x')
                for j in range(4):
                    cc = '0' if j == 0 else f'v[{PC}:{PC+3}]'
                    A(f'v_mfma_f32_16x16x32_bf16 v[{PC}:{PC+3}], v[{kr+4*j}:{kr+4*j+3}], v[{Q+4*j}:{Q+4*j+3}], {cc}')
                pool_issue(u + 2)
                A(f'v_cvt_pk_bf16_f32 v{PU[0]}, v{PC}, v{PC+1}')
                A(f'v_cvt_pk_bf16_f32 v{PU[2]}, v{PC+2}, v{PC+3}')
                A(f'v_and_b32 v{PU[1]}, 0xffff0000, v{PU[0]}')
                A(f'v_lshlrev_b32 v{PU[0]}, 16, v{PU[0]}')
                A(f'v_and_b32 v{PU[3]}, 0xffff0000, v{PU[2]}')
                A(f'v_lshlrev_b32 v{PU[2]}, 16, v{PU[2]}')
                for k in range(4):
                    A(f'v_mul_f32 v{PU[k]}, s56, v{PU[k]}')
                self.rnd_bf16_pair(PU[0], PU[1], PC)
                self.rnd_bf16_pair(PU[2], PU[3], PC + 1)
                A(f'v_max3_f32 v{PC}, v{PU[0]}, v{PU[1]}, v{PU[2]}')
                A(f'v_max_f32 v{PC}, v{PC}, v{PU[3]}')
                A(f'v_cmp_gt_f32 vcc, v{PC}, v{vmax}')
                A(f's_cbranch_vccz {lp}_k{u}')
                self.swap_red('v_max_f32', [PC], [PC + 1], 16)
                self.swap_red('v_max_f32', [PC], [PC + 1], 32)
                A(f'v_max_f32 v{PC}, v{PC}, v{vmax}')
                A(f'v_sub_f32 v{PC+1}, v{vmax}, v{PC}')
                A(f'v_mul_f32 v{PC+1}, s57, v{PC+1}')
                A(f'v_exp_f32 v{PC+1}, v{PC+1}')
                A(f'v_mov_b32 v{vmax}, v{PC}')
                A(f'v_mul_f32 v{vnm}, s57, v{PC}')
                A(f'v_sub_f32 v{vnm}, 0, v{vnm}')
                A(f'v_mul_f32 v{vl}, v{vl}, v{PC+1}')
                A(f'ds_bpermute_b32 v{PC+2}, v{vBP}, v{PC+1}')
                A('s_waitcnt lgkmcnt(0)')
                for k in range(8):
                    A(f'v_mul_f32 v{ACC+k}, v{ACC+k}, v{PC+2}')
                A(f'{lp}_k{u}:')
                for k in range(4):
                    A(f'v_fma_f32 v{PU[k]}, v{PU[k]}, s57, v{vnm}')
                for k in range(4):
                    A(f'v_exp_f32 v{PU[k]}, v{PU[k]}')
                self.nop(1)
                for k in range(4):
                    A(f'v_cvt_pk_bf16_f32 v{D+k}, v{PU[k]}, v{PU[k]}')
                for k in range(4):
                    A(f'v_and_b32 v{TA[k]}, v{D+k}, v{M0}')
                    A(f'v_and_b32 v{TA[k]+1}, v{D+k}, v{M1}')
                A(f'v_add_f32 v{PU[0]}, v{PU[0]}, v{PU[1]}')
                A(f'v_add_f32 v{PU[2]}, v{PU[2]}, v{PU[3]}')
                for k in range(4):
                    A(f'v_mfma_f32_16x16x16_bf16 v[{ACC}:{ACC+3}], v[{TA[k]}:{TA[k]+1}], v[{vr+4*k}:{vr+4*k+1}], v[{ACC}:{ACC+3}]')
                    A(f'v_mfma_f32_16x16x16_bf16 v[{ACC+4}:{ACC+7}], v[{TA[k]}:{TA[k]+1}], v[{vr+4*k+2}:{vr+4*k+3}], v[{ACC+4}:{ACC+7}]')
                A(f'v_add_f32 v{PU[0]}, v{PU[0]}, v{PU[2]}')
                A(f'v_fmac_f32 v{vl}, 0.25, v{PU[0]}')
            A(f's_branch {lp}')
            A(f'{lp}_x:')

        for n in range(T):
            r = RB + (n % R) * 16
            c = C[n & 1]
            wait_for(n)
            for j in range(4):
                cc = '0' if j == 0 else f'v[{c}:{c+3}]'
                A(f'v_mfma_f32_16x16x32_bf16 v[{c}:{c+3}], v[{r+4*j}:{r+4*j+3}], v[{Q+4*j}:{Q+4*j+3}], {cc}')
            if n + R < N:
                issue(n + R)
            else:
                self.nop(5)
            if n >= 1:
                kpost(n - 1)
        self.nop(9)
        kpost(T - 1)
        self.dpp('v_max_f32', [vmax], 'quad_perm:[1,0,3,2]')
        self.dpp('v_max_f32', [vmax], 'quad_perm:[2,3,0,1]')
        self.swap_red('v_max_f32', [vmax], [62], 16)
        self.swap_red('v_max_f32', [vmax], [62], 32)
        self.rnd_bf16(vmax, vmax)
        A(f'v_mul_f32 v{vnm}, s57, v{vmax}')
        A(f'v_sub_f32 v{vnm}, 0, v{vnm}')
        self.stamp(3)
        for t in range(T):
            n = T + t
            r = RB + (n % R) * 16
            tt = t & 3
            if tt == 0:
                grp = t // 4
                A(f'v_lshlrev_b32 v{U[0]}, 16, v{S2+2*grp}')
                A(f'v_and_b32 v{U[1]}, 0xffff0000, v{S2+2*grp}')
                A(f'v_lshlrev_b32 v{U[2]}, 16, v{S2+2*grp+1}')
                A(f'v_and_b32 v{U[3]}, 0xffff0000, v{S2+2*grp+1}')
                for k in range(4):
                    A(f'v_fma_f32 v{U[k]}, v{U[k]}, s57, v{vnm}')
                for k in range(4):
                    A(f'v_exp_f32 v{U[k]}, v{U[k]}')
                self.nop(1)
                for k in range(4):
                    A(f'v_cvt_pk_bf16_f32 v{D+k}, v{U[k]}, v{U[k]}')
                A(f'v_add_f32 v{U[0]}, v{U[0]}, v{U[1]}')
                A(f'v_add_f32 v{U[2]}, v{U[2]}, v{U[3]}')
                A(f'v_add_f32 v{vl}, v{vl}, v{U[0]}')
                A(f'v_add_f32 v{vl}, v{vl}, v{U[2]}')
            if pool and t >= T - 4:
                pool_prologue(T - 1 - t)
            if t == T - 1 and not pool:
                finish_l()
            qp = f'quad_perm:[{tt},{tt},{tt},{tt}] row_mask:0xf bank_mask:0xf'
            for k in range(4):
                A(f'v_and_b32_dpp v{TA[k]}, v{D+k}, v{M0} {qp}')
                A(f'v_and_b32_dpp v{TA[k]+1}, v{D+k}, v{M1} {qp}')
            wait_for(n)
            self.nop(1)
            for k in range(4):
                A(f'v_mfma_f32_16x16x16_bf16 v[{ACC}:{ACC+3}], v[{TA[k]}:{TA[k]+1}], v[{r+4*k}:{r+4*k+1}], v[{ACC}:{ACC+3}]')
                A(f'v_mfma_f32_16x16x16_bf16 v[{ACC+4}:{ACC+7}], v[{TA[k]}:{TA[k]+1}], v[{r+4*k+2}:{r+4*k+3}], v[{ACC+4}:{ACC+7}]')
            if n + R < N:
                issue(n + R)
        if pool:
            self.stamp(5)
            pool_loop()
            self.seg_begin('h')
            finish_l()
        else:
            if not cover: self.seg_begin('h')
            self.nop(7)
        self.stamp(4, None if not cover else ())
        A(f'ds_write_b128 v28, v[{ACC}:{ACC+3}]')
        A(f'ds_write_b128 v28, v[{ACC+4}:{ACC+7}] offset:16')
        if not cover: self.seg_end('h')

    def helper_q(self):
        A = self.A
        o = self.o
        nt = o['nt']
        spin = o['spin']
        A('s_setprio 3')
        A('v_lshlrev_b32 v1, 4, v0')
        A('v_and_b32 v2, 15, v0')
        A('v_lshrrev_b32 v3, 4, v0')
        A('s_lshr_b32 s99, s32, 2')
        A('s_waitcnt lgkmcnt(0)')
        A(f's_load_dwordx2 s[96:97], s[28:29], {WS_E:#x}')
        A('s_mov_b32 s0, s99')
        A('s_and_b32 s1, s32, 3')
        self.srd(X, 4, 1024)
        self.srd(WQ, 10, 0x400000)
        A('s_cmp_lg_u32 s33, 0')
        A('s_cbranch_scc1 L_h_b0')
        XA, XB, XP, WQR = 8, 12, 20, 64
        A('v_lshlrev_b32 v4, 17, v3')
        A('v_lshl_add_u32 v4, v2, 4, v4')
        A('s_lshl_b32 s14, s0, 19')
        A('s_lshl_b32 s15, s31, 2')
        A('s_add_u32 s15, s15, s1')
        A('s_lshl_b32 s15, s15, 8')
        A('s_add_u32 s14, s14, s15')
        A(f'buffer_load_dwordx4 v[{XA}:{XA+3}], v1, s[{X}:{X+3}], 0 offen')
        A('v_lshlrev_b32 v6, 5, v3')
        A('s_lshl_b32 s15, s0, 7')
        A(f'buffer_load_dwordx4 v[{XB}:{XB+3}], v6, s[{X}:{X+3}], s15 offen')
        A(f'buffer_load_dwordx4 v[{XB+4}:{XB+7}], v6, s[{X}:{X+3}], s15 offen offset:16')
        A('v_mov_b32 v5, 0')
        A(f'buffer_load_dword v{XP}, v5, s[{X}:{X+3}], 0 offen')
        for k in range(16):
            A(f'buffer_load_dwordx4 v[{WQR+4*k}:{WQR+4*k+3}], v4, s[{WQ}:{WQ+3}], s14 offen {nt}')
            A('s_add_u32 s14, s14, 8192')
        A(f'v_mov_b32 v7, {LDS_F}')
        A('ds_write_b32 v7, v5')
        A('ds_write_b32 v7, v5 offset:4')
        A('s_waitcnt lgkmcnt(0)')
        A('L_h_b0:')
        self.stamp(4, ('q',))
        A('s_barrier')
        self.srd(WS, 28, WS_SIZE)
        A('s_waitcnt lgkmcnt(0)')
        A(f's_add_u32 s96, s96, {TAGC & 0xffffffff:#x}')
        A(f's_addc_u32 s97, s97, {TAGC >> 32:#x}')
        A('s_cmp_lg_u32 s33, 0')
        A('s_cbranch_scc1 L_h_qgather')
        self.sel_masks(44, 45)
        A('v_lshlrev_b32 v46, 6, v2')
        A('v_lshl_add_u32 v46, v3, 4, v46')
        A('s_lshl_b32 s6, s31, 15')
        A('s_lshl_b32 s15, s0, 12')
        A('s_add_u32 s6, s6, s15')
        A('s_lshl_b32 s15, s1, 10')
        A('s_add_u32 s6, s6, s15')
        A('v_and_b32 v5, 1, v3')
        A('v_cmp_eq_u32 s[72:73], 1, v5')
        A('v_cmp_lt_u32 s[74:75], 1, v3')
        A('v_mov_b32 v26, s96')
        A('v_mov_b32 v27, s97')
        A('s_waitcnt vmcnt(16)')
        self.stamp(6, ('q',))
        V8 = list(range(28, 36))
        for k in range(4):
            A(f'v_lshlrev_b32 v{V8[2*k]}, 16, v{XA+k}')
            A(f'v_and_b32 v{V8[2*k+1]}, 0xffff0000, v{XA+k}')
        A(f'v_lshlrev_b32 v{XP}, 16, v{XP}')
        A(f'v_mov_b32 v{XP+1}, v{XP}')
        TT = list(range(48, 58))
        self.ln_moments(V8, XP, TT, 76, 77)
        self.ln_finish(TT[8], TT[9], 22, 23, 24)
        self.stamp(7, ('q',))
        V16 = list(range(28, 44))
        for k in range(8):
            A(f'v_lshlrev_b32 v{V16[2*k]}, 16, v{XB+k}')
            A(f'v_and_b32 v{V16[2*k+1]}, 0xffff0000, v{XB+k}')
        self.ln_apply(V16, V16, 22, 23, 24)
        QA = 48
        for k in range(16):
            a = 56 + 2 * (k & 3)
            A(f'v_cvt_pk_bf16_f32 v24, v{V16[k]}, v{V16[k]}')
            A(f'v_and_b32 v{a}, v24, v44')
            A(f'v_and_b32 v{a+1}, v24, v45')
            A(f's_waitcnt vmcnt({15 - k})')
            if k == 0: self.stamp(8, ('q',))
            if k == 15: self.stamp(9, ('q',))
            self.nop(1)
            c0 = '0' if k == 0 else f'v[{QA}:{QA+3}]'
            c1 = '0' if k == 0 else f'v[{QA+4}:{QA+7}]'
            A(f'v_mfma_f32_16x16x16_bf16 v[{QA}:{QA+3}], v[{a}:{a+1}], v[{WQR+4*k}:{WQR+4*k+1}], {c0}')
            A(f'v_mfma_f32_16x16x16_bf16 v[{QA+4}:{QA+7}], v[{a}:{a+1}], v[{WQR+4*k+2}:{WQR+4*k+3}], {c1}')
        self.nop(8)
        for k in range(4):
            A(f'v_cndmask_b32 v{QA+k}, v{QA+k}, v{QA+4+k}, s[74:75]')
        A(f'v_cndmask_b32 v24, v{QA}, v{QA+2}, s[72:73]')
        A(f'v_cndmask_b32 v25, v{QA+1}, v{QA+3}, s[72:73]')
        if o['qlocal']:
            A(f's_add_u32 s15, s6, {WS_QL:#x}')
            A(f'buffer_store_dwordx4 v[24:27], v46, s[{WS}:{WS+3}], s15 offen')
        A(f'buffer_store_dwordx4 v[24:27], v46, s[{WS}:{WS+3}], s6 offen offset:{WS_QP} sc1')
        self.stamp(1)
        A('v_lshlrev_b32 v5, 10, v0')
        A('s_lshl_b32 s14, s31, 15')
        A('s_mov_b32 exec_hi, 0')
        A(f's_mov_b32 s15, {spin}')
        lp = self.label('probe')
        A(f'{lp}:')
        A(f's_sleep {o["pollsleep"]}')
        A(f'buffer_load_dwordx2 v[28:29], v5, s[{WS}:{WS+3}], s14 offen offset:{WS_QP+1016} sc1')
        A('s_sub_u32 s15, s15, 1')
        A('s_cmp_eq_u32 s15, 0')
        A(f's_cbranch_scc1 {lp}_x')
        A('s_waitcnt vmcnt(0)')
        A('v_cmp_ne_u64 vcc, s[96:97], v[28:29]')
        A('s_and_b64 exec, exec, vcc')
        A(f's_cbranch_execnz {lp}')
        A(f'{lp}_x:')
        A('s_mov_b64 exec, -1')
        A('v_mov_b32 v6, 1')
        A('ds_write_b32 v7, v6')
        self.stamp(5, ('q',))
        A('L_h_qgather:')
        A(f'v_mov_b32 v7, {LDS_F}')
        A('s_lshl_b32 s14, s31, 15')
        A('s_lshl_b32 s15, s33, 11')
        A('s_add_u32 s14, s14, s15')
        self.lds_wait(7, 0)
        A(f's_mov_b32 s15, {spin}')
        lp = self.label('pollqd')
        if o['qlocal']:
            A(f's_add_u32 s8, s14, {WS_QL:#x}')
            A(f's_branch {lp}_f')
        A(f'{lp}:')
        A('s_mov_b32 s8, s14')
        A(f'{lp}_f:')
        for k in range(8):
            A(f'buffer_load_dwordx4 v[{64+8*k}:{67+8*k}], v1, s[{WS}:{WS+3}], s8 offen offset:{WS_QP} sc1')
            A(f'buffer_load_dwordx4 v[{68+8*k}:{71+8*k}], v1, s[{WS}:{WS+3}], s8 offen offset:{WS_QP+1024} sc1')
            if k < 7:
                A('s_add_u32 s8, s8, 4096')
        A('s_sub_u32 s15, s15, 1')
        A('s_cmp_eq_u32 s15, 0')
        A(f's_cbranch_scc1 {lp}_x')
        for k in range(16):
            A(f's_waitcnt vmcnt({15-k})')
            if k == 0:
                A(f'v_cmp_ne_u64 s[76:77], s[96:97], v[{66+4*k}:{67+4*k}]')
            else:
                A(f'v_cmp_ne_u64 vcc, s[96:97], v[{66+4*k}:{67+4*k}]')
                A('s_or_b64 s[76:77], s[76:77], vcc')
        A('s_and_b64 exec, exec, s[76:77]')
        A(f's_cbranch_execz {lp}_x')
        A('s_sleep 2')
        A(f's_branch {lp}')
        A(f'{lp}_x:')
        A('s_mov_b64 exec, -1')
        A('s_waitcnt vmcnt(0)')
        self.stamp(2)
        for k in range(1, 8):
            A(f'v_pk_add_f32 v[64:65], v[64:65], v[{64+8*k}:{65+8*k}]')
            A(f'v_pk_add_f32 v[68:69], v[68:69], v[{68+8*k}:{69+8*k}]')
        A('v_cvt_pk_bf16_f32 v16, v64, v65')
        A('v_cvt_pk_bf16_f32 v17, v68, v69')
        A('s_lshl_b32 s15, s33, 9')
        A('v_lshl_add_u32 v5, v0, 2, s15')
        A(f'ds_write_b32 v5, v16 offset:{LDS_Q}')
        A(f'ds_write_b32 v5, v17 offset:{LDS_Q+256}')
        A('s_waitcnt lgkmcnt(0)')
        self.stamp(3)
        A('s_barrier')
        A('s_cmp_lg_u32 s33, 1')
        A('s_cbranch_scc1 L_pref')
        A('v_mov_b32 v24, -1'); A('v_mov_b32 v25, -1'); A('v_mov_b32 v26, -1'); A('v_mov_b32 v27, -1')
        A('s_lshl_b32 s14, s3, 11')
        A(f's_add_u32 s14, s14, {WS_P1:#x}')
        for k in range(2):
            A(f'buffer_store_dwordx4 v[24:27], v1, s[{WS}:{WS+3}], s14 offen offset:{1024*k} sc1')
        A('s_lshl_b32 s14, s31, 2')
        A('s_add_u32 s14, s14, s34')
        A('s_lshl_b32 s14, s14, 11')
        A('s_lshl_b32 s15, s35, 8')
        A('s_add_u32 s14, s14, s15')
        A(f's_add_u32 s14, s14, {WS_P2:#x}')
        A('v_lshlrev_b32 v5, 2, v0')
        A(f'buffer_store_dword v24, v5, s[{WS}:{WS+3}], s14 offen sc1')
        A('s_cmp_ge_u32 s32, 16')
        A('s_cbranch_scc1 L_h1_nohv')
        A(f's_mul_i32 s14, s31, {HVS}')
        A(f's_add_u32 s14, s14, {WS_HV:#x}')
        A('s_lshl_b32 s15, s32, 7')
        A('v_add_u32 v5, s15, v1')
        A('s_lshl_b32 s15, s32, 4')
        A('s_add_u32 s15, s15, 2048')
        A('v_mov_b32 v6, s15')
        A('v_cmp_eq_u32 vcc, 8, v0')
        self.nop(2)
        A('v_cndmask_b32 v5, v5, v6, vcc')
        A('s_mov_b64 exec, 0x1ff')
        A(f'buffer_store_dwordx4 v[24:27], v5, s[{WS}:{WS+3}], s14 offen sc1')
        A('s_mov_b64 exec, -1')
        A('L_h1_nohv:')
        A('s_cmp_lg_u32 s32, 0')
        A('s_cbranch_scc1 L_h1_nocnt')
        A('s_lshl_b32 s14, s31, 10')
        A(f's_add_u32 s14, s14, {WS_CNT:#x}')
        A('v_mov_b32 v32, 0'); A('v_mov_b32 v33, 0'); A('v_mov_b32 v34, 0'); A('v_mov_b32 v35, 0')
        A(f'buffer_store_dwordx4 v[32:35], v1, s[{WS}:{WS+3}], s14 offen sc1')
        A('L_h1_nocnt:')
        A('s_getreg_b32 s8, hwreg(HW_REG_XCC_ID, 0, 4)')
        A('v_mov_b32 v28, s96')
        A('v_mov_b32 v29, s97')
        A('v_mov_b32 v30, s8')
        A('v_mov_b32 v31, 0')
        A('v_mov_b32 v5, 0')
        A('s_lshl_b32 s14, s3, 4')
        A(f's_add_u32 s14, s14, {WS_F:#x}')
        A('s_mov_b64 exec, 1')
        A('s_waitcnt vmcnt(0)')
        A(f'buffer_store_dwordx4 v[28:31], v5, s[{WS}:{WS+3}], s14 offen sc1')
        A('s_mov_b64 exec, -1')
        A(f's_mov_b32 s14, {WS_F:#x}')
        A(f's_mov_b32 s15, {spin}')
        lp = self.label('pollall')
        A(f'{lp}:')
        A('s_sleep 127')
        A('s_sleep 127')
        for k in range(4):
            A(f'buffer_load_dwordx2 v[{24+2*k}:{25+2*k}], v1, s[{WS}:{WS+3}], s14 offen offset:{1024*k} sc1')
        A('s_sub_u32 s15, s15, 1')
        A('s_cmp_eq_u32 s15, 0')
        A(f's_cbranch_scc1 {lp}_x')
        A('s_waitcnt vmcnt(0)')
        for k in range(4):
            if k == 0:
                A(f'v_cmp_ne_u64 s[76:77], s[96:97], v[{24+2*k}:{25+2*k}]')
            else:
                A(f'v_cmp_ne_u64 vcc, s[96:97], v[{24+2*k}:{25+2*k}]')
                A('s_or_b64 s[76:77], s[76:77], vcc')
        A('s_and_b64 exec, exec, s[76:77]')
        A(f's_cbranch_execnz {lp}')
        A(f'{lp}_x:')
        A('s_mov_b64 exec, -1')
        A('v_mov_b32 v6, 1')
        A('ds_write_b32 v7, v6 offset:4')
        A('s_lshl_b32 s14, s31, 9')
        A(f's_add_u32 s14, s14, {WS_F:#x}')
        A('s_mov_b32 exec_hi, 0')
        A(f'buffer_load_dwordx4 v[24:27], v1, s[{WS}:{WS+3}], s14 offen sc1')
        A('s_waitcnt vmcnt(0)')
        A('v_cmp_ne_u64 s[76:77], s[96:97], v[24:25]')
        A('v_cmp_ne_u32 vcc, s8, v26')
        A('s_or_b64 s[76:77], s[76:77], vcc')
        A('s_cselect_b32 s14, 0, 1')
        if not o['fast']:
            A('s_mov_b32 s14, 0')
        A('s_mov_b64 exec, -1')
        A('v_mov_b32 v6, s14')
        A('ds_write_b32 v7, v6 offset:8')

    def helper_tail(self):
        A = self.A
        o = self.o
        nt = o['nt']
        spin = o['spin']
        WOR, WOT, XR, B2R, XF = 64, 80, 108, 110, 128
        vOA, vMLA, vP1o, vP1m, vWw, vWr, vP2, vHw, vHo = 140, 141, 142, 143, 144, 145, 146, 147, 149
        A('s_setprio 3')
        self.srd(WO, 12, 0x400000)
        self.srd(W1, 16, 3584)
        self.srd(B1, 18, 3584)
        self.srd(W2, 20, 3584)
        self.srd(B2, 22, 2)
        self.srd(OUT, 24, 1024)
        A(f's_mov_b32 s9, {f2u(LOG2E):#x}')
        A('v_lshlrev_b32 v1, 4, v0')
        A('v_and_b32 v8, 7, v0')
        A('v_lshrrev_b32 v9, 3, v0')
        A('v_and_b32 v10, 31, v0')
        A('v_lshlrev_b32 v4, 12, v8')
        A('v_lshl_add_u32 v4, v9, 4, v4')
        A('s_lshl_b32 s8, s31, 2')
        A('s_add_u32 s8, s8, s34')
        A('s_lshl_b32 s14, s8, 17')
        A('s_lshl_b32 s15, s33, 15')
        A('s_add_u32 s14, s14, s15')
        A('s_lshl_b32 s15, s35, 7')
        A('s_add_u32 s14, s14, s15')
        for k in range(4):
            A(f'buffer_load_dwordx4 v[{WOR+4*k}:{WOR+4*k+3}], v4, s[{WO}:{WO+3}], s14 offen offset:{1024*k} {nt}')
        self.mlp_weights_load()
        A('v_lshlrev_b32 v5, 3, v8')
        A('s_and_b32 s14, s32, 15')
        A('s_lshl_b32 s14, s14, 6')
        A(f'buffer_load_dwordx2 v[{XR}:{XR+1}], v5, s[{X}:{X+3}], s14 offen')
        A('v_mov_b32 v5, 0')
        A(f'buffer_load_ushort v{B2R}, v5, s[{B2}:{B2+3}], 0 offen')
        A('s_lshl_b32 s14, s33, 9')
        A(f's_add_u32 s14, s14, {LDS_O}')
        A(f'v_lshl_add_u32 v{vOA}, v10, 4, s14')
        A('s_lshl_b32 s14, s33, 3')
        A(f's_add_u32 s14, s14, {LDS_ML}')
        A(f'v_mov_b32 v{vMLA}, s14')
        A(f'v_lshlrev_b32 v{vP1o}, 11, v9')
        A('s_lshl_b32 s14, s33, 7')
        A(f'v_lshl_add_u32 v{vP1o}, v8, 4, v{vP1o}')
        A(f'v_add_u32 v{vP1o}, s14, v{vP1o}')
        A('s_lshl_b32 s14, s33, 8')
        A(f's_add_u32 s14, s14, {LDS_W}')
        A(f'v_lshl_add_u32 v{vWw}, v9, 5, s14')
        A(f'v_lshlrev_b32 v{vWr}, 2, v0')
        A('v_lshlrev_b32 v4, 13, v9')
        A(f'v_lshl_add_u32 v{vP2}, v8, 4, v4')
        A('s_and_b32 s15, s32, 15')
        A('s_lshl_b32 s14, s15, 7')
        A(f's_add_u32 s6, s14, {WS_P2:#x}')
        A('s_add_u32 s7, s6, 4096')
        A(f's_mul_i32 s25, s31, {HVS}')
        A(f's_add_u32 s25, s25, {WS_HV:#x}')
        A('v_add_u32 v148, s14, v1')
        A('s_lshl_b32 s15, s15, 4')
        A('s_add_u32 s15, s15, 2048')
        A('v_mov_b32 v4, s15')
        A('v_cmp_eq_u32 s[48:49], 8, v0')
        self.nop(2)
        A('v_cndmask_b32 v148, v148, v4, s[48:49]')
        A('s_lshr_b32 s14, s2, 1')
        A('s_lshl_b32 s14, s14, 4')
        A('v_mov_b32 v4, s14')
        A(f'v_add_u32 v{vHw}, 0x800, v1')
        A('v_cmp_lt_u32 vcc, 15, v0')
        A(f'v_mov_b32 v{vHo}, {LDS_H}')
        A('s_nop 0')
        A(f'v_cndmask_b32 v{vHw}, v{vHw}, v4, vcc')
        A('s_lshl_b32 s14, s3, 11')
        A('s_lshl_b32 s15, s33, 9')
        A('s_add_u32 s14, s14, s15')
        A(f's_add_u32 s16, s14, {WS_P1:#x}')
        A('s_lshl_b32 s14, s31, 16')
        A('s_lshl_b32 s15, s34, 9')
        A('s_add_u32 s14, s14, s15')
        A(f's_add_u32 s10, s14, {WS_P1:#x}')
        A('s_add_u32 s11, s10, 16384')
        A('s_add_u32 s12, s10, 32768')
        A('s_add_u32 s13, s10, 49152')
        A('s_lshl_b32 s14, s8, 11')
        A('s_lshl_b32 s15, s35, 8')
        A('s_add_u32 s14, s14, s15')
        A(f's_add_u32 s17, s14, {WS_P2:#x}')
        A('s_waitcnt vmcnt(0)')
        A('s_mov_b32 s14, 0x05040100')
        A('s_mov_b32 s15, 0x07060302')
        for p in range(2):
            for dw in range(4):
                lo, hi = WOR + 8 * p + dw, WOR + 8 * p + 4 + dw
                A(f'v_perm_b32 v{WOT+8*p+2*dw}, v{hi}, v{lo}, s14')
                A(f'v_perm_b32 v{WOT+8*p+2*dw+1}, v{hi}, v{lo}, s15')
        self.mlp_weights_prep()
        for k in range(2):
            A(f'v_lshlrev_b32 v{XF+2*k}, 16, v{XR+k}')
            A(f'v_and_b32 v{XF+2*k+1}, 0xffff0000, v{XR+k}')
        A(f'v_lshlrev_b32 v{B2R}, 16, v{B2R}')
        A('v_cmp_lt_u32 s[18:19], 31, v0')
        if o['warm']:
            A('s_cmp_lg_u32 s33, 0')
            A('s_cbranch_scc1 L_nowarm')
            self.warm_pass(['h', 'a', 'b', 'c', 'd1', 'e', 'f', 'g'])
            self.srd(WS, 28, WS_SIZE)
            A('L_nowarm:')
        for k in range(4):
            A(f's_mov_b64 s[{72+2*k}:{73+2*k}], -1')
        A('s_waitcnt lgkmcnt(0)')
        A('s_barrier')
        self.seg_begin('a')
        self.stamp(4, (True,))
        NP = NPART
        ML, OO = 16, 28
        A(f'ds_read_b32 v14, v{vHo} offset:{LDS_F + 8 - LDS_H}')
        for w in range(NP):
            A(f'ds_read_b64 v[{ML+2*w}:{ML+2*w+1}], v{vMLA} offset:{32*w}')
        for w in range(NP):
            A(f'ds_read_b128 v[{OO+4*w}:{OO+4*w+3}], v{vOA} offset:{2048*w}')
        A(f's_waitcnt lgkmcnt({NP})')
        A(f'v_max3_f32 v12, v{ML}, v{ML+2}, v{ML+4}')
        A(f'v_max3_f32 v13, v{ML+6}, v{ML+8}, v{ML+10}')
        A('v_max_f32 v12, v12, v13')
        A('v_readfirstlane_b32 s24, v14')
        A('v_mul_f32 v13, s9, v12')
        for w in range(NP):
            A(f'v_fma_f32 v{ML+2*w}, v{ML+2*w}, s9, -v13')
        for w in range(NP):
            A(f'v_exp_f32 v{ML+2*w}, v{ML+2*w}')
        A(f'v_mul_f32 v13, v{ML}, v{ML+1}')
        for w in range(1, NP):
            A(f'v_fmac_f32 v13, v{ML+2*w}, v{ML+2*w+1}')
        A('s_waitcnt lgkmcnt(0)')
        for c in range(4):
            A(f'v_mul_f32 v{52+c}, v{ML}, v{OO+c}')
        for w in range(1, NP):
            for c in range(4):
                A(f'v_fmac_f32 v{52+c}, v{ML+2*w}, v{OO+4*w+c}')
        A('v_cvt_pk_bf16_f32 v52, v52, v53')
        A('v_cvt_pk_bf16_f32 v53, v54, v55')
        A('v_min_u32 v54, 0xfffffffe, v12')
        A('v_min_u32 v55, 0xfffffffe, v13')
        self.canon([52, 53])
        self.seg_end('a')
        A('s_mov_b32 exec_hi, 0')
        A('s_cmp_eq_u32 s24, 0')
        lb = self.label('st')
        A(f's_cbranch_scc1 {lb}')
        A(f'buffer_store_dwordx4 v[52:55], v1, s[{WS}:{WS+3}], s16 offen')
        A(f's_branch {lb}_x')
        A(f'{lb}:')
        A(f'buffer_store_dwordx4 v[52:55], v1, s[{WS}:{WS+3}], s16 offen sc1')
        A(f'{lb}_x:')
        self.stamp(5, (True,))
        GO = 16
        A(f's_mov_b32 s15, {spin}')
        lp = self.label('poll1')
        A(f'{lp}:')
        for k in range(4):
            A(f's_mov_b64 exec, s[{72+2*k}:{73+2*k}]')
            A(f's_cbranch_execz {lp}_l{k}')
            A(f'buffer_load_dwordx4 v[{GO+4*k}:{GO+4*k+3}], v{vP1o}, s[{WS}:{WS+3}], s{10+k} offen sc1')
            A(f'{lp}_l{k}:')
        A('s_sub_u32 s15, s15, 1')
        A('s_cmp_eq_u32 s15, 0')
        A(f's_cbranch_scc1 {lp}_x')
        A('s_waitcnt vmcnt(0)')
        for k in range(4):
            A(f's_mov_b64 exec, s[{72+2*k}:{73+2*k}]')
            A(f'v_max3_u32 v12, v{GO+4*k}, v{GO+4*k+1}, v{GO+4*k+2}')
            A(f'v_max_u32 v12, v12, v{GO+4*k+3}')
            A(f'v_cmp_eq_u32 s[{72+2*k}:{73+2*k}], -1, v12')
        A('s_or_b64 s[20:21], s[72:73], s[74:75]')
        A('s_or_b64 vcc, s[76:77], s[78:79]')
        A('s_or_b64 s[20:21], s[20:21], vcc')
        A(f's_cbranch_scc0 {lp}_x')
        A('s_bcnt1_i32_b64 s14, s[20:21]')
        A('s_cmp_gt_u32 s14, 16')
        A(f's_cbranch_scc1 {lp}_s')
        if o['sleep_few']:
            A(f's_sleep {o["sleep_few"]}')
        A(f's_branch {lp}')
        A(f'{lp}_s:')
        A(f's_sleep {o["sleep_many"]}')
        A(f's_branch {lp}')
        A(f'{lp}_x:')
        A('s_mov_b64 exec, -1')
        A('s_waitcnt vmcnt(0)')
        self.seg_begin('b')
        self.stamp(6, (True,))
        A(f'v_max3_f32 v12, v{GO+2}, v{GO+6}, v{GO+10}')
        A(f'v_max_f32 v12, v12, v{GO+14}')
        for k in range(2):
            A(f'v_lshlrev_b32 v{32+4*k}, 16, v{GO+4*k}')
            A(f'v_and_b32 v{33+4*k}, 0xffff0000, v{GO+4*k}')
        A('v_max_f32_dpp v12, v12, v12 row_ror:8 row_mask:0xf bank_mask:0xf')
        A('v_mov_b32 v13, v12')
        for k in range(2):
            A(f'v_lshlrev_b32 v{34+4*k}, 16, v{GO+4*k+1}')
            A(f'v_and_b32 v{35+4*k}, 0xffff0000, v{GO+4*k+1}')
        A('v_permlane16_swap_b32 v12, v13')
        for k in range(2, 4):
            A(f'v_lshlrev_b32 v{44+4*k}, 16, v{GO+4*k}')
            A(f'v_and_b32 v{45+4*k}, 0xffff0000, v{GO+4*k}')
        A('v_max_f32 v12, v12, v13')
        A('v_mov_b32 v13, v12')
        for k in range(2, 4):
            A(f'v_lshlrev_b32 v{46+4*k}, 16, v{GO+4*k+1}')
            A(f'v_and_b32 v{47+4*k}, 0xffff0000, v{GO+4*k+1}')
        A('v_permlane32_swap_b32 v12, v13')
        self.nop(2)
        A('v_max_f32 v12, v12, v13')
        A('v_mul_f32 v12, s9, v12')
        OU = [32, 36, 52, 56]
        for k in range(4):
            A(f'v_fma_f32 v{GO+4*k+2}, v{GO+4*k+2}, s9, -v12')
        for k in range(4):
            A(f'v_exp_f32 v{GO+4*k+2}, v{GO+4*k+2}')
        self.nop(1)
        A(f'v_mul_f32 v44, v{GO+2}, v{GO+3}')
        A(f'v_pk_mul_f32 v[40:41], v[{OU[0]}:{OU[0]+1}], v[{GO+2}:{GO+3}] op_sel_hi:[1,0]')
        A(f'v_pk_mul_f32 v[42:43], v[{OU[0]+2}:{OU[0]+3}], v[{GO+2}:{GO+3}] op_sel_hi:[1,0]')
        for k in range(1, 4):
            f = GO + 4 * k + 2
            A(f'v_fmac_f32 v44, v{f}, v{f+1}')
            A(f'v_pk_fma_f32 v[40:41], v[{OU[k]}:{OU[k]+1}], v[{f}:{f+1}], v[40:41] op_sel_hi:[1,0,1]')
            A(f'v_pk_fma_f32 v[42:43], v[{OU[k]+2}:{OU[k]+3}], v[{f}:{f+1}], v[42:43] op_sel_hi:[1,0,1]')
        self.nop(1)
        R5 = [44, 40, 41, 42, 43]
        T5 = [45, 46, 47, 48, 49]
        self.dpp('v_add_f32', R5, 'row_ror:8')
        self.swap_red('v_add_f32', R5, T5, 16)
        self.swap_red('v_add_f32', R5, T5, 32)
        A('v_rcp_f32 v44, v44')
        self.nop(1)
        for c in range(4):
            A(f'v_mul_f32 v{40+c}, v{40+c}, v44')
        A('v_cvt_pk_bf16_f32 v40, v40, v41')
        A('v_cvt_pk_bf16_f32 v41, v42, v43')
        for c in range(8):
            A(f'v_dot2_f32_bf16 v{16+c}, v40, v{WOT+c}, 0')
        for c in range(8):
            A(f'v_dot2_f32_bf16 v{16+c}, v41, v{WOT+8+c}, v{16+c}')
        R8 = list(range(16, 24))
        self.dpp('v_add_f32', R8, 'quad_perm:[1,0,3,2]')
        self.dpp('v_add_f32', R8, 'quad_perm:[2,3,0,1]')
        self.dpp('v_add_f32', R8, 'row_half_mirror')
        A(f'ds_write_b128 v{vWw}, v[16:19]')
        A(f'ds_write_b128 v{vWw}, v[20:23] offset:16')
        A('s_waitcnt lgkmcnt(0)')
        self.seg_end('b')
        A('s_barrier')
        A('s_cmp_lg_u32 s33, 0')
        A('s_cbranch_scc1 L_hop2')
        self.seg_begin('c')
        for w in range(4):
            A(f'ds_read_b32 v{16+w}, v{vWr} offset:{LDS_W + 256*w}')
        A('s_waitcnt lgkmcnt(0)')
        A('v_add_f32 v16, v16, v17')
        A('v_add_f32 v18, v18, v19')
        A('v_add_f32 v16, v16, v18')
        self.canon([16])
        self.seg_end('c')
        A(f'buffer_store_dword v16, v{vWr}, s[{WS}:{WS+3}], s17 offen sc1')
        A('L_hop2:')
        self.stamp(7, (True,))
        A('s_sub_u32 s14, s33, 1')
        A(f's_cmp_ge_u32 s14, {o["nred"]}')
        A('s_cbranch_scc1 L_hop2b')
        A('s_cmp_ge_u32 s32, 16')
        A('s_cbranch_scc1 L_hop2b')
        if o['nred'] > 1:
            A('s_cmp_eq_u32 s14, 0')
            A('s_cbranch_scc1 L_red')
            A('s_sleep 3')
            A('s_cmp_eq_u32 s14, 1')
            A('s_cbranch_scc1 L_red')
            A('s_sleep 3')
            A('L_red:')
        A(f's_mov_b32 s15, {spin}')
        lp = self.label('poll2a')
        A(f'{lp}:')
        for k in range(4):
            A(f'buffer_load_dwordx4 v[{16+4*k}:{19+4*k}], v{vP2}, s[{WS}:{WS+3}], s{6+(k>>1)} offen offset:{2048*(k&1)} sc1')
        A('s_sub_u32 s15, s15, 1')
        A('s_cmp_eq_u32 s15, 0')
        A(f's_cbranch_scc1 {lp}_x')
        A('s_waitcnt vmcnt(0)')
        A('v_max3_u32 v12, v16, v17, v18')
        A('v_max3_u32 v13, v19, v20, v21')
        A('v_max3_u32 v12, v12, v22, v23')
        A('v_max3_u32 v13, v13, v24, v25')
        A('v_max3_u32 v12, v12, v26, v27')
        A('v_max3_u32 v13, v13, v28, v29')
        A('v_max3_u32 v12, v12, v30, v31')
        A('v_max_u32 v12, v12, v13')
        A('v_cmp_eq_u32 vcc, -1, v12')
        A('s_and_b64 exec, exec, vcc')
        A(f's_cbranch_execnz {lp}')
        A(f'{lp}_x:')
        A('s_mov_b64 exec, -1')
        A('s_waitcnt vmcnt(0)')
        self.seg_begin('d1')
        A('v_pk_add_f32 v[16:17], v[16:17], v[20:21]')
        A('v_pk_add_f32 v[18:19], v[18:19], v[22:23]')
        A('v_pk_add_f32 v[24:25], v[24:25], v[28:29]')
        A('v_pk_add_f32 v[26:27], v[26:27], v[30:31]')
        A('v_pk_add_f32 v[16:17], v[16:17], v[24:25]')
        A('v_pk_add_f32 v[18:19], v[18:19], v[26:27]')
        R4 = [16, 17, 18, 19]
        self.nop(1)
        self.dpp('v_add_f32', R4, 'row_ror:8')
        self.swap_red('v_add_f32', R4, [20, 21, 22, 23], 16)
        self.swap_red('v_add_f32', R4, [20, 21, 22, 23], 32)
        self.rnd_bf16_pair(16, 17, 20)
        self.rnd_bf16_pair(18, 19, 21)
        A(f'v_pk_add_f32 v[16:17], v[16:17], v[{XF}:{XF+1}]')
        A(f'v_pk_add_f32 v[18:19], v[18:19], v[{XF+2}:{XF+3}]')
        self.rnd_bf16_pair(16, 17, 20)
        self.rnd_bf16_pair(18, 19, 21)
        A('v_readfirstlane_b32 s14, v16')
        self.nop(2)
        for c in range(4):
            A(f'v_subrev_f32 v{20+c}, s14, v{16+c}')
        A('v_add_f32 v25, v20, v21')
        A('v_mul_f32 v26, v20, v20')
        A('v_add_f32 v24, v22, v23')
        A('v_fmac_f32 v26, v21, v21')
        A('v_add_f32 v25, v25, v24')
        A('v_fmac_f32 v26, v22, v22')
        A('v_mov_b32 v24, s14')
        A('v_fmac_f32 v26, v23, v23')
        A('v_cndmask_b32 v16, v16, v24, s[48:49]')
        self.dpp('v_add_f32', [25, 26], 'quad_perm:[1,0,3,2]')
        self.dpp('v_add_f32', [25, 26], 'quad_perm:[2,3,0,1]')
        self.dpp('v_add_f32', [25, 26], 'row_half_mirror')
        self.canon([25, 26])
        A('v_cndmask_b32 v17, v17, v25, s[48:49]')
        A('v_cndmask_b32 v18, v18, v26, s[48:49]')
        self.seg_end('d1')
        A('s_mov_b64 exec, 0x1ff')
        A('s_cmp_eq_u32 s24, 0')
        lb = self.label('st')
        A(f's_cbranch_scc1 {lb}')
        A(f'buffer_store_dwordx4 v[16:19], v148, s[{WS}:{WS+3}], s25 offen')
        A(f's_branch {lb}_x')
        A(f'{lb}:')
        A(f'buffer_store_dwordx4 v[16:19], v148, s[{WS}:{WS+3}], s25 offen sc1')
        A(f'{lb}_x:')
        A('s_mov_b64 exec, -1')
        A('L_hop2b:')
        A('s_cmp_lg_u32 s33, 0')
        A('s_cbranch_scc1 L_b4')
        A('s_mov_b64 exec, 0x1ffff')
        A(f's_mov_b32 s15, {spin}')
        lp = self.label('poll2b')
        A(f'{lp}:')
        A(f'buffer_load_dwordx4 v[16:19], v{vHw}, s[{WS}:{WS+3}], s25 offen sc1')
        A('s_sub_u32 s15, s15, 1')
        A('s_cmp_eq_u32 s15, 0')
        A(f's_cbranch_scc1 {lp}_x')
        A('s_waitcnt vmcnt(0)')
        A('v_max3_u32 v12, v16, v17, v18')
        A('v_max_u32 v12, v12, v19')
        A('v_cmp_eq_u32 vcc, -1, v12')
        A('s_and_b64 exec, exec, vcc')
        A(f's_cbranch_execz {lp}_x')
        if o['sleep2b']:
            A(f's_sleep {o["sleep2b"]}')
        A(f's_branch {lp}')
        A(f'{lp}_x:')
        A('s_mov_b64 exec, -1')
        A('s_waitcnt vmcnt(0)')
        self.seg_begin('e')
        self.stamp(8, (True,))
        A('v_readlane_b32 s14, v16, 0')
        A('v_readlane_b32 s72, v16, 16')
        A('v_readlane_b32 s73, v17, 16')
        A('v_readlane_b32 s74, v18, 16')
        A('v_readlane_b32 s75, v19, 16')
        A('v_subrev_f32 v20, s14, v16')
        A('v_mul_f32 v21, 0x42000000, v20')
        A('v_fma_f32 v22, 2.0, v17, v21')
        A('v_fmac_f32 v18, v20, v22')
        A('v_add_f32 v17, v17, v21')
        A('s_bitcmp1_b32 s2, 0')
        A('s_cselect_b32 s72, s74, s72')
        A('s_cselect_b32 s73, s75, s73')
        self.dpp('v_add_f32', [18, 17], 'quad_perm:[1,0,3,2]')
        self.dpp('v_add_f32', [18, 17], 'quad_perm:[2,3,0,1]')
        self.dpp('v_add_f32', [18, 17], 'row_half_mirror')
        self.dpp('v_add_f32', [18, 17], 'row_mirror')
        A('v_mov_b32 v24, s72')
        A('v_mov_b32 v25, s73')
        A('v_readlane_b32 s76, v17, 0')
        A('v_readlane_b32 s77, v18, 0')
        inv = f2u(1.0 / 512)
        A(f'v_mov_b32 v48, {inv:#x}')
        self.nop(1)
        A('v_mul_f32 v49, s77, v48')
        A('v_mul_f32 v48, s76, v48')
        A('v_fma_f32 v49, -v48, v48, v49')
        A('v_max_f32 v49, 0, v49')
        A('v_add_f32 v48, s14, v48')
        mean, var = 48, 49
        self.ln_finish(mean, var, 12, 13, 14)
        self.ln_apply([24, 25], [36, 37], 12, 13, 14)
        A(f'v_sub_f32 v{mean}, v{mean}, v12')
        A(f'v_mul_f32 v{var}, v{var}, v13')
        A(f'v_mul_f32 v{mean}, v{mean}, v13')
        A(f'v_mul_f32 v{var}, v{var}, v13')
        self.ln_finish(mean, var, 12, 13, 14)
        self.ln_apply([36, 37], [36, 37], 12, 13, 14)
        A(f'ds_write_b64 v{vHo}, v[36:37]')
        A('s_waitcnt lgkmcnt(0)')
        self.seg_end('e')

    def final(self):
        A = self.A
        o = self.o
        B2R, vHo = 110, 149
        A('s_setprio 0')
        A('s_barrier')
        self.seg_begin('f')
        A(f'ds_read_b64 v[36:37], v{vHo}')
        A('s_waitcnt lgkmcnt(0)')
        self.stamp(9, (True,))
        YA = [30, 31]
        ch = [(d, p) for d in range(2) for p in range(2)]
        U = {c: 40 + 6 * n for n, c in enumerate(ch)}

        def each(f):
            for c in ch:
                f(c[0], c[1], U[c], U[c] + 2, U[c] + 4)
        each(lambda d, p, u, t, z: A(f'v_pk_mul_f32 v[{u}:{u+1}], v[{W1F+2*p}:{W1F+2*p+1}], v[36:37] op_sel:[0,{d}] op_sel_hi:[1,{d}]'))
        each(lambda d, p, u, t, z: self.rnd_bf16_pair(u, u + 1, t))
        each(lambda d, p, u, t, z: A(f'v_pk_add_f32 v[{u}:{u+1}], v[{u}:{u+1}], v[{B1F+2*p}:{B1F+2*p+1}]'))
        each(lambda d, p, u, t, z: self.rnd_bf16_pair(u, u + 1, t))
        each(lambda d, p, u, t, z: A(f'v_pk_mul_f32 v[{t}:{t+1}], v[{u}:{u+1}], v[{u}:{u+1}]'))
        each(lambda d, p, u, t, z: A(f'v_pk_fma_f32 v[{t}:{t+1}], v[{t}:{t+1}], v[{GK1}:{GK1+1}], v[{GK0}:{GK0+1}]'))
        each(lambda d, p, u, t, z: A(f'v_pk_mul_f32 v[{z}:{z+1}], v[{t}:{t+1}], v[{u}:{u+1}]'))
        each(lambda d, p, u, t, z: (A(f'v_exp_f32 v{z}, v{z}'), A(f'v_exp_f32 v{z+1}, v{z+1}')))
        each(lambda d, p, u, t, z: A(f'v_pk_add_f32 v[{z}:{z+1}], v[{z}:{z+1}], v[{GONE}:{GONE+1}]'))
        each(lambda d, p, u, t, z: (A(f'v_rcp_f32 v{z}, v{z}'), A(f'v_rcp_f32 v{z+1}, v{z+1}')))
        each(lambda d, p, u, t, z: A(f'v_pk_mul_f32 v[{u}:{u+1}], v[{u}:{u+1}], v[{z}:{z+1}]'))
        each(lambda d, p, u, t, z: A(f'v_cvt_pk_bf16_f32 v{u}, v{u}, v{u+1}'))
        for d in range(2):
            A(f'v_dot2_f32_bf16 v{YA[d]}, v{U[(d,0)]}, v{W2R}, 0')
        for d in range(2):
            A(f'v_dot2_f32_bf16 v{YA[d]}, v{U[(d,1)]}, v{W2R+1}, v{YA[d]}')
        self.nop(2)
        self.wave_sum_to_sgpr(YA, [76, 77])
        A('v_mov_b32 v16, s76')
        A('v_mov_b32 v17, s77')
        A('s_lshl_b32 s14, s30, 3')
        A(f's_add_u32 s14, s14, {LDS_Y}')
        A('v_mov_b32 v18, s14')
        A('ds_write_b64 v18, v[16:17]')
        A('s_waitcnt lgkmcnt(0)')
        self.seg_end('f')
        A('s_barrier')
        A('s_cmp_lg_u32 s30, 4')
        lend = self.label('hend')
        A(f's_cbranch_scc1 {lend}')
        self.seg_begin('g')
        A(f'v_mov_b32 v12, {LDS_Y}')
        for k in range(4):
            A(f'ds_read_b128 v[{40+4*k}:{43+4*k}], v12 offset:{16*k}')
        A('s_waitcnt lgkmcnt(0)')
        for k in range(4):
            A(f'v_pk_add_f32 v[{40+4*k}:{41+4*k}], v[{40+4*k}:{41+4*k}], v[{42+4*k}:{43+4*k}]')
        A('v_pk_add_f32 v[40:41], v[40:41], v[44:45]')
        A('v_pk_add_f32 v[48:49], v[48:49], v[52:53]')
        A('v_pk_add_f32 v[16:17], v[40:41], v[48:49]')
        self.rnd_bf16_pair(16, 17, 20)
        A(f'v_add_f32 v16, v16, v{B2R}')
        A(f'v_add_f32 v17, v17, v{B2R}')
        self.rnd_bf16_pair(16, 17, 20)
        A('v_pk_add_f32 v[16:17], v[16:17], v[24:25]')
        A('v_cvt_pk_bf16_f32 v16, v16, v17')
        A('s_lshl_b32 s14, s2, 2')
        A('v_mov_b32 v18, 0')
        self.seg_end('g')
        A('s_mov_b64 exec, 1')
        A(f'buffer_store_dword v16, v18, s[{OUT}:{OUT+3}], s14 offen')
        A('s_cmp_lg_u32 s2, 0')
        A(f's_cbranch_scc1 {lend}')
        A('v_mov_b32 v20, s96')
        A('v_mov_b32 v21, s97')
        A(f's_mov_b32 s14, {WS_E:#x}')
        A(f'buffer_store_dwordx2 v[20:21], v18, s[{WS}:{WS+3}], s14 offen sc1')
        A(f'{lend}:')
        self.stamp(10)
        self.write_stamps(11)


if __name__ == '__main__':
    out = sys.argv[1]
    kw = json.loads(sys.argv[2]) if len(sys.argv) > 2 else {}
    open(out, 'w').write(Gen(**kw).build())
```

```python
import sys, json, struct

KN = 'sequential_preLN__gqa_block_cached__mixer_token_mlp__decode'
HEADER = open('cdna_kernels/' + KN + '.s.ref').read().split('; Override launch')[0]


def f2u(x):
    return struct.unpack('<I', struct.pack('<f', x))[0]


LOG2E = 1.4426950408889634
SCALE = 128 ** -0.5
GC0 = -2.0 * (2.0 / 3.141592653589793) ** 0.5 * LOG2E
GC1 = GC0 * 0.044715

WS_QP = 0x0
WS_E = 0x40000
WS_F = 0x41000
WS_P1 = 0x42000
WS_P2 = 0x110000
WS_HV = 0x120000
HVS = 2048 + 256 + 128
WS_CNT = 0x128000
WS_QL = 0x140000
WS_SIZE = 0x20000000
STAMP_OFF = 0x10000000
TAGC = 0x9E3779B97F4A7C15
NPART = 6
LDS_Q = 0
LDS_O = 1024
LDS_ML = LDS_O + NPART * 2048
LDS_W = LDS_ML + 256
LDS_H = LDS_W + 1024
LDS_Y = LDS_H + 2048
LDS_F = LDS_Y + 64
LDS_TOTAL = LDS_F + 16

X, WQ, WS, WO, W1, B1, W2, B2, OUT = 36, 40, 44, 48, 52, 56, 60, 64, 68
W1F, B1F, W2R, RAW, GK0, GK1, GONE = 224, 228, 232, 234, 238, 240, 242


class Gen:
    def __init__(self, **kw):
        self.L = []
        self.o = dict(ring=12, pre=3, pre0=2, stamps=False, nt='nt', headmap='mod', pollsleep=8, spin=200000,
                      tc=8, sleep_many=1, sleep_few=0, cprio=2, sleep2b=0, sleep_most=32, ts=22, stageA=16, warm=False, fast=True, qlocal=False, nred=3)
        self.o.update(kw)
        self.lab = 0
        self.role = 'S'

    def A(self, s):
        self.L.append(s)

    def nop(self, n):
        if n > 0:
            self.A(f's_nop {n-1}')

    def label(self, base):
        self.lab += 1
        return f'L_{base}_{self.lab}'

    def srd(self, r, ptr, size):
        A = self.A
        A(f's_mov_b32 s{r}, s{ptr}')
        A(f's_and_b32 s{r+1}, s{ptr+1}, 0xffff')
        A(f's_mov_b32 s{r+2}, {size:#x}')
        A(f's_mov_b32 s{r+3}, 0x20000')

    def sreg(self, idx):
        return 80 + 2 * idx if idx < 8 else [98, 100, 22][idx - 8]

    def stamp(self, idx, sets=None):
        st = self.o['stamps']
        if not st:
            return
        if sets is not None and st not in sets:
            return
        r = self.sreg(idx)
        self.A(f's_memrealtime s[{r}:{r+1}]')

    def dpp(self, op, regs, ctrl, rm='0xf'):
        n = len(regs)
        if n < 3:
            self.nop(3 - n)
        for r in regs:
            self.A(f'{op}_dpp v{r}, v{r}, v{r} {ctrl} row_mask:{rm} bank_mask:0xf')

    def swap_red(self, op, regs, tmps, width):
        A = self.A
        for r, t in zip(regs, tmps):
            A(f'v_mov_b32 v{t}, v{r}')
        self.nop(2)
        for r, t in zip(regs, tmps):
            A(f'v_permlane{width}_swap_b32 v{r}, v{t}')
        if len(regs) < 3:
            self.nop(2)
        for r, t in zip(regs, tmps):
            A(f'{op} v{r}, v{r}, v{t}')

    def wave_sum_to_sgpr(self, regs, sregs):
        A = self.A
        self.dpp('v_add_f32', regs, 'quad_perm:[1,0,3,2]')
        self.dpp('v_add_f32', regs, 'quad_perm:[2,3,0,1]')
        self.dpp('v_add_f32', regs, 'row_half_mirror')
        self.dpp('v_add_f32', regs, 'row_mirror')
        self.dpp('v_add_f32', regs, 'row_bcast:15', '0xa')
        self.dpp('v_add_f32', regs, 'row_bcast:31', '0xc')
        self.nop(1)
        for r, s in zip(regs, sregs):
            A(f'v_readlane_b32 s{s}, v{r}, 63')
        self.nop(2)

    def rnd_bf16(self, dst, src):
        self.A(f'v_cvt_pk_bf16_f32 v{dst}, v{src}, v{src}')
        self.A(f'v_lshlrev_b32 v{dst}, 16, v{dst}')

    def rnd_bf16_pair(self, a, b, t):
        self.A(f'v_cvt_pk_bf16_f32 v{t}, v{a}, v{b}')
        self.A(f'v_lshlrev_b32 v{a}, 16, v{t}')
        self.A(f'v_and_b32 v{b}, 0xffff0000, v{t}')

    def ln_moments(self, vals, piv, t, s_a, s_b):
        A = self.A
        d = t[:8]
        s1, s2 = t[8], t[9]
        for k in range(0, 8, 2):
            A(f'v_pk_add_f32 v[{d[k]}:{d[k+1]}], v[{vals[k]}:{vals[k+1]}], v[{piv}:{piv+1}] neg_lo:[0,1] neg_hi:[0,1]')
        A(f'v_pk_mul_f32 v[{s1}:{s2}], v[{d[0]}:{d[1]}], v[{d[0]}:{d[1]}]')
        for k in range(2, 8, 2):
            A(f'v_pk_fma_f32 v[{s1}:{s2}], v[{d[k]}:{d[k+1]}], v[{d[k]}:{d[k+1]}], v[{s1}:{s2}]')
        A(f'v_pk_add_f32 v[{d[0]}:{d[1]}], v[{d[0]}:{d[1]}], v[{d[2]}:{d[3]}]')
        A(f'v_pk_add_f32 v[{d[4]}:{d[5]}], v[{d[4]}:{d[5]}], v[{d[6]}:{d[7]}]')
        A(f'v_add_f32 v{s2}, v{s1}, v{s2}')
        A(f'v_pk_add_f32 v[{d[0]}:{d[1]}], v[{d[0]}:{d[1]}], v[{d[4]}:{d[5]}]')
        A(f'v_add_f32 v{s1}, v{d[0]}, v{d[1]}')
        self.wave_sum_to_sgpr([s2, s1], [s_b, s_a])
        inv = f2u(1.0 / 512)
        A(f'v_mov_b32 v{s1}, {inv:#x}')
        A(f'v_mul_f32 v{s2}, s{s_b}, v{s1}')
        A(f'v_mul_f32 v{s1}, s{s_a}, v{s1}')
        A(f'v_fma_f32 v{s2}, -v{s1}, v{s1}, v{s2}')
        A(f'v_max_f32 v{s2}, 0, v{s2}')
        A(f'v_add_f32 v{s1}, v{s1}, v{piv}')

    def ln_finish(self, mean, var, vm, vr, t):
        A = self.A
        A(f'v_cvt_pk_bf16_f32 v{t}, v{mean}, v{var}')
        A(f'v_lshlrev_b32 v{vm}, 16, v{t}')
        A(f'v_and_b32 v{vr}, 0xffff0000, v{t}')
        A(f'v_add_f32 v{vr}, {f2u(1e-5):#x}, v{vr}')
        self.rnd_bf16(vr, vr)
        A(f'v_sqrt_f32 v{vr}, v{vr}')
        self.nop(1)
        self.rnd_bf16(vr, vr)
        A(f'v_rcp_f32 v{vr}, v{vr}')
        self.nop(1)

    def ln_apply(self, vals, outs, vm, vr, t):
        A = self.A
        for k in range(0, len(vals), 2):
            a, b = outs[k], outs[k + 1]
            A(f'v_sub_f32 v{a}, v{vals[k]}, v{vm}')
            A(f'v_sub_f32 v{b}, v{vals[k+1]}, v{vm}')
            self.rnd_bf16_pair(a, b, t)
            A(f'v_mul_f32 v{a}, v{a}, v{vr}')
            A(f'v_mul_f32 v{b}, v{b}, v{vr}')
            self.rnd_bf16_pair(a, b, t)

    def lds_wait(self, vaddr, off, vt=11, st=15):
        A = self.A
        lp = self.label('ldsw')
        A(f's_mov_b32 s{st}, {self.o["spin"]*20}')
        A(f'{lp}:')
        A(f'ds_read_b32 v{vt}, v{vaddr} offset:{off}')
        A(f's_sub_u32 s{st}, s{st}, 1')
        A(f's_cmp_eq_u32 s{st}, 0')
        A(f's_cbranch_scc1 {lp}_x')
        A('s_waitcnt lgkmcnt(0)')
        A(f'v_cmp_eq_u32 vcc, 0, v{vt}')
        A(f's_cbranch_vccz {lp}_x')
        A('s_sleep 1')
        A(f's_branch {lp}')
        A(f'{lp}_x:')
        A('s_waitcnt lgkmcnt(0)')

    def seg_begin(self, name):
        self.A(f'L_seg_{name}:')

    def seg_end(self, name):
        if self.o['warm']:
            self.A(f's_cbranch_execz L_ret_{name}')

    def warm_pass(self, names):
        if not self.o['warm']:
            return
        A = self.A
        A('s_mov_b64 exec, 0')
        for n in names:
            A(f's_branch L_seg_{n}')
            A(f'L_ret_{n}:')
        A('s_mov_b64 exec, -1')

    def head_to_rows(self, dst, src):
        for r in range(4):
            self.A(f'v_mov_b32_dpp v{dst}, v{src} row_newbcast:{4*r} row_mask:{1 << r:#x} bank_mask:0xf')

    def canon(self, regs):
        for r in regs:
            self.A(f'v_min_u32 v{r}, 0xfffffffe, v{r}')

    def sel_masks(self, m0, m1):
        A = self.A
        A('v_and_b32 v4, 1, v0')
        A('v_lshlrev_b32 v4, 4, v4')
        A('v_mov_b32 v5, 0xffff')
        A('v_lshlrev_b32 v5, v4, v5')
        A('v_and_b32 v4, 2, v0')
        A('v_cmp_eq_u32 vcc, 0, v4')
        A('v_mov_b32 v6, 0')
        A('s_nop 0')
        A(f'v_cndmask_b32 v{m0}, v6, v5, vcc')
        A(f'v_cndmask_b32 v{m1}, v5, v6, vcc')

    def build(self):
        A = self.A
        o = self.o
        A(HEADER.rstrip('\n'))
        A(f'; @launch grid=(256,1,1) block=(512,1,1) lds={LDS_TOTAL}')
        A('.amdgcn_target "amdgcn-amd-amdhsa--gfx950"')
        A('.text')
        A(f'.globl {KN}_kernel')
        A('.p2align 8')
        A(f'.type {KN}_kernel,@function')
        A(f'{KN}_kernel:')
        A('s_cmp_ge_u32 s2, 256')
        A('s_cbranch_scc1 L_end')
        A('s_load_dwordx16 s[4:19], s[0:1], 0')
        A('s_load_dwordx8 s[20:27], s[0:1], 64')
        A('s_load_dwordx2 s[28:29], s[0:1], 96')
        self.stamp(0)
        A('v_lshrrev_b32 v1, 6, v0')
        A('v_and_b32 v0, 63, v0')
        A('v_readfirstlane_b32 s30, v1')
        if o['headmap'] == 'mod':
            A('s_and_b32 s31, s2, 7')
            A('s_lshr_b32 s32, s2, 3')
        elif o['headmap'] == 'rot':
            A('s_lshr_b32 s32, s2, 3')
            A('s_add_u32 s31, s2, s32')
            A('s_and_b32 s31, s31, 7')
        elif o['headmap'] == 'x4':
            A('s_lshr_b32 s31, s2, 3')
            A('s_lshr_b32 s32, s31, 3')
            A('s_and_b32 s31, s31, 7')
            A('s_and_b32 s3, s2, 7')
            A('s_lshl_b32 s3, s3, 2')
            A('s_add_u32 s32, s32, s3')
        elif o['headmap'] == 'div':
            A('s_lshr_b32 s31, s2, 5')
            A('s_and_b32 s32, s2, 31')
        else:
            m = int(o['headmap'])
            A(f's_and_b32 s31, s2, {7 & ~(m-1)}')
            A('s_lshr_b32 s32, s2, 3')
            A(f's_and_b32 s3, s32, {m-1}')
            A('s_or_b32 s31, s31, s3')
            A(f's_and_b32 s32, s32, {31 & ~(m-1)}')
            A(f's_and_b32 s3, s2, {m-1}')
            A('s_or_b32 s32, s32, s3')
        A('s_lshl_b32 s3, s31, 5')
        A('s_add_u32 s3, s3, s32')
        A('s_sub_u32 s33, s30, 4')
        A('s_lshr_b32 s34, s32, 3')
        A('s_and_b32 s35, s32, 7')
        A('s_cmp_lt_u32 s33, 2')
        A('s_cbranch_scc1 L_hq')
        A('s_cmp_ge_u32 s30, 4')
        A('s_cbranch_scc1 L_cover')
        TC = o['tc']
        TS = o['ts']
        o['pool'] = 128 - 4 * TS - 2 * TC
        assert TC % 2 == 0 and o['pool'] % 4 == 0 and (o['pool'] == 0 or o['pool'] >= 12) and TS >= TC
        self.streamer(TS, TC, False)
        A('s_waitcnt lgkmcnt(0)')
        A('s_barrier')
        self.srd(W1, 16, 3584)
        self.srd(B1, 18, 3584)
        self.srd(W2, 20, 3584)
        self.mlp_weights_load()
        self.srd(WS, 28, WS_SIZE)
        self.srd(OUT, 24, 1024)
        A('s_barrier')
        A('s_waitcnt vmcnt(0)')
        A(f'v_mov_b32 v149, {LDS_H}')
        self.mlp_weights_prep()
        A('s_branch L_b4')
        A('L_cover:')
        self.streamer(TC, TC, True)
        self.srd(X, 4, 1024)
        self.srd(WS, 28, WS_SIZE)
        A('s_branch L_pref')
        A('L_hq:')
        self.helper_q()
        A('L_pref:')
        self.helper_tail()
        A('L_b4:')
        self.final()
        A('L_end:')
        A('s_endpgm')
        A('.section .rodata,"a"')
        A('.p2align 6')
        A(f'.amdhsa_kernel {KN}_kernel')
        A('  .amdhsa_next_free_vgpr 256')
        A('  .amdhsa_next_free_sgpr 102')
        A('  .amdhsa_accum_offset 256')
        A('  .amdhsa_group_segment_fixed_size 0')
        A('  .amdhsa_kernarg_size 104')
        A('  .amdhsa_user_sgpr_count 2')
        A('  .amdhsa_user_sgpr_kernarg_segment_ptr 1')
        A('  .amdhsa_system_sgpr_workgroup_id_x 1')
        A('  .amdhsa_float_denorm_mode_32 3')
        A('.end_amdhsa_kernel')
        return '\n'.join(self.L) + '\n'

    def write_stamps(self, n):
        if not self.o['stamps']:
            return
        A = self.A
        if self.o.get('dbgstamps'):
            A('s_waitcnt lgkmcnt(0)')
            A('s_mov_b64 exec, 1')
            self.srd(76, 26, 256)
            A('v_mov_b32 v1, 0')
            def amax(sreg, off, inv):
                A(f'v_mov_b32 v2, s{sreg}')
                if inv: A('v_not_b32 v2, v2')
                A(f'buffer_atomic_umax v2, v1, s[76:79], 0 offen offset:{off} sc1')
                A('s_nop 1')
            amax(self.sreg(10), 0, False)
            amax(self.sreg(0), 4, True)
            A('s_cmp_ge_u32 s30, 4')
            A('s_cbranch_scc1 L_dbg_x')
            amax(self.sreg(4), 8, False)
            amax(self.sreg(4), 12, True)
            amax(self.sreg(2), 16, False)
            amax(self.sreg(3), 20, False)
            amax(self.sreg(3), 24, True)
            A('L_dbg_x:')
            A('s_waitcnt vmcnt(0)')
            return
        A('s_waitcnt lgkmcnt(0)')
        A('s_mov_b64 exec, 1')
        A('s_lshl_b32 s33, s2, 3')
        A('s_add_u32 s33, s33, s30')
        A('s_lshl_b32 s33, s33, 7')
        A(f's_add_u32 s33, s33, {STAMP_OFF:#x}')
        self.srd(76, 28, WS_SIZE)
        A('v_mov_b32 v1, 0')
        for k in range(n):
            A(f'v_mov_b32 v2, s{self.sreg(k)}')
            A(f'v_mov_b32 v3, s{self.sreg(k)+1}')
            A(f'buffer_store_dwordx2 v[2:3], v1, s[76:79], s33 offen offset:{8*k}')
            A('s_nop 1')
        A('s_waitcnt vmcnt(0)')

    def mlp_weights_load(self):
        A = self.A
        A('v_lshlrev_b32 v4, 3, v0')
        A('s_lshl_b32 s14, s30, 9')
        A(f'buffer_load_dwordx2 v[{RAW}:{RAW+1}], v4, s[{W1}:{W1+3}], s14 offen')
        A(f'buffer_load_dwordx2 v[{RAW+2}:{RAW+3}], v4, s[{B1}:{B1+3}], s14 offen')
        A(f'buffer_load_dwordx2 v[{W2R}:{W2R+1}], v4, s[{W2}:{W2+3}], s14 offen')

    def mlp_weights_prep(self):
        A = self.A
        for k in range(2):
            A(f'v_lshlrev_b32 v{W1F+2*k}, 16, v{RAW+k}')
            A(f'v_and_b32 v{W1F+2*k+1}, 0xffff0000, v{RAW+k}')
            A(f'v_lshlrev_b32 v{B1F+2*k}, 16, v{RAW+2+k}')
            A(f'v_and_b32 v{B1F+2*k+1}, 0xffff0000, v{RAW+2+k}')
            A(f'v_mov_b32 v{GK0+k}, {f2u(GC0):#x}')
            A(f'v_mov_b32 v{GK1+k}, {f2u(GC1):#x}')
            A(f'v_mov_b32 v{GONE+k}, 1.0')

    def streamer(self, T, TC, cover):
        A = self.A
        o = self.o
        R = min(o['ring'], 2 * T)
        nt = o['nt']
        N = 2 * T
        RB = 64
        assert RB + 16 * R <= 256
        vK, vV = 1, 2
        Q = 4
        C = [20, 24]
        G = 28
        S2 = 30
        vmax, vl, vnm = 46, 47, 3
        ACC = 48
        D = 56
        M0, M1 = 60, 61
        TA = [30, 32, 34, 36]
        U = [28, 29, 62, 63]
        KT = [56, 57, 58, 59, 62, 63]
        stp = None if not cover else ()

        def tile_of(t):
            return 6 * t if t < TC else 6 * TC + 4 * (t - TC)

        A('v_and_b32 v4, 3, v0')
        A('v_lshlrev_b32 v4, 10, v4')
        A('v_bfe_u32 v5, v0, 2, 2')
        A('v_lshlrev_b32 v5, 8, v5')
        A('v_lshrrev_b32 v6, 4, v0')
        A('v_lshlrev_b32 v6, 4, v6')
        A(f'v_add3_u32 v{vK}, v4, v5, v6')
        A(f'v_lshlrev_b32 v{vV}, 4, v0')
        A('s_lshl_b32 s44, s31, 24')
        A('s_lshl_b32 s45, s32, 19')
        A('s_add_u32 s44, s44, s45')
        if cover:
            A(f's_setprio {o["cprio"]}')
            A('s_sub_u32 s46, s30, 2')
        else:
            A('s_mov_b32 s46, s30')
        A('s_lshl_b32 s45, s46, 12')
        A('s_add_u32 s44, s44, s45')
        A('s_waitcnt lgkmcnt(0)')
        self.srd(36, 6, 0x8000000)
        self.srd(40, 8, 0x8000000)

        seq = []
        prep_after = set()
        for g0 in range(0, T + 4, 4):
            for j in range(4):
                if g0 + j < T: seq.append(('k', g0 + j))
                if 0 <= g0 - 4 + j < T: seq.append(('v', g0 - 4 + j))
            if g0 < T: prep_after.add(len(seq) - 1)
        assert len(seq) == N

        def issue(n):
            r = RB + (n % R) * 16
            kind, t = seq[n]
            A(f's_add_u32 s45, s44, {tile_of(t)*4096:#x}')
            for j in range(4):
                if kind == 'k':
                    A(f'buffer_load_dwordx4 v[{r+4*j}:{r+4*j+3}], v{vK}, s[36:39], s45 offen offset:{64*j} {nt}')
                else:
                    A(f'buffer_load_dwordx4 v[{r+4*j}:{r+4*j+3}], v{vV}, s[40:43], s45 offen offset:{1024*j} {nt}')

        pre0, pre = o['pre0'], o['pre']
        self.stamp(6, ('q',))
        for n in range(pre0):
            issue(n)
        self.stamp(7, ('q',))
        A('s_barrier')
        self.stamp(8, ('q',))
        for n in range(pre0, pre):
            issue(n)
        A('s_mov_b32 s48, 0x11111111'); A('s_mov_b32 s49, 0x11111111')
        A('s_mov_b32 s50, 0x22222222'); A('s_mov_b32 s51, 0x22222222')
        A('s_mov_b32 s52, 0x44444444'); A('s_mov_b32 s53, 0x44444444')
        A('s_mov_b32 s54, 0x88888888'); A('s_mov_b32 s55, 0x88888888')
        A(f's_mov_b32 s56, {f2u(SCALE):#x}')
        A(f's_mov_b32 s57, {f2u(LOG2E):#x}')
        self.sel_masks(M0, M1)
        A(f'v_mov_b32 v{vmax}, 0xff800000')
        A(f'v_mov_b32 v{vl}, 0')
        for k in range(8):
            A(f'v_mov_b32 v{ACC+k}, 0')
        A('v_bfe_u32 v62, v0, 2, 2')
        A('v_lshlrev_b32 v62, 8, v62')
        A('v_lshrrev_b32 v63, 4, v0')
        A('v_lshl_add_u32 v62, v63, 4, v62')
        for n in range(pre, R):
            A(f's_waitcnt vmcnt({4*(pre-1)})')
            if n == pre: self.stamp(9, ('q',))
            issue(n)
        self.stamp(1)
        A('s_barrier')
        for j in range(4):
            A(f'ds_read_b128 v[{Q+4*j}:{Q+4*j+3}], v62 offset:{LDS_Q + 64*j}')
        self.stamp(2)
        A('s_waitcnt lgkmcnt(0)')

        def kpost(t):
            c = C[t & 1]
            tt = t & 3
            part = (t // 4) * 4 + 4 > T
            if tt == 0 and not part:
                A(f'v_cvt_pk_bf16_f32 v{G}, v{c}, v{c+1}')
                A(f'v_cvt_pk_bf16_f32 v{G+1}, v{c+2}, v{c+3}')
            else:
                if tt == 0:
                    A(f'v_mov_b32 v{G}, 0xff80ff80')
                    A(f'v_mov_b32 v{G+1}, 0xff80ff80')
                A(f'v_cvt_pk_bf16_f32 v{KT[4]}, v{c}, v{c+1}')
                A(f'v_cvt_pk_bf16_f32 v{KT[5]}, v{c+2}, v{c+3}')
                sm = 48 + 2 * tt
                A(f'v_cndmask_b32 v{G}, v{G}, v{KT[4]}, s[{sm}:{sm+1}]')
                A(f'v_cndmask_b32 v{G+1}, v{G+1}, v{KT[5]}, s[{sm}:{sm+1}]')

        extra = [0]

        def wait_for(n):
            issued = min(n + R - 1, N - 1)
            A(f's_waitcnt vmcnt({4*(issued-n) + extra[0]})')

        def finish_l():
            self.dpp('v_add_f32', [vl], 'quad_perm:[1,0,3,2]')
            self.dpp('v_add_f32', [vl], 'quad_perm:[2,3,0,1]')
            self.swap_red('v_add_f32', [vl], [62], 16)
            self.swap_red('v_add_f32', [vl], [62], 32)
            A('s_lshl_b32 s45, s46, 11')
            A(f's_add_u32 s45, s45, {LDS_O}')
            A('v_lshlrev_b32 v28, 5, v0')
            A('v_add_u32 v28, s45, v28')
            A('s_lshl_b32 s45, s46, 5')
            A(f's_add_u32 s45, s45, {LDS_ML}')
            A('v_bfe_u32 v29, v0, 2, 2')
            A('v_lshlrev_b32 v29, 3, v29')
            A('v_add_u32 v29, s45, v29')
            A(f'ds_write_b64 v29, v[{vmax}:{vl}]')

        pool = (not cover) and o['pool'] > 0
        PBASE = 128 - o['pool']
        PQ = o['pool'] // 4 - 2
        NPOOL = 32 * PQ
        if pool:
            busy = {(N - 1 - k) % R for k in range(5)}
            free = [x for x in range(R) if x not in busy]
            PS = [(RB + 16 * free[2 * k], RB + 16 * free[2 * k + 1]) for k in range(3)]
        AI = [26, 27]
        vZ = 25

        def atomic(k):
            A('s_mov_b64 exec, 1')
            A(f'v_mov_b32 v{AI[k & 1]}, 1')
            A(f'buffer_atomic_add v{AI[k & 1]}, v{vZ}, s[60:63], s58 offen sc0 sc1')
            A('s_mov_b64 exec, -1')

        def pool_loads(k):
            kr, vr = PS[k % 3]
            for j in range(4):
                A(f'buffer_load_dwordx4 v[{kr+4*j}:{kr+4*j+3}], v{vK}, s[36:39], s45 offen offset:{64*j} {nt}')
            for j in range(4):
                A(f'buffer_load_dwordx4 v[{vr+4*j}:{vr+4*j+3}], v{vV}, s[40:43], s45 offen offset:{1024*j} {nt}')

        def pool_issue(k):
            A(f'v_readfirstlane_b32 s45, v{AI[k & 1]}')
            A(f's_cmp_lt_u32 s45, {NPOOL}')
            A('s_cselect_b32 s59, s59, 0')
            A(f's_mov_b32 s{64 + k % 3}, s59')
            if PQ & (PQ - 1) == 0:
                A(f's_lshr_b32 s47, s45, {PQ.bit_length() - 1}')
                A(f's_and_b32 s45, s45, {PQ - 1}')
            else:
                A(f's_mul_hi_u32 s47, s45, {(1 << 32) // PQ + 1:#x}')
                A(f's_mul_i32 s48, s47, {PQ}')
                A('s_sub_u32 s45, s45, s48')
            A('s_lshl_b32 s47, s47, 19')
            A('s_lshl_b32 s45, s45, 14')
            A('s_add_u32 s45, s45, s47')
            A('s_add_u32 s45, s45, s67')
            A('s_cmp_lg_u32 s59, 0')
            A('s_cselect_b32 s45, s45, 0x10000000')
            A('s_cselect_b32 s58, s58, 0x30000000')
            atomic(k + 1)
            pool_loads(k)

        def pool_prologue(rem):
            if rem == 3:
                self.srd(60, 28, WS_SIZE)
                A('s_lshl_b32 s58, s31, 2')
                A('s_add_u32 s58, s58, s30')
                A('s_lshl_b32 s58, s58, 8')
                A(f's_add_u32 s58, s58, {WS_CNT:#x}')
                A('s_lshl_b32 s67, s31, 24')
                A('s_lshl_b32 s45, s30, 12')
                A('s_add_u32 s67, s67, s45')
                A(f's_add_u32 s67, s67, {(PBASE + 8) * 4096:#x}')
                A('s_mov_b32 s59, 1')
                A('s_mov_b32 s64, 1')
                A('s_mov_b32 s65, 1')
                A(f'v_mov_b32 v{vZ}, 0')
                A(f's_add_u32 s45, s44, {PBASE * 4096:#x}')
                pool_loads(0)
                extra[0] += 8
            elif rem == 1:
                A(f'v_mov_b32 v24, {LDS_F}')
                self.lds_wait(24, 4, vt=23, st=45)
                atomic(2)
                A(f's_add_u32 s45, s44, {(PBASE + 4) * 4096:#x}')
                pool_loads(1)
                extra[0] += 9

        def pool_loop():
            PC = 20
            PU = [38, 39, 40, 41]
            lp = self.label('pool')
            A(f'{lp}:')
            for u in range(6):
                kr, vr = PS[u % 3]
                A('s_waitcnt vmcnt(8)')
                A(f's_cmp_eq_u32 s{64 + u % 3}, 0')
                A(f's_cbranch_scc1 {lp}_x')
                for j in range(4):
                    cc = '0' if j == 0 else f'v[{PC}:{PC+3}]'
                    A(f'v_mfma_f32_16x16x32_bf16 v[{PC}:{PC+3}], v[{kr+4*j}:{kr+4*j+3}], v[{Q+4*j}:{Q+4*j+3}], {cc}')
                pool_issue(u + 2)
                A(f'v_cvt_pk_bf16_f32 v{PU[0]}, v{PC}, v{PC+1}')
                A(f'v_cvt_pk_bf16_f32 v{PU[2]}, v{PC+2}, v{PC+3}')
                A(f'v_and_b32 v{PU[1]}, 0xffff0000, v{PU[0]}')
                A(f'v_lshlrev_b32 v{PU[0]}, 16, v{PU[0]}')
                A(f'v_and_b32 v{PU[3]}, 0xffff0000, v{PU[2]}')
                A(f'v_lshlrev_b32 v{PU[2]}, 16, v{PU[2]}')
                for k in range(4):
                    A(f'v_mul_f32 v{PU[k]}, s56, v{PU[k]}')
                self.rnd_bf16_pair(PU[0], PU[1], PC)
                self.rnd_bf16_pair(PU[2], PU[3], PC + 1)
                A(f'v_max3_f32 v{PC}, v{PU[0]}, v{PU[1]}, v{PU[2]}')
                A(f'v_max_f32 v{PC}, v{PC}, v{PU[3]}')
                A(f'v_cmp_gt_f32 vcc, v{PC}, v{vmax}')
                A(f's_cbranch_vccz {lp}_k{u}')
                self.swap_red('v_max_f32', [PC], [PC + 1], 16)
                self.swap_red('v_max_f32', [PC], [PC + 1], 32)
                A(f'v_max_f32 v{PC}, v{PC}, v{vmax}')
                A(f'v_sub_f32 v{PC+1}, v{vmax}, v{PC}')
                A(f'v_mul_f32 v{PC+1}, s57, v{PC+1}')
                A(f'v_exp_f32 v{PC+1}, v{PC+1}')
                A(f'v_mov_b32 v{vmax}, v{PC}')
                A(f'v_mul_f32 v{vnm}, s57, v{PC}')
                A(f'v_sub_f32 v{vnm}, 0, v{vnm}')
                A(f'v_mul_f32 v{vl}, v{vl}, v{PC+1}')
                self.head_to_rows(PC + 2, PC + 1)
                for k in range(8):
                    A(f'v_mul_f32 v{ACC+k}, v{ACC+k}, v{PC+2}')
                A(f'{lp}_k{u}:')
                for k in range(4):
                    A(f'v_fma_f32 v{PU[k]}, v{PU[k]}, s57, v{vnm}')
                for k in range(4):
                    A(f'v_exp_f32 v{PU[k]}, v{PU[k]}')
                self.nop(1)
                for k in range(4):
                    A(f'v_cvt_pk_bf16_f32 v{D+k}, v{PU[k]}, v{PU[k]}')
                for k in range(4):
                    A(f'v_and_b32 v{TA[k]}, v{D+k}, v{M0}')
                    A(f'v_and_b32 v{TA[k]+1}, v{D+k}, v{M1}')
                A(f'v_add_f32 v{PU[0]}, v{PU[0]}, v{PU[1]}')
                A(f'v_add_f32 v{PU[2]}, v{PU[2]}, v{PU[3]}')
                for k in range(4):
                    A(f'v_mfma_f32_16x16x16_bf16 v[{ACC}:{ACC+3}], v[{TA[k]}:{TA[k]+1}], v[{vr+4*k}:{vr+4*k+1}], v[{ACC}:{ACC+3}]')
                    A(f'v_mfma_f32_16x16x16_bf16 v[{ACC+4}:{ACC+7}], v[{TA[k]}:{TA[k]+1}], v[{vr+4*k+2}:{vr+4*k+3}], v[{ACC+4}:{ACC+7}]')
                A(f'v_add_f32 v{PU[0]}, v{PU[0]}, v{PU[2]}')
                A(f'v_fmac_f32 v{vl}, 0.25, v{PU[0]}')
            A(f's_branch {lp}')
            A(f'{lp}_x:')

        UU = [38, 39, 40, 41]
        X0 = 42

        def group_prep():
            lb = self.label('grp')
            A(f'v_lshlrev_b32 v{UU[0]}, 16, v{G}')
            A(f'v_and_b32 v{UU[1]}, 0xffff0000, v{G}')
            A(f'v_lshlrev_b32 v{UU[2]}, 16, v{G+1}')
            A(f'v_and_b32 v{UU[3]}, 0xffff0000, v{G+1}')
            for k in range(4):
                A(f'v_mul_f32 v{UU[k]}, s56, v{UU[k]}')
            self.rnd_bf16_pair(UU[0], UU[1], X0)
            self.rnd_bf16_pair(UU[2], UU[3], X0 + 1)
            A(f'v_max3_f32 v{X0}, v{UU[0]}, v{UU[1]}, v{UU[2]}')
            A(f'v_max_f32 v{X0}, v{X0}, v{UU[3]}')
            A(f'v_cmp_gt_f32 vcc, v{X0}, v{vmax}')
            A(f's_cbranch_vccz {lb}')
            self.dpp('v_max_f32', [X0], 'quad_perm:[1,0,3,2]')
            self.dpp('v_max_f32', [X0], 'quad_perm:[2,3,0,1]')
            self.swap_red('v_max_f32', [X0], [X0 + 1], 16)
            self.swap_red('v_max_f32', [X0], [X0 + 1], 32)
            A(f'v_max_f32 v{X0}, v{X0}, v{vmax}')
            A(f'v_sub_f32 v{X0+1}, v{vmax}, v{X0}')
            A(f'v_mul_f32 v{X0+1}, s57, v{X0+1}')
            A(f'v_exp_f32 v{X0+1}, v{X0+1}')
            A(f'v_mov_b32 v{vmax}, v{X0}')
            A(f'v_mul_f32 v{vnm}, s57, v{X0}')
            A(f'v_sub_f32 v{vnm}, 0, v{vnm}')
            A(f'v_mul_f32 v{vl}, v{vl}, v{X0+1}')
            self.head_to_rows(X0 + 2, X0 + 1)
            for k in range(8):
                A(f'v_mul_f32 v{ACC+k}, v{ACC+k}, v{X0+2}')
            A(f'{lb}:')
            for k in range(4):
                A(f'v_fma_f32 v{UU[k]}, v{UU[k]}, s57, v{vnm}')
            for k in range(4):
                A(f'v_exp_f32 v{UU[k]}, v{UU[k]}')
            self.nop(1)
            for k in range(4):
                A(f'v_cvt_pk_bf16_f32 v{D+k}, v{UU[k]}, v{UU[k]}')
            A(f'v_add_f32 v{UU[0]}, v{UU[0]}, v{UU[1]}')
            A(f'v_add_f32 v{UU[2]}, v{UU[2]}, v{UU[3]}')
            A(f'v_add_f32 v{vl}, v{vl}, v{UU[0]}')
            A(f'v_add_f32 v{vl}, v{vl}, v{UU[2]}')

        pend = None
        for n in range(N):
            kind, t = seq[n]
            r = RB + (n % R) * 16
            tt = t & 3
            if pool and n >= N - 4:
                pool_prologue(N - 1 - n)
            if kind == 'k':
                c = C[t & 1]
                wait_for(n)
                for j in range(4):
                    cc = '0' if j == 0 else f'v[{c}:{c+3}]'
                    A(f'v_mfma_f32_16x16x32_bf16 v[{c}:{c+3}], v[{r+4*j}:{r+4*j+3}], v[{Q+4*j}:{Q+4*j+3}], {cc}')
            else:
                if n == N - 1 and not pool:
                    finish_l()
                qp = f'quad_perm:[{tt},{tt},{tt},{tt}] row_mask:0xf bank_mask:0xf'
                for k in range(4):
                    A(f'v_and_b32_dpp v{TA[k]}, v{D+k}, v{M0} {qp}')
                    A(f'v_and_b32_dpp v{TA[k]+1}, v{D+k}, v{M1} {qp}')
                wait_for(n)
                self.nop(1)
                for k in range(4):
                    A(f'v_mfma_f32_16x16x16_bf16 v[{ACC}:{ACC+3}], v[{TA[k]}:{TA[k]+1}], v[{r+4*k}:{r+4*k+1}], v[{ACC}:{ACC+3}]')
                    A(f'v_mfma_f32_16x16x16_bf16 v[{ACC+4}:{ACC+7}], v[{TA[k]}:{TA[k]+1}], v[{r+4*k+2}:{r+4*k+3}], v[{ACC+4}:{ACC+7}]')
            if n + R < N:
                issue(n + R)
            elif kind == 'k':
                self.nop(5)
            if pend is not None:
                kpost(pend)
                pend = None
            if kind == 'k':
                pend = t
            if n in prep_after:
                if pend is not None:
                    self.nop(4)
                    kpost(pend)
                    pend = None
                group_prep()
                if n == max(prep_after):
                    self.stamp(3)
        if pool:
            self.stamp(5)
            pool_loop()
            self.seg_begin('h')
            finish_l()
        else:
            if not cover: self.seg_begin('h')
            self.nop(7)
        self.stamp(4, None if not cover else ())
        A(f'ds_write_b128 v28, v[{ACC}:{ACC+3}]')
        A(f'ds_write_b128 v28, v[{ACC+4}:{ACC+7}] offset:16')
        if not cover: self.seg_end('h')

    def helper_q(self):
        A = self.A
        o = self.o
        nt = o['nt']
        spin = o['spin']
        A('s_setprio 3')
        A('v_lshlrev_b32 v1, 4, v0')
        A('v_and_b32 v2, 15, v0')
        A('v_lshrrev_b32 v3, 4, v0')
        A('s_lshr_b32 s99, s32, 2')
        A('s_waitcnt lgkmcnt(0)')
        A(f's_load_dwordx2 s[96:97], s[28:29], {WS_E:#x}')
        A('s_mov_b32 s0, s99')
        A('s_and_b32 s1, s32, 3')
        self.srd(X, 4, 1024)
        self.srd(WQ, 10, 0x400000)
        A('s_cmp_lg_u32 s33, 0')
        A('s_cbranch_scc1 L_h_b0')
        XA, XB, XP, WQR = 8, 12, 20, 64
        A('v_lshlrev_b32 v4, 17, v3')
        A('v_lshl_add_u32 v4, v2, 4, v4')
        A('s_lshl_b32 s14, s0, 19')
        A('s_lshl_b32 s15, s31, 2')
        A('s_add_u32 s15, s15, s1')
        A('s_lshl_b32 s15, s15, 8')
        A('s_add_u32 s14, s14, s15')
        A(f'buffer_load_dwordx4 v[{XA}:{XA+3}], v1, s[{X}:{X+3}], 0 offen')
        A('v_lshlrev_b32 v6, 5, v3')
        A('s_lshl_b32 s15, s0, 7')
        A(f'buffer_load_dwordx4 v[{XB}:{XB+3}], v6, s[{X}:{X+3}], s15 offen')
        A(f'buffer_load_dwordx4 v[{XB+4}:{XB+7}], v6, s[{X}:{X+3}], s15 offen offset:16')
        A('v_mov_b32 v5, 0')
        A(f'buffer_load_dword v{XP}, v5, s[{X}:{X+3}], 0 offen')
        for k in range(16):
            A(f'buffer_load_dwordx4 v[{WQR+4*k}:{WQR+4*k+3}], v4, s[{WQ}:{WQ+3}], s14 offen {nt}')
            A('s_add_u32 s14, s14, 8192')
        A(f'v_mov_b32 v7, {LDS_F}')
        A('ds_write_b32 v7, v5')
        A('ds_write_b32 v7, v5 offset:4')
        A('s_waitcnt lgkmcnt(0)')
        A('L_h_b0:')
        self.stamp(4, ('q',))
        A('s_barrier')
        self.srd(WS, 28, WS_SIZE)
        A('s_waitcnt lgkmcnt(0)')
        A(f's_add_u32 s96, s96, {TAGC & 0xffffffff:#x}')
        A(f's_addc_u32 s97, s97, {TAGC >> 32:#x}')
        A('s_cmp_lg_u32 s33, 0')
        A('s_cbranch_scc1 L_h_qgather')
        self.sel_masks(44, 45)
        A('v_lshlrev_b32 v46, 6, v2')
        A('v_lshl_add_u32 v46, v3, 4, v46')
        A('s_lshl_b32 s6, s31, 15')
        A('s_lshl_b32 s15, s0, 12')
        A('s_add_u32 s6, s6, s15')
        A('s_lshl_b32 s15, s1, 10')
        A('s_add_u32 s6, s6, s15')
        A('v_and_b32 v5, 1, v3')
        A('v_cmp_eq_u32 s[72:73], 1, v5')
        A('v_cmp_lt_u32 s[74:75], 1, v3')
        A('v_mov_b32 v26, s96')
        A('v_mov_b32 v27, s97')
        A('s_waitcnt vmcnt(16)')
        self.stamp(6, ('q',))
        V8 = list(range(28, 36))
        for k in range(4):
            A(f'v_lshlrev_b32 v{V8[2*k]}, 16, v{XA+k}')
            A(f'v_and_b32 v{V8[2*k+1]}, 0xffff0000, v{XA+k}')
        A(f'v_lshlrev_b32 v{XP}, 16, v{XP}')
        A(f'v_mov_b32 v{XP+1}, v{XP}')
        TT = list(range(48, 58))
        self.ln_moments(V8, XP, TT, 76, 77)
        self.ln_finish(TT[8], TT[9], 22, 23, 24)
        self.stamp(7, ('q',))
        V16 = list(range(28, 44))
        for k in range(8):
            A(f'v_lshlrev_b32 v{V16[2*k]}, 16, v{XB+k}')
            A(f'v_and_b32 v{V16[2*k+1]}, 0xffff0000, v{XB+k}')
        self.ln_apply(V16, V16, 22, 23, 24)
        QA = 48
        for k in range(16):
            a = 56 + 2 * (k & 3)
            A(f'v_cvt_pk_bf16_f32 v24, v{V16[k]}, v{V16[k]}')
            A(f'v_and_b32 v{a}, v24, v44')
            A(f'v_and_b32 v{a+1}, v24, v45')
            A(f's_waitcnt vmcnt({15 - k})')
            if k == 0: self.stamp(8, ('q',))
            if k == 15: self.stamp(9, ('q',))
            self.nop(1)
            c0 = '0' if k == 0 else f'v[{QA}:{QA+3}]'
            c1 = '0' if k == 0 else f'v[{QA+4}:{QA+7}]'
            A(f'v_mfma_f32_16x16x16_bf16 v[{QA}:{QA+3}], v[{a}:{a+1}], v[{WQR+4*k}:{WQR+4*k+1}], {c0}')
            A(f'v_mfma_f32_16x16x16_bf16 v[{QA+4}:{QA+7}], v[{a}:{a+1}], v[{WQR+4*k+2}:{WQR+4*k+3}], {c1}')
        self.nop(8)
        for k in range(4):
            A(f'v_cndmask_b32 v{QA+k}, v{QA+k}, v{QA+4+k}, s[74:75]')
        A(f'v_cndmask_b32 v24, v{QA}, v{QA+2}, s[72:73]')
        A(f'v_cndmask_b32 v25, v{QA+1}, v{QA+3}, s[72:73]')
        if o['qlocal']:
            A(f's_add_u32 s15, s6, {WS_QL:#x}')
            A(f'buffer_store_dwordx4 v[24:27], v46, s[{WS}:{WS+3}], s15 offen')
        A(f'buffer_store_dwordx4 v[24:27], v46, s[{WS}:{WS+3}], s6 offen offset:{WS_QP} sc1')
        self.stamp(1)
        A('v_lshlrev_b32 v5, 10, v0')
        A('s_lshl_b32 s14, s31, 15')
        A('s_mov_b32 exec_hi, 0')
        A(f's_mov_b32 s15, {spin}')
        lp = self.label('probe')
        A(f'{lp}:')
        A(f's_sleep {o["pollsleep"]}')
        A(f'buffer_load_dwordx2 v[28:29], v5, s[{WS}:{WS+3}], s14 offen offset:{WS_QP+1016} sc1')
        A('s_sub_u32 s15, s15, 1')
        A('s_cmp_eq_u32 s15, 0')
        A(f's_cbranch_scc1 {lp}_x')
        A('s_waitcnt vmcnt(0)')
        A('v_cmp_ne_u64 vcc, s[96:97], v[28:29]')
        A('s_and_b64 exec, exec, vcc')
        A(f's_cbranch_execnz {lp}')
        A(f'{lp}_x:')
        A('s_mov_b64 exec, -1')
        A('v_mov_b32 v6, 1')
        A('ds_write_b32 v7, v6')
        self.stamp(5, ('q',))
        A('L_h_qgather:')
        A(f'v_mov_b32 v7, {LDS_F}')
        A('s_lshl_b32 s14, s31, 15')
        A('s_lshl_b32 s15, s33, 11')
        A('s_add_u32 s14, s14, s15')
        self.lds_wait(7, 0)
        A(f's_mov_b32 s15, {spin}')
        lp = self.label('pollqd')
        if o['qlocal']:
            A(f's_add_u32 s8, s14, {WS_QL:#x}')
            A(f's_branch {lp}_f')
        A(f'{lp}:')
        A('s_mov_b32 s8, s14')
        A(f'{lp}_f:')
        for k in range(8):
            A(f'buffer_load_dwordx4 v[{64+8*k}:{67+8*k}], v1, s[{WS}:{WS+3}], s8 offen offset:{WS_QP} sc1')
            A(f'buffer_load_dwordx4 v[{68+8*k}:{71+8*k}], v1, s[{WS}:{WS+3}], s8 offen offset:{WS_QP+1024} sc1')
            if k < 7:
                A('s_add_u32 s8, s8, 4096')
        A('s_sub_u32 s15, s15, 1')
        A('s_cmp_eq_u32 s15, 0')
        A(f's_cbranch_scc1 {lp}_x')
        for k in range(16):
            A(f's_waitcnt vmcnt({15-k})')
            if k == 0:
                A(f'v_cmp_ne_u64 s[76:77], s[96:97], v[{66+4*k}:{67+4*k}]')
            else:
                A(f'v_cmp_ne_u64 vcc, s[96:97], v[{66+4*k}:{67+4*k}]')
                A('s_or_b64 s[76:77], s[76:77], vcc')
        A('s_and_b64 exec, exec, s[76:77]')
        A(f's_cbranch_execz {lp}_x')
        A('s_sleep 2')
        A(f's_branch {lp}')
        A(f'{lp}_x:')
        A('s_mov_b64 exec, -1')
        A('s_waitcnt vmcnt(0)')
        self.stamp(2)
        for k in range(1, 8):
            A(f'v_pk_add_f32 v[64:65], v[64:65], v[{64+8*k}:{65+8*k}]')
            A(f'v_pk_add_f32 v[68:69], v[68:69], v[{68+8*k}:{69+8*k}]')
        A('v_cvt_pk_bf16_f32 v16, v64, v65')
        A('v_cvt_pk_bf16_f32 v17, v68, v69')
        A('s_lshl_b32 s15, s33, 9')
        A('v_lshl_add_u32 v5, v0, 2, s15')
        A(f'ds_write_b32 v5, v16 offset:{LDS_Q}')
        A(f'ds_write_b32 v5, v17 offset:{LDS_Q+256}')
        A('s_waitcnt lgkmcnt(0)')
        self.stamp(3)
        A('s_barrier')
        A('s_cmp_lg_u32 s33, 1')
        A('s_cbranch_scc1 L_pref')
        A('v_mov_b32 v24, -1'); A('v_mov_b32 v25, -1'); A('v_mov_b32 v26, -1'); A('v_mov_b32 v27, -1')
        A('s_lshl_b32 s14, s3, 11')
        A(f's_add_u32 s14, s14, {WS_P1:#x}')
        for k in range(2):
            A(f'buffer_store_dwordx4 v[24:27], v1, s[{WS}:{WS+3}], s14 offen offset:{1024*k} sc1')
        A('s_lshl_b32 s14, s31, 2')
        A('s_add_u32 s14, s14, s34')
        A('s_lshl_b32 s14, s14, 11')
        A('s_lshl_b32 s15, s35, 8')
        A('s_add_u32 s14, s14, s15')
        A(f's_add_u32 s14, s14, {WS_P2:#x}')
        A('v_lshlrev_b32 v5, 2, v0')
        A(f'buffer_store_dword v24, v5, s[{WS}:{WS+3}], s14 offen sc1')
        A('s_cmp_ge_u32 s32, 16')
        A('s_cbranch_scc1 L_h1_nohv')
        A(f's_mul_i32 s14, s31, {HVS}')
        A(f's_add_u32 s14, s14, {WS_HV:#x}')
        A('s_lshl_b32 s15, s32, 7')
        A('v_add_u32 v5, s15, v1')
        A('s_lshl_b32 s15, s32, 4')
        A('s_add_u32 s15, s15, 2048')
        A('v_mov_b32 v6, s15')
        A('v_cmp_eq_u32 vcc, 8, v0')
        self.nop(2)
        A('v_cndmask_b32 v5, v5, v6, vcc')
        A('s_mov_b64 exec, 0x1ff')
        A(f'buffer_store_dwordx4 v[24:27], v5, s[{WS}:{WS+3}], s14 offen sc1')
        A('s_mov_b64 exec, -1')
        A('L_h1_nohv:')
        A('s_cmp_lg_u32 s32, 0')
        A('s_cbranch_scc1 L_h1_nocnt')
        A('s_lshl_b32 s14, s31, 10')
        A(f's_add_u32 s14, s14, {WS_CNT:#x}')
        A('v_mov_b32 v32, 0'); A('v_mov_b32 v33, 0'); A('v_mov_b32 v34, 0'); A('v_mov_b32 v35, 0')
        A(f'buffer_store_dwordx4 v[32:35], v1, s[{WS}:{WS+3}], s14 offen sc1')
        A('L_h1_nocnt:')
        A('s_getreg_b32 s8, hwreg(HW_REG_XCC_ID, 0, 4)')
        A('v_mov_b32 v28, s96')
        A('v_mov_b32 v29, s97')
        A('v_mov_b32 v30, s8')
        A('v_mov_b32 v31, 0')
        A('v_mov_b32 v5, 0')
        A('s_lshl_b32 s14, s3, 4')
        A(f's_add_u32 s14, s14, {WS_F:#x}')
        A('s_mov_b64 exec, 1')
        A('s_waitcnt vmcnt(0)')
        A(f'buffer_store_dwordx4 v[28:31], v5, s[{WS}:{WS+3}], s14 offen sc1')
        A('s_mov_b64 exec, -1')
        A(f's_mov_b32 s14, {WS_F:#x}')
        A(f's_mov_b32 s15, {spin}')
        lp = self.label('pollall')
        A(f'{lp}:')
        A('s_sleep 127')
        A('s_sleep 127')
        for k in range(4):
            A(f'buffer_load_dwordx2 v[{24+2*k}:{25+2*k}], v1, s[{WS}:{WS+3}], s14 offen offset:{1024*k} sc1')
        A('s_sub_u32 s15, s15, 1')
        A('s_cmp_eq_u32 s15, 0')
        A(f's_cbranch_scc1 {lp}_x')
        A('s_waitcnt vmcnt(0)')
        for k in range(4):
            if k == 0:
                A(f'v_cmp_ne_u64 s[76:77], s[96:97], v[{24+2*k}:{25+2*k}]')
            else:
                A(f'v_cmp_ne_u64 vcc, s[96:97], v[{24+2*k}:{25+2*k}]')
                A('s_or_b64 s[76:77], s[76:77], vcc')
        A('s_and_b64 exec, exec, s[76:77]')
        A(f's_cbranch_execnz {lp}')
        A(f'{lp}_x:')
        A('s_mov_b64 exec, -1')
        A('v_mov_b32 v6, 1')
        A('ds_write_b32 v7, v6 offset:4')
        A('s_lshl_b32 s14, s31, 9')
        A(f's_add_u32 s14, s14, {WS_F:#x}')
        A('s_mov_b32 exec_hi, 0')
        A(f'buffer_load_dwordx4 v[24:27], v1, s[{WS}:{WS+3}], s14 offen sc1')
        A('s_waitcnt vmcnt(0)')
        A('v_cmp_ne_u64 s[76:77], s[96:97], v[24:25]')
        A('v_cmp_ne_u32 vcc, s8, v26')
        A('s_or_b64 s[76:77], s[76:77], vcc')
        A('s_cselect_b32 s14, 0, 1')
        if not o['fast']:
            A('s_mov_b32 s14, 0')
        A('s_mov_b64 exec, -1')
        A('v_mov_b32 v6, s14')
        A('ds_write_b32 v7, v6 offset:8')

    def helper_tail(self):
        A = self.A
        o = self.o
        nt = o['nt']
        spin = o['spin']
        WOR, WOT, XR, B2R, XF = 64, 80, 108, 110, 128
        vOA, vMLA, vP1o, vP1m, vWw, vWr, vP2, vHw, vHo = 140, 141, 142, 143, 144, 145, 146, 147, 149
        A('s_setprio 3')
        self.srd(WO, 12, 0x400000)
        self.srd(W1, 16, 3584)
        self.srd(B1, 18, 3584)
        self.srd(W2, 20, 3584)
        self.srd(B2, 22, 2)
        self.srd(OUT, 24, 1024)
        A(f's_mov_b32 s9, {f2u(LOG2E):#x}')
        A('v_lshlrev_b32 v1, 4, v0')
        A('v_and_b32 v8, 7, v0')
        A('v_lshrrev_b32 v9, 3, v0')
        A('v_and_b32 v10, 31, v0')
        A('v_lshlrev_b32 v4, 12, v8')
        A('v_lshl_add_u32 v4, v9, 4, v4')
        A('s_lshl_b32 s8, s31, 2')
        A('s_add_u32 s8, s8, s34')
        A('s_lshl_b32 s14, s8, 17')
        A('s_lshl_b32 s15, s33, 15')
        A('s_add_u32 s14, s14, s15')
        A('s_lshl_b32 s15, s35, 7')
        A('s_add_u32 s14, s14, s15')
        for k in range(4):
            A(f'buffer_load_dwordx4 v[{WOR+4*k}:{WOR+4*k+3}], v4, s[{WO}:{WO+3}], s14 offen offset:{1024*k} {nt}')
        self.mlp_weights_load()
        A('v_lshlrev_b32 v5, 3, v8')
        A('s_and_b32 s14, s32, 15')
        A('s_lshl_b32 s14, s14, 6')
        A(f'buffer_load_dwordx2 v[{XR}:{XR+1}], v5, s[{X}:{X+3}], s14 offen')
        A('v_mov_b32 v5, 0')
        A(f'buffer_load_ushort v{B2R}, v5, s[{B2}:{B2+3}], 0 offen')
        A('s_lshl_b32 s14, s33, 9')
        A(f's_add_u32 s14, s14, {LDS_O}')
        A(f'v_lshl_add_u32 v{vOA}, v10, 4, s14')
        A('s_lshl_b32 s14, s33, 3')
        A(f's_add_u32 s14, s14, {LDS_ML}')
        A(f'v_mov_b32 v{vMLA}, s14')
        A(f'v_lshlrev_b32 v{vP1o}, 11, v9')
        A('s_lshl_b32 s14, s33, 7')
        A(f'v_lshl_add_u32 v{vP1o}, v8, 4, v{vP1o}')
        A(f'v_add_u32 v{vP1o}, s14, v{vP1o}')
        A('s_lshl_b32 s14, s33, 8')
        A(f's_add_u32 s14, s14, {LDS_W}')
        A(f'v_lshl_add_u32 v{vWw}, v9, 5, s14')
        A(f'v_lshlrev_b32 v{vWr}, 2, v0')
        A('v_lshlrev_b32 v4, 13, v9')
        A(f'v_lshl_add_u32 v{vP2}, v8, 4, v4')
        A('s_and_b32 s15, s32, 15')
        A('s_lshl_b32 s14, s15, 7')
        A(f's_add_u32 s6, s14, {WS_P2:#x}')
        A('s_add_u32 s7, s6, 4096')
        A(f's_mul_i32 s25, s31, {HVS}')
        A(f's_add_u32 s25, s25, {WS_HV:#x}')
        A('v_add_u32 v148, s14, v1')
        A('s_lshl_b32 s15, s15, 4')
        A('s_add_u32 s15, s15, 2048')
        A('v_mov_b32 v4, s15')
        A('v_cmp_eq_u32 s[48:49], 8, v0')
        self.nop(2)
        A('v_cndmask_b32 v148, v148, v4, s[48:49]')
        A('s_lshr_b32 s14, s2, 1')
        A('s_lshl_b32 s14, s14, 4')
        A('v_mov_b32 v4, s14')
        A(f'v_add_u32 v{vHw}, 0x800, v1')
        A('v_cmp_lt_u32 vcc, 15, v0')
        A(f'v_mov_b32 v{vHo}, {LDS_H}')
        A('s_nop 0')
        A(f'v_cndmask_b32 v{vHw}, v{vHw}, v4, vcc')
        A('s_lshl_b32 s14, s3, 11')
        A('s_lshl_b32 s15, s33, 9')
        A('s_add_u32 s14, s14, s15')
        A(f's_add_u32 s16, s14, {WS_P1:#x}')
        A('s_lshl_b32 s14, s31, 16')
        A('s_lshl_b32 s15, s34, 9')
        A('s_add_u32 s14, s14, s15')
        A(f's_add_u32 s10, s14, {WS_P1:#x}')
        A('s_add_u32 s11, s10, 16384')
        A('s_add_u32 s12, s10, 32768')
        A('s_add_u32 s13, s10, 49152')
        A('s_lshl_b32 s14, s8, 11')
        A('s_lshl_b32 s15, s35, 8')
        A('s_add_u32 s14, s14, s15')
        A(f's_add_u32 s17, s14, {WS_P2:#x}')
        A('s_waitcnt vmcnt(0)')
        A('s_mov_b32 s14, 0x05040100')
        A('s_mov_b32 s15, 0x07060302')
        for p in range(2):
            for dw in range(4):
                lo, hi = WOR + 8 * p + dw, WOR + 8 * p + 4 + dw
                A(f'v_perm_b32 v{WOT+8*p+2*dw}, v{hi}, v{lo}, s14')
                A(f'v_perm_b32 v{WOT+8*p+2*dw+1}, v{hi}, v{lo}, s15')
        self.mlp_weights_prep()
        for k in range(2):
            A(f'v_lshlrev_b32 v{XF+2*k}, 16, v{XR+k}')
            A(f'v_and_b32 v{XF+2*k+1}, 0xffff0000, v{XR+k}')
        A(f'v_lshlrev_b32 v{B2R}, 16, v{B2R}')
        A('v_cmp_lt_u32 s[18:19], 31, v0')
        if o['warm']:
            A('s_cmp_lg_u32 s33, 0')
            A('s_cbranch_scc1 L_nowarm')
            self.warm_pass(['h', 'a', 'b', 'c', 'd1', 'e', 'f', 'g'])
            self.srd(WS, 28, WS_SIZE)
            A('L_nowarm:')
        for k in range(4):
            A(f's_mov_b64 s[{72+2*k}:{73+2*k}], -1')
        A('s_waitcnt lgkmcnt(0)')
        A('s_barrier')
        self.seg_begin('a')
        self.stamp(4, (True,))
        NP = NPART
        ML, OO = 16, 28
        A(f'ds_read_b32 v14, v{vHo} offset:{LDS_F + 8 - LDS_H}')
        for w in range(NP):
            A(f'ds_read_b64 v[{ML+2*w}:{ML+2*w+1}], v{vMLA} offset:{32*w}')
        for w in range(NP):
            A(f'ds_read_b128 v[{OO+4*w}:{OO+4*w+3}], v{vOA} offset:{2048*w}')
        A(f's_waitcnt lgkmcnt({NP})')
        A(f'v_max3_f32 v12, v{ML}, v{ML+2}, v{ML+4}')
        A(f'v_max3_f32 v13, v{ML+6}, v{ML+8}, v{ML+10}')
        A('v_max_f32 v12, v12, v13')
        A('v_readfirstlane_b32 s24, v14')
        A('v_mul_f32 v13, s9, v12')
        for w in range(NP):
            A(f'v_fma_f32 v{ML+2*w}, v{ML+2*w}, s9, -v13')
        for w in range(NP):
            A(f'v_exp_f32 v{ML+2*w}, v{ML+2*w}')
        A(f'v_mul_f32 v13, v{ML}, v{ML+1}')
        for w in range(1, NP):
            A(f'v_fmac_f32 v13, v{ML+2*w}, v{ML+2*w+1}')
        A('s_waitcnt lgkmcnt(0)')
        for c in range(4):
            A(f'v_mul_f32 v{52+c}, v{ML}, v{OO+c}')
        for w in range(1, NP):
            for c in range(4):
                A(f'v_fmac_f32 v{52+c}, v{ML+2*w}, v{OO+4*w+c}')
        A('v_cvt_pk_bf16_f32 v52, v52, v53')
        A('v_cvt_pk_bf16_f32 v53, v54, v55')
        A('v_min_u32 v54, 0xfffffffe, v12')
        A('v_min_u32 v55, 0xfffffffe, v13')
        self.canon([52, 53])
        self.seg_end('a')
        A('s_mov_b32 exec_hi, 0')
        A('s_cmp_eq_u32 s24, 0')
        lb = self.label('st')
        A(f's_cbranch_scc1 {lb}')
        A(f'buffer_store_dwordx4 v[52:55], v1, s[{WS}:{WS+3}], s16 offen')
        A(f's_branch {lb}_x')
        A(f'{lb}:')
        A(f'buffer_store_dwordx4 v[52:55], v1, s[{WS}:{WS+3}], s16 offen sc1')
        A(f'{lb}_x:')
        self.stamp(5, (True,))
        GO = 16
        A(f's_mov_b32 s15, {spin}')
        lp = self.label('poll1')
        A(f'{lp}:')
        for k in range(4):
            A(f's_mov_b64 exec, s[{72+2*k}:{73+2*k}]')
            A(f's_cbranch_execz {lp}_l{k}')
            A(f'buffer_load_dwordx4 v[{GO+4*k}:{GO+4*k+3}], v{vP1o}, s[{WS}:{WS+3}], s{10+k} offen sc1')
            A(f'{lp}_l{k}:')
        A('s_sub_u32 s15, s15, 1')
        A('s_cmp_eq_u32 s15, 0')
        A(f's_cbranch_scc1 {lp}_x')
        A('s_waitcnt vmcnt(0)')
        for k in range(4):
            A(f's_mov_b64 exec, s[{72+2*k}:{73+2*k}]')
            A(f'v_max3_u32 v12, v{GO+4*k}, v{GO+4*k+1}, v{GO+4*k+2}')
            A(f'v_max_u32 v12, v12, v{GO+4*k+3}')
            A(f'v_cmp_eq_u32 s[{72+2*k}:{73+2*k}], -1, v12')
        A('s_or_b64 s[20:21], s[72:73], s[74:75]')
        A('s_or_b64 vcc, s[76:77], s[78:79]')
        A('s_or_b64 s[20:21], s[20:21], vcc')
        A(f's_cbranch_scc0 {lp}_x')
        A('s_bcnt1_i32_b64 s14, s[20:21]')
        A('s_cmp_gt_u32 s14, 16')
        A(f's_cbranch_scc1 {lp}_s')
        if o['sleep_few']:
            A(f's_sleep {o["sleep_few"]}')
        A(f's_branch {lp}')
        A(f'{lp}_s:')
        A(f's_sleep {o["sleep_many"]}')
        A(f's_branch {lp}')
        A(f'{lp}_x:')
        A('s_mov_b64 exec, -1')
        A('s_waitcnt vmcnt(0)')
        self.seg_begin('b')
        self.stamp(6, (True,))
        A(f'v_max3_f32 v12, v{GO+2}, v{GO+6}, v{GO+10}')
        A(f'v_max_f32 v12, v12, v{GO+14}')
        for k in range(2):
            A(f'v_lshlrev_b32 v{32+4*k}, 16, v{GO+4*k}')
            A(f'v_and_b32 v{33+4*k}, 0xffff0000, v{GO+4*k}')
        A('v_max_f32_dpp v12, v12, v12 row_ror:8 row_mask:0xf bank_mask:0xf')
        A('v_mov_b32 v13, v12')
        for k in range(2):
            A(f'v_lshlrev_b32 v{34+4*k}, 16, v{GO+4*k+1}')
            A(f'v_and_b32 v{35+4*k}, 0xffff0000, v{GO+4*k+1}')
        A('v_permlane16_swap_b32 v12, v13')
        for k in range(2, 4):
            A(f'v_lshlrev_b32 v{44+4*k}, 16, v{GO+4*k}')
            A(f'v_and_b32 v{45+4*k}, 0xffff0000, v{GO+4*k}')
        A('v_max_f32 v12, v12, v13')
        A('v_mov_b32 v13, v12')
        for k in range(2, 4):
            A(f'v_lshlrev_b32 v{46+4*k}, 16, v{GO+4*k+1}')
            A(f'v_and_b32 v{47+4*k}, 0xffff0000, v{GO+4*k+1}')
        A('v_permlane32_swap_b32 v12, v13')
        self.nop(2)
        A('v_max_f32 v12, v12, v13')
        A('v_mul_f32 v12, s9, v12')
        OU = [32, 36, 52, 56]
        for k in range(4):
            A(f'v_fma_f32 v{GO+4*k+2}, v{GO+4*k+2}, s9, -v12')
        for k in range(4):
            A(f'v_exp_f32 v{GO+4*k+2}, v{GO+4*k+2}')
        self.nop(1)
        A(f'v_mul_f32 v44, v{GO+2}, v{GO+3}')
        A(f'v_pk_mul_f32 v[40:41], v[{OU[0]}:{OU[0]+1}], v[{GO+2}:{GO+3}] op_sel_hi:[1,0]')
        A(f'v_pk_mul_f32 v[42:43], v[{OU[0]+2}:{OU[0]+3}], v[{GO+2}:{GO+3}] op_sel_hi:[1,0]')
        for k in range(1, 4):
            f = GO + 4 * k + 2
            A(f'v_fmac_f32 v44, v{f}, v{f+1}')
            A(f'v_pk_fma_f32 v[40:41], v[{OU[k]}:{OU[k]+1}], v[{f}:{f+1}], v[40:41] op_sel_hi:[1,0,1]')
            A(f'v_pk_fma_f32 v[42:43], v[{OU[k]+2}:{OU[k]+3}], v[{f}:{f+1}], v[42:43] op_sel_hi:[1,0,1]')
        self.nop(1)
        R5 = [44, 40, 41, 42, 43]
        T5 = [45, 46, 47, 48, 49]
        self.dpp('v_add_f32', R5, 'row_ror:8')
        self.swap_red('v_add_f32', R5, T5, 16)
        self.swap_red('v_add_f32', R5, T5, 32)
        A('v_rcp_f32 v44, v44')
        self.nop(1)
        for c in range(4):
            A(f'v_mul_f32 v{40+c}, v{40+c}, v44')
        A('v_cvt_pk_bf16_f32 v40, v40, v41')
        A('v_cvt_pk_bf16_f32 v41, v42, v43')
        for c in range(8):
            A(f'v_dot2_f32_bf16 v{16+c}, v40, v{WOT+c}, 0')
        for c in range(8):
            A(f'v_dot2_f32_bf16 v{16+c}, v41, v{WOT+8+c}, v{16+c}')
        R8 = list(range(16, 24))
        self.dpp('v_add_f32', R8, 'quad_perm:[1,0,3,2]')
        self.dpp('v_add_f32', R8, 'quad_perm:[2,3,0,1]')
        self.dpp('v_add_f32', R8, 'row_half_mirror')
        A(f'ds_write_b128 v{vWw}, v[16:19]')
        A(f'ds_write_b128 v{vWw}, v[20:23] offset:16')
        A('s_waitcnt lgkmcnt(0)')
        self.seg_end('b')
        A('s_barrier')
        A('s_cmp_lg_u32 s33, 0')
        A('s_cbranch_scc1 L_hop2')
        self.seg_begin('c')
        for w in range(4):
            A(f'ds_read_b32 v{16+w}, v{vWr} offset:{LDS_W + 256*w}')
        A('s_waitcnt lgkmcnt(0)')
        A('v_add_f32 v16, v16, v17')
        A('v_add_f32 v18, v18, v19')
        A('v_add_f32 v16, v16, v18')
        self.canon([16])
        self.seg_end('c')
        A(f'buffer_store_dword v16, v{vWr}, s[{WS}:{WS+3}], s17 offen sc1')
        A('L_hop2:')
        self.stamp(7, (True,))
        A('s_sub_u32 s14, s33, 1')
        A(f's_cmp_ge_u32 s14, {o["nred"]}')
        A('s_cbranch_scc1 L_hop2b')
        A('s_cmp_ge_u32 s32, 16')
        A('s_cbranch_scc1 L_hop2b')
        if o['nred'] > 1:
            A('s_cmp_eq_u32 s14, 0')
            A('s_cbranch_scc1 L_red')
            A('s_sleep 3')
            A('s_cmp_eq_u32 s14, 1')
            A('s_cbranch_scc1 L_red')
            A('s_sleep 3')
            A('L_red:')
        A(f's_mov_b32 s15, {spin}')
        lp = self.label('poll2a')
        A(f'{lp}:')
        for k in range(4):
            A(f'buffer_load_dwordx4 v[{16+4*k}:{19+4*k}], v{vP2}, s[{WS}:{WS+3}], s{6+(k>>1)} offen offset:{2048*(k&1)} sc1')
        A('s_sub_u32 s15, s15, 1')
        A('s_cmp_eq_u32 s15, 0')
        A(f's_cbranch_scc1 {lp}_x')
        A('s_waitcnt vmcnt(0)')
        A('v_max3_u32 v12, v16, v17, v18')
        A('v_max3_u32 v13, v19, v20, v21')
        A('v_max3_u32 v12, v12, v22, v23')
        A('v_max3_u32 v13, v13, v24, v25')
        A('v_max3_u32 v12, v12, v26, v27')
        A('v_max3_u32 v13, v13, v28, v29')
        A('v_max3_u32 v12, v12, v30, v31')
        A('v_max_u32 v12, v12, v13')
        A('v_cmp_eq_u32 vcc, -1, v12')
        A('s_and_b64 exec, exec, vcc')
        A(f's_cbranch_execnz {lp}')
        A(f'{lp}_x:')
        A('s_mov_b64 exec, -1')
        A('s_waitcnt vmcnt(0)')
        self.seg_begin('d1')
        A('v_pk_add_f32 v[16:17], v[16:17], v[20:21]')
        A('v_pk_add_f32 v[18:19], v[18:19], v[22:23]')
        A('v_pk_add_f32 v[24:25], v[24:25], v[28:29]')
        A('v_pk_add_f32 v[26:27], v[26:27], v[30:31]')
        A('v_pk_add_f32 v[16:17], v[16:17], v[24:25]')
        A('v_pk_add_f32 v[18:19], v[18:19], v[26:27]')
        R4 = [16, 17, 18, 19]
        self.nop(1)
        self.dpp('v_add_f32', R4, 'row_ror:8')
        self.swap_red('v_add_f32', R4, [20, 21, 22, 23], 16)
        self.swap_red('v_add_f32', R4, [20, 21, 22, 23], 32)
        self.rnd_bf16_pair(16, 17, 20)
        self.rnd_bf16_pair(18, 19, 21)
        A(f'v_pk_add_f32 v[16:17], v[16:17], v[{XF}:{XF+1}]')
        A(f'v_pk_add_f32 v[18:19], v[18:19], v[{XF+2}:{XF+3}]')
        self.rnd_bf16_pair(16, 17, 20)
        self.rnd_bf16_pair(18, 19, 21)
        A('v_readfirstlane_b32 s14, v16')
        self.nop(2)
        for c in range(4):
            A(f'v_subrev_f32 v{20+c}, s14, v{16+c}')
        A('v_add_f32 v25, v20, v21')
        A('v_mul_f32 v26, v20, v20')
        A('v_add_f32 v24, v22, v23')
        A('v_fmac_f32 v26, v21, v21')
        A('v_add_f32 v25, v25, v24')
        A('v_fmac_f32 v26, v22, v22')
        A('v_mov_b32 v24, s14')
        A('v_fmac_f32 v26, v23, v23')
        A('v_cndmask_b32 v16, v16, v24, s[48:49]')
        self.dpp('v_add_f32', [25, 26], 'quad_perm:[1,0,3,2]')
        self.dpp('v_add_f32', [25, 26], 'quad_perm:[2,3,0,1]')
        self.dpp('v_add_f32', [25, 26], 'row_half_mirror')
        self.canon([25, 26])
        A('v_cndmask_b32 v17, v17, v25, s[48:49]')
        A('v_cndmask_b32 v18, v18, v26, s[48:49]')
        self.seg_end('d1')
        A('s_mov_b64 exec, 0x1ff')
        A('s_cmp_eq_u32 s24, 0')
        lb = self.label('st')
        A(f's_cbranch_scc1 {lb}')
        A(f'buffer_store_dwordx4 v[16:19], v148, s[{WS}:{WS+3}], s25 offen')
        A(f's_branch {lb}_x')
        A(f'{lb}:')
        A(f'buffer_store_dwordx4 v[16:19], v148, s[{WS}:{WS+3}], s25 offen sc1')
        A(f'{lb}_x:')
        A('s_mov_b64 exec, -1')
        A('L_hop2b:')
        A('s_cmp_lg_u32 s33, 0')
        A('s_cbranch_scc1 L_b4')
        A('s_mov_b64 exec, 0x1ffff')
        A(f's_mov_b32 s15, {spin}')
        lp = self.label('poll2b')
        A(f'{lp}:')
        A(f'buffer_load_dwordx4 v[16:19], v{vHw}, s[{WS}:{WS+3}], s25 offen sc1')
        A('s_sub_u32 s15, s15, 1')
        A('s_cmp_eq_u32 s15, 0')
        A(f's_cbranch_scc1 {lp}_x')
        A('s_waitcnt vmcnt(0)')
        A('v_max3_u32 v12, v16, v17, v18')
        A('v_max_u32 v12, v12, v19')
        A('v_cmp_eq_u32 vcc, -1, v12')
        A('s_and_b64 exec, exec, vcc')
        A(f's_cbranch_execz {lp}_x')
        if o['sleep2b']:
            A(f's_sleep {o["sleep2b"]}')
        A(f's_branch {lp}')
        A(f'{lp}_x:')
        A('s_mov_b64 exec, -1')
        A('s_waitcnt vmcnt(0)')
        self.seg_begin('e')
        self.stamp(8, (True,))
        A('v_readlane_b32 s14, v16, 0')
        A('v_readlane_b32 s72, v16, 16')
        A('v_readlane_b32 s73, v17, 16')
        A('v_readlane_b32 s74, v18, 16')
        A('v_readlane_b32 s75, v19, 16')
        A('v_subrev_f32 v20, s14, v16')
        A('v_mul_f32 v21, 0x42000000, v20')
        A('v_fma_f32 v22, 2.0, v17, v21')
        A('v_fmac_f32 v18, v20, v22')
        A('v_add_f32 v17, v17, v21')
        A('s_bitcmp1_b32 s2, 0')
        A('s_cselect_b32 s72, s74, s72')
        A('s_cselect_b32 s73, s75, s73')
        self.dpp('v_add_f32', [18, 17], 'quad_perm:[1,0,3,2]')
        self.dpp('v_add_f32', [18, 17], 'quad_perm:[2,3,0,1]')
        self.dpp('v_add_f32', [18, 17], 'row_half_mirror')
        self.dpp('v_add_f32', [18, 17], 'row_mirror')
        A('v_mov_b32 v24, s72')
        A('v_mov_b32 v25, s73')
        A('v_readlane_b32 s76, v17, 0')
        A('v_readlane_b32 s77, v18, 0')
        inv = f2u(1.0 / 512)
        A(f'v_mov_b32 v48, {inv:#x}')
        self.nop(1)
        A('v_mul_f32 v49, s77, v48')
        A('v_mul_f32 v48, s76, v48')
        A('v_fma_f32 v49, -v48, v48, v49')
        A('v_max_f32 v49, 0, v49')
        A('v_add_f32 v48, s14, v48')
        mean, var = 48, 49
        self.ln_finish(mean, var, 12, 13, 14)
        self.ln_apply([24, 25], [36, 37], 12, 13, 14)
        A(f'v_sub_f32 v{mean}, v{mean}, v12')
        A(f'v_mul_f32 v{var}, v{var}, v13')
        A(f'v_mul_f32 v{mean}, v{mean}, v13')
        A(f'v_mul_f32 v{var}, v{var}, v13')
        self.ln_finish(mean, var, 12, 13, 14)
        self.ln_apply([36, 37], [36, 37], 12, 13, 14)
        A(f'ds_write_b64 v{vHo}, v[36:37]')
        A('s_waitcnt lgkmcnt(0)')
        self.seg_end('e')

    def final(self):
        A = self.A
        o = self.o
        B2R, vHo = 110, 149
        A('s_setprio 0')
        A('s_barrier')
        self.seg_begin('f')
        A(f'ds_read_b64 v[36:37], v{vHo}')
        A('s_waitcnt lgkmcnt(0)')
        self.stamp(9, (True,))
        YA = [30, 31]
        ch = [(d, p) for d in range(2) for p in range(2)]
        U = {c: 40 + 6 * n for n, c in enumerate(ch)}

        def each(f):
            for c in ch:
                f(c[0], c[1], U[c], U[c] + 2, U[c] + 4)
        each(lambda d, p, u, t, z: A(f'v_pk_mul_f32 v[{u}:{u+1}], v[{W1F+2*p}:{W1F+2*p+1}], v[36:37] op_sel:[0,{d}] op_sel_hi:[1,{d}]'))
        each(lambda d, p, u, t, z: self.rnd_bf16_pair(u, u + 1, t))
        each(lambda d, p, u, t, z: A(f'v_pk_add_f32 v[{u}:{u+1}], v[{u}:{u+1}], v[{B1F+2*p}:{B1F+2*p+1}]'))
        each(lambda d, p, u, t, z: self.rnd_bf16_pair(u, u + 1, t))
        each(lambda d, p, u, t, z: A(f'v_pk_mul_f32 v[{t}:{t+1}], v[{u}:{u+1}], v[{u}:{u+1}]'))
        each(lambda d, p, u, t, z: A(f'v_pk_fma_f32 v[{t}:{t+1}], v[{t}:{t+1}], v[{GK1}:{GK1+1}], v[{GK0}:{GK0+1}]'))
        each(lambda d, p, u, t, z: A(f'v_pk_mul_f32 v[{z}:{z+1}], v[{t}:{t+1}], v[{u}:{u+1}]'))
        each(lambda d, p, u, t, z: (A(f'v_exp_f32 v{z}, v{z}'), A(f'v_exp_f32 v{z+1}, v{z+1}')))
        each(lambda d, p, u, t, z: A(f'v_pk_add_f32 v[{z}:{z+1}], v[{z}:{z+1}], v[{GONE}:{GONE+1}]'))
        each(lambda d, p, u, t, z: (A(f'v_rcp_f32 v{z}, v{z}'), A(f'v_rcp_f32 v{z+1}, v{z+1}')))
        each(lambda d, p, u, t, z: A(f'v_pk_mul_f32 v[{u}:{u+1}], v[{u}:{u+1}], v[{z}:{z+1}]'))
        each(lambda d, p, u, t, z: A(f'v_cvt_pk_bf16_f32 v{u}, v{u}, v{u+1}'))
        for d in range(2):
            A(f'v_dot2_f32_bf16 v{YA[d]}, v{U[(d,0)]}, v{W2R}, 0')
        for d in range(2):
            A(f'v_dot2_f32_bf16 v{YA[d]}, v{U[(d,1)]}, v{W2R+1}, v{YA[d]}')
        self.nop(2)
        self.wave_sum_to_sgpr(YA, [76, 77])
        A('v_mov_b32 v16, s76')
        A('v_mov_b32 v17, s77')
        A('s_lshl_b32 s14, s30, 3')
        A(f's_add_u32 s14, s14, {LDS_Y}')
        A('v_mov_b32 v18, s14')
        A('ds_write_b64 v18, v[16:17]')
        A('s_waitcnt lgkmcnt(0)')
        self.seg_end('f')
        A('s_barrier')
        A('s_cmp_lg_u32 s30, 4')
        lend = self.label('hend')
        A(f's_cbranch_scc1 {lend}')
        self.seg_begin('g')
        A(f'v_mov_b32 v12, {LDS_Y}')
        for k in range(4):
            A(f'ds_read_b128 v[{40+4*k}:{43+4*k}], v12 offset:{16*k}')
        A('s_waitcnt lgkmcnt(0)')
        for k in range(4):
            A(f'v_pk_add_f32 v[{40+4*k}:{41+4*k}], v[{40+4*k}:{41+4*k}], v[{42+4*k}:{43+4*k}]')
        A('v_pk_add_f32 v[40:41], v[40:41], v[44:45]')
        A('v_pk_add_f32 v[48:49], v[48:49], v[52:53]')
        A('v_pk_add_f32 v[16:17], v[40:41], v[48:49]')
        self.rnd_bf16_pair(16, 17, 20)
        A(f'v_add_f32 v16, v16, v{B2R}')
        A(f'v_add_f32 v17, v17, v{B2R}')
        self.rnd_bf16_pair(16, 17, 20)
        A('v_pk_add_f32 v[16:17], v[16:17], v[24:25]')
        A('v_cvt_pk_bf16_f32 v16, v16, v17')
        A('s_lshl_b32 s14, s2, 2')
        A('v_mov_b32 v18, 0')
        self.seg_end('g')
        A('s_mov_b64 exec, 1')
        A(f'buffer_store_dword v16, v18, s[{OUT}:{OUT+3}], s14 offen')
        A('s_cmp_lg_u32 s2, 0')
        A(f's_cbranch_scc1 {lend}')
        A('v_mov_b32 v20, s96')
        A('v_mov_b32 v21, s97')
        A(f's_mov_b32 s14, {WS_E:#x}')
        A(f'buffer_store_dwordx2 v[20:21], v18, s[{WS}:{WS+3}], s14 offen sc1')
        A(f'{lend}:')
        self.stamp(10)
        self.write_stamps(11)


if __name__ == '__main__':
    out = sys.argv[1]
    kw = json.loads(sys.argv[2]) if len(sys.argv) > 2 else {}
    open(out, 'w').write(Gen(**kw).build())
```

```python
import sys, json, struct

KN = 'sequential_preLN__gqa_block_cached__mixer_token_mlp__decode'
HEADER = open('cdna_kernels/' + KN + '.s.ref').read().split('; Override launch')[0]


def f2u(x):
    return struct.unpack('<I', struct.pack('<f', x))[0]


LOG2E = 1.4426950408889634
SCALE = 128 ** -0.5
GC0 = -2.0 * (2.0 / 3.141592653589793) ** 0.5 * LOG2E
GC1 = GC0 * 0.044715

WS_QP = 0x0
WS_E = 0x40000
WS_F = 0x41000
WS_P1 = 0x42000
WS_P2 = 0x110000
WS_HV = 0x120000
HVS = 2048 + 256 + 128
WS_CNT = 0x128000
WS_QL = 0x140000
WS_SIZE = 0x20000000
STAMP_OFF = 0x10000000
TAGC = 0x9E3779B97F4A7C15
NPART = 6
LDS_Q = 0
LDS_O = 1024
LDS_ML = LDS_O + NPART * 2048
LDS_W = LDS_ML + 256
LDS_H = LDS_W + 1024
LDS_Y = LDS_H + 2048
LDS_F = LDS_Y + 64
LDS_TOTAL = LDS_F + 16

X, WQ, WS, WO, W1, B1, W2, B2, OUT = 36, 40, 44, 48, 52, 56, 60, 64, 68
W1F, B1F, W2R, RAW, GK0, GK1, GONE = 224, 228, 232, 234, 238, 240, 242


class Gen:
    def __init__(self, **kw):
        self.L = []
        self.o = dict(ring=12, pre=2, pre0=2, stamps=False, nt='nt', headmap='mod', pollsleep=8, spin=200000,
                      tc=8, sleep_many=1, sleep_few=0, cprio=2, sleep2b=0, sleep_most=32, ts=28, stageA=16, warm=False, fast=True, qlocal=False, nred=3, dist=12)
        self.o.update(kw)
        self.lab = 0
        self.role = 'S'

    def A(self, s):
        self.L.append(s)

    def nop(self, n):
        if n > 0:
            self.A(f's_nop {n-1}')

    def label(self, base):
        self.lab += 1
        return f'L_{base}_{self.lab}'

    def srd(self, r, ptr, size):
        A = self.A
        A(f's_mov_b32 s{r}, s{ptr}')
        A(f's_and_b32 s{r+1}, s{ptr+1}, 0xffff')
        A(f's_mov_b32 s{r+2}, {size:#x}')
        A(f's_mov_b32 s{r+3}, 0x20000')

    def sreg(self, idx):
        return 80 + 2 * idx if idx < 8 else [98, 100, 22][idx - 8]

    def stamp(self, idx, sets=None):
        st = self.o['stamps']
        if not st:
            return
        if sets is not None and st not in sets:
            return
        r = self.sreg(idx)
        self.A(f's_memrealtime s[{r}:{r+1}]')

    def dpp(self, op, regs, ctrl, rm='0xf'):
        n = len(regs)
        if n < 3:
            self.nop(3 - n)
        for r in regs:
            self.A(f'{op}_dpp v{r}, v{r}, v{r} {ctrl} row_mask:{rm} bank_mask:0xf')

    def swap_red(self, op, regs, tmps, width):
        A = self.A
        for r, t in zip(regs, tmps):
            A(f'v_mov_b32 v{t}, v{r}')
        self.nop(2)
        for r, t in zip(regs, tmps):
            A(f'v_permlane{width}_swap_b32 v{r}, v{t}')
        if len(regs) < 3:
            self.nop(2)
        for r, t in zip(regs, tmps):
            A(f'{op} v{r}, v{r}, v{t}')

    def wave_sum_to_sgpr(self, regs, sregs):
        A = self.A
        self.dpp('v_add_f32', regs, 'quad_perm:[1,0,3,2]')
        self.dpp('v_add_f32', regs, 'quad_perm:[2,3,0,1]')
        self.dpp('v_add_f32', regs, 'row_half_mirror')
        self.dpp('v_add_f32', regs, 'row_mirror')
        self.dpp('v_add_f32', regs, 'row_bcast:15', '0xa')
        self.dpp('v_add_f32', regs, 'row_bcast:31', '0xc')
        self.nop(1)
        for r, s in zip(regs, sregs):
            A(f'v_readlane_b32 s{s}, v{r}, 63')
        self.nop(2)

    def rnd_bf16(self, dst, src):
        self.A(f'v_cvt_pk_bf16_f32 v{dst}, v{src}, v{src}')
        self.A(f'v_lshlrev_b32 v{dst}, 16, v{dst}')

    def rnd_bf16_pair(self, a, b, t):
        self.A(f'v_cvt_pk_bf16_f32 v{t}, v{a}, v{b}')
        self.A(f'v_lshlrev_b32 v{a}, 16, v{t}')
        self.A(f'v_and_b32 v{b}, 0xffff0000, v{t}')

    def ln_moments(self, vals, piv, t, s_a, s_b):
        A = self.A
        d = t[:8]
        s1, s2 = t[8], t[9]
        for k in range(0, 8, 2):
            A(f'v_pk_add_f32 v[{d[k]}:{d[k+1]}], v[{vals[k]}:{vals[k+1]}], v[{piv}:{piv+1}] neg_lo:[0,1] neg_hi:[0,1]')
        A(f'v_pk_mul_f32 v[{s1}:{s2}], v[{d[0]}:{d[1]}], v[{d[0]}:{d[1]}]')
        for k in range(2, 8, 2):
            A(f'v_pk_fma_f32 v[{s1}:{s2}], v[{d[k]}:{d[k+1]}], v[{d[k]}:{d[k+1]}], v[{s1}:{s2}]')
        A(f'v_pk_add_f32 v[{d[0]}:{d[1]}], v[{d[0]}:{d[1]}], v[{d[2]}:{d[3]}]')
        A(f'v_pk_add_f32 v[{d[4]}:{d[5]}], v[{d[4]}:{d[5]}], v[{d[6]}:{d[7]}]')
        A(f'v_add_f32 v{s2}, v{s1}, v{s2}')
        A(f'v_pk_add_f32 v[{d[0]}:{d[1]}], v[{d[0]}:{d[1]}], v[{d[4]}:{d[5]}]')
        A(f'v_add_f32 v{s1}, v{d[0]}, v{d[1]}')
        self.wave_sum_to_sgpr([s2, s1], [s_b, s_a])
        inv = f2u(1.0 / 512)
        A(f'v_mov_b32 v{s1}, {inv:#x}')
        A(f'v_mul_f32 v{s2}, s{s_b}, v{s1}')
        A(f'v_mul_f32 v{s1}, s{s_a}, v{s1}')
        A(f'v_fma_f32 v{s2}, -v{s1}, v{s1}, v{s2}')
        A(f'v_max_f32 v{s2}, 0, v{s2}')
        A(f'v_add_f32 v{s1}, v{s1}, v{piv}')

    def ln_finish(self, mean, var, vm, vr, t):
        A = self.A
        A(f'v_cvt_pk_bf16_f32 v{t}, v{mean}, v{var}')
        A(f'v_lshlrev_b32 v{vm}, 16, v{t}')
        A(f'v_and_b32 v{vr}, 0xffff0000, v{t}')
        A(f'v_add_f32 v{vr}, {f2u(1e-5):#x}, v{vr}')
        self.rnd_bf16(vr, vr)
        A(f'v_sqrt_f32 v{vr}, v{vr}')
        self.nop(1)
        self.rnd_bf16(vr, vr)
        A(f'v_rcp_f32 v{vr}, v{vr}')
        self.nop(1)

    def ln_apply(self, vals, outs, vm, vr, t):
        A = self.A
        for k in range(0, len(vals), 2):
            a, b = outs[k], outs[k + 1]
            A(f'v_sub_f32 v{a}, v{vals[k]}, v{vm}')
            A(f'v_sub_f32 v{b}, v{vals[k+1]}, v{vm}')
            self.rnd_bf16_pair(a, b, t)
            A(f'v_mul_f32 v{a}, v{a}, v{vr}')
            A(f'v_mul_f32 v{b}, v{b}, v{vr}')
            self.rnd_bf16_pair(a, b, t)

    def lds_wait(self, vaddr, off, vt=11, st=15):
        A = self.A
        lp = self.label('ldsw')
        A(f's_mov_b32 s{st}, {self.o["spin"]*20}')
        A(f'{lp}:')
        A(f'ds_read_b32 v{vt}, v{vaddr} offset:{off}')
        A(f's_sub_u32 s{st}, s{st}, 1')
        A(f's_cmp_eq_u32 s{st}, 0')
        A(f's_cbranch_scc1 {lp}_x')
        A('s_waitcnt lgkmcnt(0)')
        A(f'v_cmp_eq_u32 vcc, 0, v{vt}')
        A(f's_cbranch_vccz {lp}_x')
        A('s_sleep 1')
        A(f's_branch {lp}')
        A(f'{lp}_x:')
        A('s_waitcnt lgkmcnt(0)')

    def seg_begin(self, name):
        self.A(f'L_seg_{name}:')

    def seg_end(self, name):
        if self.o['warm']:
            self.A(f's_cbranch_execz L_ret_{name}')

    def warm_pass(self, names):
        if not self.o['warm']:
            return
        A = self.A
        A('s_mov_b64 exec, 0')
        for n in names:
            A(f's_branch L_seg_{n}')
            A(f'L_ret_{n}:')
        A('s_mov_b64 exec, -1')

    def head_to_rows(self, dst, src):
        for r in range(4):
            self.A(f'v_mov_b32_dpp v{dst}, v{src} row_newbcast:{4*r} row_mask:{1 << r:#x} bank_mask:0xf')

    def canon(self, regs):
        for r in regs:
            self.A(f'v_min_u32 v{r}, 0xfffffffe, v{r}')

    def sel_masks(self, m0, m1):
        A = self.A
        A('v_and_b32 v4, 1, v0')
        A('v_lshlrev_b32 v4, 4, v4')
        A('v_mov_b32 v5, 0xffff')
        A('v_lshlrev_b32 v5, v4, v5')
        A('v_and_b32 v4, 2, v0')
        A('v_cmp_eq_u32 vcc, 0, v4')
        A('v_mov_b32 v6, 0')
        A('s_nop 0')
        A(f'v_cndmask_b32 v{m0}, v6, v5, vcc')
        A(f'v_cndmask_b32 v{m1}, v5, v6, vcc')

    def build(self):
        A = self.A
        o = self.o
        A(HEADER.rstrip('\n'))
        A(f'; @launch grid=(256,1,1) block=(512,1,1) lds={LDS_TOTAL}')
        A('.amdgcn_target "amdgcn-amd-amdhsa--gfx950"')
        A('.text')
        A(f'.globl {KN}_kernel')
        A('.p2align 8')
        A(f'.type {KN}_kernel,@function')
        A(f'{KN}_kernel:')
        A('s_cmp_ge_u32 s2, 256')
        A('s_cbranch_scc1 L_end')
        A('s_load_dwordx16 s[4:19], s[0:1], 0')
        A('s_load_dwordx8 s[20:27], s[0:1], 64')
        A('s_load_dwordx2 s[28:29], s[0:1], 96')
        self.stamp(0)
        A('v_lshrrev_b32 v1, 6, v0')
        A('v_and_b32 v0, 63, v0')
        A('v_readfirstlane_b32 s30, v1')
        if o['headmap'] == 'mod':
            A('s_and_b32 s31, s2, 7')
            A('s_lshr_b32 s32, s2, 3')
        elif o['headmap'] == 'rot':
            A('s_lshr_b32 s32, s2, 3')
            A('s_add_u32 s31, s2, s32')
            A('s_and_b32 s31, s31, 7')
        elif o['headmap'] == 'x4':
            A('s_lshr_b32 s31, s2, 3')
            A('s_lshr_b32 s32, s31, 3')
            A('s_and_b32 s31, s31, 7')
            A('s_and_b32 s3, s2, 7')
            A('s_lshl_b32 s3, s3, 2')
            A('s_add_u32 s32, s32, s3')
        elif o['headmap'] == 'div':
            A('s_lshr_b32 s31, s2, 5')
            A('s_and_b32 s32, s2, 31')
        else:
            m = int(o['headmap'])
            A(f's_and_b32 s31, s2, {7 & ~(m-1)}')
            A('s_lshr_b32 s32, s2, 3')
            A(f's_and_b32 s3, s32, {m-1}')
            A('s_or_b32 s31, s31, s3')
            A(f's_and_b32 s32, s32, {31 & ~(m-1)}')
            A(f's_and_b32 s3, s2, {m-1}')
            A('s_or_b32 s32, s32, s3')
        A('s_lshl_b32 s3, s31, 5')
        A('s_add_u32 s3, s3, s32')
        A('s_sub_u32 s33, s30, 4')
        A('s_lshr_b32 s34, s32, 3')
        A('s_and_b32 s35, s32, 7')
        A('s_cmp_lt_u32 s33, 2')
        A('s_cbranch_scc1 L_hq')
        A('s_cmp_ge_u32 s30, 4')
        A('s_cbranch_scc1 L_cover')
        TC = o['tc']
        TS = o['ts']
        o['pool'] = 128 - 4 * TS - 2 * TC
        assert TC % 2 == 0 and o['pool'] % 4 == 0 and (o['pool'] == 0 or o['pool'] >= 12) and TS >= TC
        self.streamer(TS, TC, False)
        A('s_waitcnt lgkmcnt(0)')
        A('s_barrier')
        self.srd(W1, 16, 3584)
        self.srd(B1, 18, 3584)
        self.srd(W2, 20, 3584)
        self.mlp_weights_load()
        self.srd(WS, 28, WS_SIZE)
        self.srd(OUT, 24, 1024)
        A('s_barrier')
        A('s_waitcnt vmcnt(0)')
        A(f'v_mov_b32 v149, {LDS_H}')
        self.mlp_weights_prep()
        A('s_branch L_b4')
        A('L_cover:')
        self.streamer(TC, TC, True)
        self.srd(X, 4, 1024)
        self.srd(WS, 28, WS_SIZE)
        A('s_branch L_pref')
        A('L_hq:')
        self.helper_q()
        A('L_pref:')
        self.helper_tail()
        A('L_b4:')
        self.final()
        A('L_end:')
        A('s_endpgm')
        A('.section .rodata,"a"')
        A('.p2align 6')
        A(f'.amdhsa_kernel {KN}_kernel')
        A('  .amdhsa_next_free_vgpr 256')
        A('  .amdhsa_next_free_sgpr 102')
        A('  .amdhsa_accum_offset 256')
        A('  .amdhsa_group_segment_fixed_size 0')
        A('  .amdhsa_kernarg_size 104')
        A('  .amdhsa_user_sgpr_count 2')
        A('  .amdhsa_user_sgpr_kernarg_segment_ptr 1')
        A('  .amdhsa_system_sgpr_workgroup_id_x 1')
        A('  .amdhsa_float_denorm_mode_32 3')
        A('.end_amdhsa_kernel')
        return '\n'.join(self.L) + '\n'

    def write_stamps(self, n):
        if not self.o['stamps']:
            return
        A = self.A
        if self.o.get('dbgstamps'):
            A('s_waitcnt lgkmcnt(0)')
            A('s_mov_b64 exec, 1')
            self.srd(76, 26, 256)
            A('v_mov_b32 v1, 0')
            def amax(sreg, off, inv):
                A(f'v_mov_b32 v2, s{sreg}')
                if inv: A('v_not_b32 v2, v2')
                A(f'buffer_atomic_umax v2, v1, s[76:79], 0 offen offset:{off} sc1')
                A('s_nop 1')
            amax(self.sreg(10), 0, False)
            amax(self.sreg(0), 4, True)
            A('s_cmp_ge_u32 s30, 4')
            A('s_cbranch_scc1 L_dbg_x')
            amax(self.sreg(4), 8, False)
            amax(self.sreg(4), 12, True)
            amax(self.sreg(2), 16, False)
            amax(self.sreg(3), 20, False)
            amax(self.sreg(3), 24, True)
            A('L_dbg_x:')
            A('s_waitcnt vmcnt(0)')
            return
        A('s_waitcnt lgkmcnt(0)')
        A('s_mov_b64 exec, 1')
        A('s_lshl_b32 s33, s2, 3')
        A('s_add_u32 s33, s33, s30')
        A('s_lshl_b32 s33, s33, 7')
        A(f's_add_u32 s33, s33, {STAMP_OFF:#x}')
        self.srd(76, 28, WS_SIZE)
        A('v_mov_b32 v1, 0')
        for k in range(n):
            A(f'v_mov_b32 v2, s{self.sreg(k)}')
            A(f'v_mov_b32 v3, s{self.sreg(k)+1}')
            A(f'buffer_store_dwordx2 v[2:3], v1, s[76:79], s33 offen offset:{8*k}')
            A('s_nop 1')
        A('s_waitcnt vmcnt(0)')

    def mlp_weights_load(self):
        A = self.A
        A('v_lshlrev_b32 v4, 3, v0')
        A('s_lshl_b32 s14, s30, 9')
        A(f'buffer_load_dwordx2 v[{RAW}:{RAW+1}], v4, s[{W1}:{W1+3}], s14 offen')
        A(f'buffer_load_dwordx2 v[{RAW+2}:{RAW+3}], v4, s[{B1}:{B1+3}], s14 offen')
        A(f'buffer_load_dwordx2 v[{W2R}:{W2R+1}], v4, s[{W2}:{W2+3}], s14 offen')

    def mlp_weights_prep(self):
        A = self.A
        for k in range(2):
            A(f'v_lshlrev_b32 v{W1F+2*k}, 16, v{RAW+k}')
            A(f'v_and_b32 v{W1F+2*k+1}, 0xffff0000, v{RAW+k}')
            A(f'v_lshlrev_b32 v{B1F+2*k}, 16, v{RAW+2+k}')
            A(f'v_and_b32 v{B1F+2*k+1}, 0xffff0000, v{RAW+2+k}')
            A(f'v_mov_b32 v{GK0+k}, {f2u(GC0):#x}')
            A(f'v_mov_b32 v{GK1+k}, {f2u(GC1):#x}')
            A(f'v_mov_b32 v{GONE+k}, 1.0')

    def streamer(self, T, TC, cover):
        A = self.A
        o = self.o
        R = min(o['ring'], 2 * T)
        nt = o['nt']
        N = 2 * T
        RB = 64
        assert RB + 16 * R <= 256
        vK, vV = 1, 2
        Q = 4
        C = [20, 24]
        G = 28
        S2 = 30
        vmax, vl, vnm = 46, 47, 3
        ACC = 48
        D = 56
        M0, M1 = 60, 61
        TA = [30, 32, 34, 36]
        U = [28, 29, 62, 63]
        KT = [56, 57, 58, 59, 62, 63]
        stp = None if not cover else ()

        def tile_of(t):
            return 6 * t if t < TC else 6 * TC + 4 * (t - TC)

        A('v_and_b32 v4, 3, v0')
        A('v_lshlrev_b32 v4, 10, v4')
        A('v_bfe_u32 v5, v0, 2, 2')
        A('v_lshlrev_b32 v5, 8, v5')
        A('v_lshrrev_b32 v6, 4, v0')
        A('v_lshlrev_b32 v6, 4, v6')
        A(f'v_add3_u32 v{vK}, v4, v5, v6')
        A(f'v_lshlrev_b32 v{vV}, 4, v0')
        A('s_lshl_b32 s44, s31, 24')
        A('s_lshl_b32 s45, s32, 19')
        A('s_add_u32 s44, s44, s45')
        if cover:
            A(f's_setprio {o["cprio"]}')
            A('s_sub_u32 s46, s30, 2')
        else:
            A('s_mov_b32 s46, s30')
        A('s_lshl_b32 s45, s46, 12')
        A('s_add_u32 s44, s44, s45')
        A('s_waitcnt lgkmcnt(0)')
        self.srd(36, 6, 0x8000000)
        self.srd(40, 8, 0x8000000)

        seq = []
        prep_after = set()
        for g0 in range(0, T + 4, 4):
            for j in range(4):
                if g0 + j < T: seq.append(('k', g0 + j))
                if 0 <= g0 - 4 + j < T: seq.append(('v', g0 - 4 + j))
            if g0 < T: prep_after.add(len(seq) - 1)
        assert len(seq) == N

        def issue(n):
            r = RB + (n % R) * 16
            kind, t = seq[n]
            A(f's_add_u32 s45, s44, {tile_of(t)*4096:#x}')
            for j in range(4):
                if kind == 'k':
                    A(f'buffer_load_dwordx4 v[{r+4*j}:{r+4*j+3}], v{vK}, s[36:39], s45 offen offset:{64*j} {nt}')
                else:
                    A(f'buffer_load_dwordx4 v[{r+4*j}:{r+4*j+3}], v{vV}, s[40:43], s45 offen offset:{1024*j} {nt}')

        pre0, pre = o['pre0'], o['pre']
        self.stamp(6, ('q',))
        for n in range(pre0):
            issue(n)
        self.stamp(7, ('q',))
        A('s_barrier')
        self.stamp(8, ('q',))
        for n in range(pre0, pre):
            issue(n)
        A('s_mov_b32 s48, 0x11111111'); A('s_mov_b32 s49, 0x11111111')
        A('s_mov_b32 s50, 0x22222222'); A('s_mov_b32 s51, 0x22222222')
        A('s_mov_b32 s52, 0x44444444'); A('s_mov_b32 s53, 0x44444444')
        A('s_mov_b32 s54, 0x88888888'); A('s_mov_b32 s55, 0x88888888')
        A(f's_mov_b32 s56, {f2u(SCALE):#x}')
        A(f's_mov_b32 s57, {f2u(LOG2E):#x}')
        self.sel_masks(M0, M1)
        A(f'v_mov_b32 v{vmax}, 0xff800000')
        A(f'v_mov_b32 v{vl}, 0')
        for k in range(8):
            A(f'v_mov_b32 v{ACC+k}, 0')
        A('v_bfe_u32 v62, v0, 2, 2')
        A('v_lshlrev_b32 v62, 8, v62')
        A('v_lshrrev_b32 v63, 4, v0')
        A('v_lshl_add_u32 v62, v63, 4, v62')
        for n in range(pre, R):
            A(f's_waitcnt vmcnt({4*(pre-1)})')
            if n == pre: self.stamp(9, ('q',))
            issue(n)
        self.stamp(1)
        A('s_barrier')
        for j in range(4):
            A(f'ds_read_b128 v[{Q+4*j}:{Q+4*j+3}], v62 offset:{LDS_Q + 64*j}')
        self.stamp(2)
        A('s_waitcnt lgkmcnt(0)')

        def kpost(t):
            c = C[t & 1]
            tt = t & 3
            part = (t // 4) * 4 + 4 > T
            if tt == 0 and not part:
                A(f'v_cvt_pk_bf16_f32 v{G}, v{c}, v{c+1}')
                A(f'v_cvt_pk_bf16_f32 v{G+1}, v{c+2}, v{c+3}')
            else:
                if tt == 0:
                    A(f'v_mov_b32 v{G}, 0xff80ff80')
                    A(f'v_mov_b32 v{G+1}, 0xff80ff80')
                A(f'v_cvt_pk_bf16_f32 v{KT[4]}, v{c}, v{c+1}')
                A(f'v_cvt_pk_bf16_f32 v{KT[5]}, v{c+2}, v{c+3}')
                sm = 48 + 2 * tt
                A(f'v_cndmask_b32 v{G}, v{G}, v{KT[4]}, s[{sm}:{sm+1}]')
                A(f'v_cndmask_b32 v{G+1}, v{G+1}, v{KT[5]}, s[{sm}:{sm+1}]')

        upto = [R - 1]
        extra = [0]

        def wait_for(n):
            A(f's_waitcnt vmcnt({4*(upto[0]-n) + extra[0]})')

        def finish_l():
            self.dpp('v_add_f32', [vl], 'quad_perm:[1,0,3,2]')
            self.dpp('v_add_f32', [vl], 'quad_perm:[2,3,0,1]')
            self.swap_red('v_add_f32', [vl], [62], 16)
            self.swap_red('v_add_f32', [vl], [62], 32)
            A('s_lshl_b32 s45, s46, 11')
            A(f's_add_u32 s45, s45, {LDS_O}')
            A('v_lshlrev_b32 v28, 5, v0')
            A('v_add_u32 v28, s45, v28')
            A('s_lshl_b32 s45, s46, 5')
            A(f's_add_u32 s45, s45, {LDS_ML}')
            A('v_bfe_u32 v29, v0, 2, 2')
            A('v_lshlrev_b32 v29, 3, v29')
            A('v_add_u32 v29, s45, v29')
            A(f'ds_write_b64 v29, v[{vmax}:{vl}]')

        pool = (not cover) and o['pool'] > 0
        PBASE = 128 - o['pool']
        PQ = o['pool'] // 4 - 2
        NPOOL = 32 * PQ
        if pool:
            busy = {(N - 1 - k) % R for k in range(5)}
            free = [x for x in range(R) if x not in busy]
            PS = [(RB + 16 * free[2 * k], RB + 16 * free[2 * k + 1]) for k in range(3)]
        AI = [26, 27]
        vZ = 25

        def atomic(k):
            A('s_mov_b64 exec, 1')
            A(f'v_mov_b32 v{AI[k & 1]}, 1')
            A(f'buffer_atomic_add v{AI[k & 1]}, v{vZ}, s[60:63], s58 offen sc0 sc1')
            A('s_mov_b64 exec, -1')

        def pool_loads(k):
            kr, vr = PS[k % 3]
            for j in range(4):
                A(f'buffer_load_dwordx4 v[{kr+4*j}:{kr+4*j+3}], v{vK}, s[36:39], s45 offen offset:{64*j} {nt}')
            for j in range(4):
                A(f'buffer_load_dwordx4 v[{vr+4*j}:{vr+4*j+3}], v{vV}, s[40:43], s45 offen offset:{1024*j} {nt}')

        def pool_issue(k):
            A(f'v_readfirstlane_b32 s45, v{AI[k & 1]}')
            A(f's_cmp_lt_u32 s45, {NPOOL}')
            A('s_cselect_b32 s59, s59, 0')
            A(f's_mov_b32 s{64 + k % 3}, s59')
            if PQ & (PQ - 1) == 0:
                A(f's_lshr_b32 s47, s45, {PQ.bit_length() - 1}')
                A(f's_and_b32 s45, s45, {PQ - 1}')
            else:
                A(f's_mul_hi_u32 s47, s45, {(1 << 32) // PQ + 1:#x}')
                A(f's_mul_i32 s48, s47, {PQ}')
                A('s_sub_u32 s45, s45, s48')
            A('s_lshl_b32 s47, s47, 19')
            A('s_lshl_b32 s45, s45, 14')
            A('s_add_u32 s45, s45, s47')
            A('s_add_u32 s45, s45, s67')
            A('s_cmp_lg_u32 s59, 0')
            A('s_cselect_b32 s45, s45, 0x10000000')
            A('s_cselect_b32 s58, s58, 0x30000000')
            atomic(k + 1)
            pool_loads(k)

        def pool_prologue(rem):
            if rem == 3:
                self.srd(60, 28, WS_SIZE)
                A('s_lshl_b32 s58, s31, 2')
                A('s_add_u32 s58, s58, s30')
                A('s_lshl_b32 s58, s58, 8')
                A(f's_add_u32 s58, s58, {WS_CNT:#x}')
                A('s_lshl_b32 s67, s31, 24')
                A('s_lshl_b32 s45, s30, 12')
                A('s_add_u32 s67, s67, s45')
                A(f's_add_u32 s67, s67, {(PBASE + 8) * 4096:#x}')
                A('s_mov_b32 s59, 1')
                A('s_mov_b32 s64, 1')
                A('s_mov_b32 s65, 1')
                A(f'v_mov_b32 v{vZ}, 0')
                A(f's_add_u32 s45, s44, {PBASE * 4096:#x}')
                pool_loads(0)
                extra[0] += 8
            elif rem == 1:
                A(f'v_mov_b32 v24, {LDS_F}')
                self.lds_wait(24, 4, vt=23, st=45)
                atomic(2)
                A(f's_add_u32 s45, s44, {(PBASE + 4) * 4096:#x}')
                pool_loads(1)
                extra[0] += 9

        def pool_loop():
            PC = 20
            PU = [38, 39, 40, 41]
            lp = self.label('pool')
            A(f'{lp}:')
            for u in range(6):
                kr, vr = PS[u % 3]
                A('s_waitcnt vmcnt(8)')
                A(f's_cmp_eq_u32 s{64 + u % 3}, 0')
                A(f's_cbranch_scc1 {lp}_x')
                for j in range(4):
                    cc = '0' if j == 0 else f'v[{PC}:{PC+3}]'
                    A(f'v_mfma_f32_16x16x32_bf16 v[{PC}:{PC+3}], v[{kr+4*j}:{kr+4*j+3}], v[{Q+4*j}:{Q+4*j+3}], {cc}')
                pool_issue(u + 2)
                A(f'v_cvt_pk_bf16_f32 v{PU[0]}, v{PC}, v{PC+1}')
                A(f'v_cvt_pk_bf16_f32 v{PU[2]}, v{PC+2}, v{PC+3}')
                A(f'v_and_b32 v{PU[1]}, 0xffff0000, v{PU[0]}')
                A(f'v_lshlrev_b32 v{PU[0]}, 16, v{PU[0]}')
                A(f'v_and_b32 v{PU[3]}, 0xffff0000, v{PU[2]}')
                A(f'v_lshlrev_b32 v{PU[2]}, 16, v{PU[2]}')
                for k in range(4):
                    A(f'v_mul_f32 v{PU[k]}, s56, v{PU[k]}')
                self.rnd_bf16_pair(PU[0], PU[1], PC)
                self.rnd_bf16_pair(PU[2], PU[3], PC + 1)
                A(f'v_max3_f32 v{PC}, v{PU[0]}, v{PU[1]}, v{PU[2]}')
                A(f'v_max_f32 v{PC}, v{PC}, v{PU[3]}')
                A(f'v_cmp_gt_f32 vcc, v{PC}, v{vmax}')
                A(f's_cbranch_vccz {lp}_k{u}')
                self.swap_red('v_max_f32', [PC], [PC + 1], 16)
                self.swap_red('v_max_f32', [PC], [PC + 1], 32)
                A(f'v_max_f32 v{PC}, v{PC}, v{vmax}')
                A(f'v_sub_f32 v{PC+1}, v{vmax}, v{PC}')
                A(f'v_mul_f32 v{PC+1}, s57, v{PC+1}')
                A(f'v_exp_f32 v{PC+1}, v{PC+1}')
                A(f'v_mov_b32 v{vmax}, v{PC}')
                A(f'v_mul_f32 v{vnm}, s57, v{PC}')
                A(f'v_sub_f32 v{vnm}, 0, v{vnm}')
                A(f'v_mul_f32 v{vl}, v{vl}, v{PC+1}')
                self.head_to_rows(PC + 2, PC + 1)
                for k in range(8):
                    A(f'v_mul_f32 v{ACC+k}, v{ACC+k}, v{PC+2}')
                A(f'{lp}_k{u}:')
                for k in range(4):
                    A(f'v_fma_f32 v{PU[k]}, v{PU[k]}, s57, v{vnm}')
                for k in range(4):
                    A(f'v_exp_f32 v{PU[k]}, v{PU[k]}')
                self.nop(1)
                for k in range(4):
                    A(f'v_cvt_pk_bf16_f32 v{D+k}, v{PU[k]}, v{PU[k]}')
                for k in range(4):
                    A(f'v_and_b32 v{TA[k]}, v{D+k}, v{M0}')
                    A(f'v_and_b32 v{TA[k]+1}, v{D+k}, v{M1}')
                A(f'v_add_f32 v{PU[0]}, v{PU[0]}, v{PU[1]}')
                A(f'v_add_f32 v{PU[2]}, v{PU[2]}, v{PU[3]}')
                for k in range(4):
                    A(f'v_mfma_f32_16x16x16_bf16 v[{ACC}:{ACC+3}], v[{TA[k]}:{TA[k]+1}], v[{vr+4*k}:{vr+4*k+1}], v[{ACC}:{ACC+3}]')
                    A(f'v_mfma_f32_16x16x16_bf16 v[{ACC+4}:{ACC+7}], v[{TA[k]}:{TA[k]+1}], v[{vr+4*k+2}:{vr+4*k+3}], v[{ACC+4}:{ACC+7}]')
                A(f'v_add_f32 v{PU[0]}, v{PU[0]}, v{PU[2]}')
                A(f'v_fmac_f32 v{vl}, 0.25, v{PU[0]}')
            A(f's_branch {lp}')
            A(f'{lp}_x:')

        UU = [38, 39, 40, 41]
        X0 = 42

        def group_prep():
            lb = self.label('grp')
            A(f'v_lshlrev_b32 v{UU[0]}, 16, v{G}')
            A(f'v_and_b32 v{UU[1]}, 0xffff0000, v{G}')
            A(f'v_lshlrev_b32 v{UU[2]}, 16, v{G+1}')
            A(f'v_and_b32 v{UU[3]}, 0xffff0000, v{G+1}')
            for k in range(4):
                A(f'v_mul_f32 v{UU[k]}, s56, v{UU[k]}')
            self.rnd_bf16_pair(UU[0], UU[1], X0)
            self.rnd_bf16_pair(UU[2], UU[3], X0 + 1)
            A(f'v_max3_f32 v{X0}, v{UU[0]}, v{UU[1]}, v{UU[2]}')
            A(f'v_max_f32 v{X0}, v{X0}, v{UU[3]}')
            A(f'v_cmp_gt_f32 vcc, v{X0}, v{vmax}')
            A(f's_cbranch_vccz {lb}')
            self.dpp('v_max_f32', [X0], 'quad_perm:[1,0,3,2]')
            self.dpp('v_max_f32', [X0], 'quad_perm:[2,3,0,1]')
            self.swap_red('v_max_f32', [X0], [X0 + 1], 16)
            self.swap_red('v_max_f32', [X0], [X0 + 1], 32)
            A(f'v_max_f32 v{X0}, v{X0}, v{vmax}')
            A(f'v_sub_f32 v{X0+1}, v{vmax}, v{X0}')
            A(f'v_mul_f32 v{X0+1}, s57, v{X0+1}')
            A(f'v_exp_f32 v{X0+1}, v{X0+1}')
            A(f'v_mov_b32 v{vmax}, v{X0}')
            A(f'v_mul_f32 v{vnm}, s57, v{X0}')
            A(f'v_sub_f32 v{vnm}, 0, v{vnm}')
            A(f'v_mul_f32 v{vl}, v{vl}, v{X0+1}')
            self.head_to_rows(X0 + 2, X0 + 1)
            for k in range(8):
                A(f'v_mul_f32 v{ACC+k}, v{ACC+k}, v{X0+2}')
            A(f'{lb}:')
            for k in range(4):
                A(f'v_fma_f32 v{UU[k]}, v{UU[k]}, s57, v{vnm}')
            for k in range(4):
                A(f'v_exp_f32 v{UU[k]}, v{UU[k]}')
            self.nop(1)
            for k in range(4):
                A(f'v_cvt_pk_bf16_f32 v{D+k}, v{UU[k]}, v{UU[k]}')
            A(f'v_add_f32 v{UU[0]}, v{UU[0]}, v{UU[1]}')
            A(f'v_add_f32 v{UU[2]}, v{UU[2]}, v{UU[3]}')
            A(f'v_add_f32 v{vl}, v{vl}, v{UU[0]}')
            A(f'v_add_f32 v{vl}, v{vl}, v{UU[2]}')

        pend = None
        for n in range(N):
            kind, t = seq[n]
            r = RB + (n % R) * 16
            tt = t & 3
            if pool and n >= N - 4:
                pool_prologue(N - 1 - n)
            if kind == 'k':
                c = C[t & 1]
                wait_for(n)
                for j in range(4):
                    cc = '0' if j == 0 else f'v[{c}:{c+3}]'
                    A(f'v_mfma_f32_16x16x32_bf16 v[{c}:{c+3}], v[{r+4*j}:{r+4*j+3}], v[{Q+4*j}:{Q+4*j+3}], {cc}')
            else:
                if n == N - 1 and not pool:
                    finish_l()
                qp = f'quad_perm:[{tt},{tt},{tt},{tt}] row_mask:0xf bank_mask:0xf'
                for k in range(4):
                    A(f'v_and_b32_dpp v{TA[k]}, v{D+k}, v{M0} {qp}')
                    A(f'v_and_b32_dpp v{TA[k]+1}, v{D+k}, v{M1} {qp}')
                wait_for(n)
                self.nop(1)
                for k in range(4):
                    A(f'v_mfma_f32_16x16x16_bf16 v[{ACC}:{ACC+3}], v[{TA[k]}:{TA[k]+1}], v[{r+4*k}:{r+4*k+1}], v[{ACC}:{ACC+3}]')
                    A(f'v_mfma_f32_16x16x16_bf16 v[{ACC+4}:{ACC+7}], v[{TA[k]}:{TA[k]+1}], v[{r+4*k+2}:{r+4*k+3}], v[{ACC+4}:{ACC+7}]')
            tgt = min(n + max(min(o['dist'], R), R - (n + 1) // 2), N - 1)
            if tgt > upto[0]:
                assert tgt == upto[0] + 1
                issue(tgt)
                upto[0] = tgt
            elif kind == 'k':
                self.nop(5)
            if pend is not None:
                kpost(pend)
                pend = None
            if kind == 'k':
                pend = t
            if n in prep_after:
                if pend is not None:
                    self.nop(4)
                    kpost(pend)
                    pend = None
                group_prep()
                if n == max(prep_after):
                    self.stamp(3)
        if pool:
            self.stamp(5)
            pool_loop()
            self.seg_begin('h')
            finish_l()
        else:
            if not cover: self.seg_begin('h')
            self.nop(7)
        self.stamp(4, None if not cover else ())
        A(f'ds_write_b128 v28, v[{ACC}:{ACC+3}]')
        A(f'ds_write_b128 v28, v[{ACC+4}:{ACC+7}] offset:16')
        if not cover: self.seg_end('h')

    def helper_q(self):
        A = self.A
        o = self.o
        nt = o['nt']
        spin = o['spin']
        A('s_setprio 3')
        A('v_lshlrev_b32 v1, 4, v0')
        A('v_and_b32 v2, 15, v0')
        A('v_lshrrev_b32 v3, 4, v0')
        A('s_lshr_b32 s99, s32, 2')
        A('s_waitcnt lgkmcnt(0)')
        A(f's_load_dwordx2 s[96:97], s[28:29], {WS_E:#x}')
        A('s_mov_b32 s0, s99')
        A('s_and_b32 s1, s32, 3')
        self.srd(X, 4, 1024)
        self.srd(WQ, 10, 0x400000)
        A('s_cmp_lg_u32 s33, 0')
        A('s_cbranch_scc1 L_h_b0')
        XA, XB, XP, WQR = 8, 12, 20, 64
        A('v_lshlrev_b32 v4, 17, v3')
        A('v_lshl_add_u32 v4, v2, 4, v4')
        A('s_lshl_b32 s14, s0, 19')
        A('s_lshl_b32 s15, s31, 2')
        A('s_add_u32 s15, s15, s1')
        A('s_lshl_b32 s15, s15, 8')
        A('s_add_u32 s14, s14, s15')
        A(f'buffer_load_dwordx4 v[{XA}:{XA+3}], v1, s[{X}:{X+3}], 0 offen')
        A('v_lshlrev_b32 v6, 5, v3')
        A('s_lshl_b32 s15, s0, 7')
        A(f'buffer_load_dwordx4 v[{XB}:{XB+3}], v6, s[{X}:{X+3}], s15 offen')
        A(f'buffer_load_dwordx4 v[{XB+4}:{XB+7}], v6, s[{X}:{X+3}], s15 offen offset:16')
        A('v_mov_b32 v5, 0')
        A(f'buffer_load_dword v{XP}, v5, s[{X}:{X+3}], 0 offen')
        for k in range(16):
            A(f'buffer_load_dwordx4 v[{WQR+4*k}:{WQR+4*k+3}], v4, s[{WQ}:{WQ+3}], s14 offen {nt}')
            A('s_add_u32 s14, s14, 8192')
        A(f'v_mov_b32 v7, {LDS_F}')
        A('ds_write_b32 v7, v5')
        A('ds_write_b32 v7, v5 offset:4')
        A('s_waitcnt lgkmcnt(0)')
        A('L_h_b0:')
        self.stamp(4, ('q',))
        A('s_barrier')
        self.srd(WS, 28, WS_SIZE)
        A('s_waitcnt lgkmcnt(0)')
        A(f's_add_u32 s96, s96, {TAGC & 0xffffffff:#x}')
        A(f's_addc_u32 s97, s97, {TAGC >> 32:#x}')
        A('s_cmp_lg_u32 s33, 0')
        A('s_cbranch_scc1 L_h_qgather')
        self.sel_masks(44, 45)
        A('v_lshlrev_b32 v46, 6, v2')
        A('v_lshl_add_u32 v46, v3, 4, v46')
        A('s_lshl_b32 s6, s31, 15')
        A('s_lshl_b32 s15, s0, 12')
        A('s_add_u32 s6, s6, s15')
        A('s_lshl_b32 s15, s1, 10')
        A('s_add_u32 s6, s6, s15')
        A('v_and_b32 v5, 1, v3')
        A('v_cmp_eq_u32 s[72:73], 1, v5')
        A('v_cmp_lt_u32 s[74:75], 1, v3')
        A('v_mov_b32 v26, s96')
        A('v_mov_b32 v27, s97')
        A('s_waitcnt vmcnt(16)')
        self.stamp(6, ('q',))
        V8 = list(range(28, 36))
        for k in range(4):
            A(f'v_lshlrev_b32 v{V8[2*k]}, 16, v{XA+k}')
            A(f'v_and_b32 v{V8[2*k+1]}, 0xffff0000, v{XA+k}')
        A(f'v_lshlrev_b32 v{XP}, 16, v{XP}')
        A(f'v_mov_b32 v{XP+1}, v{XP}')
        TT = list(range(48, 58))
        self.ln_moments(V8, XP, TT, 76, 77)
        self.ln_finish(TT[8], TT[9], 22, 23, 24)
        self.stamp(7, ('q',))
        V16 = list(range(28, 44))
        for k in range(8):
            A(f'v_lshlrev_b32 v{V16[2*k]}, 16, v{XB+k}')
            A(f'v_and_b32 v{V16[2*k+1]}, 0xffff0000, v{XB+k}')
        self.ln_apply(V16, V16, 22, 23, 24)
        QA = 48
        for k in range(16):
            a = 56 + 2 * (k & 3)
            A(f'v_cvt_pk_bf16_f32 v24, v{V16[k]}, v{V16[k]}')
            A(f'v_and_b32 v{a}, v24, v44')
            A(f'v_and_b32 v{a+1}, v24, v45')
            A(f's_waitcnt vmcnt({15 - k})')
            if k == 0: self.stamp(8, ('q',))
            if k == 15: self.stamp(9, ('q',))
            self.nop(1)
            c0 = '0' if k == 0 else f'v[{QA}:{QA+3}]'
            c1 = '0' if k == 0 else f'v[{QA+4}:{QA+7}]'
            A(f'v_mfma_f32_16x16x16_bf16 v[{QA}:{QA+3}], v[{a}:{a+1}], v[{WQR+4*k}:{WQR+4*k+1}], {c0}')
            A(f'v_mfma_f32_16x16x16_bf16 v[{QA+4}:{QA+7}], v[{a}:{a+1}], v[{WQR+4*k+2}:{WQR+4*k+3}], {c1}')
        self.nop(8)
        for k in range(4):
            A(f'v_cndmask_b32 v{QA+k}, v{QA+k}, v{QA+4+k}, s[74:75]')
        A(f'v_cndmask_b32 v24, v{QA}, v{QA+2}, s[72:73]')
        A(f'v_cndmask_b32 v25, v{QA+1}, v{QA+3}, s[72:73]')
        if o['qlocal']:
            A(f's_add_u32 s15, s6, {WS_QL:#x}')
            A(f'buffer_store_dwordx4 v[24:27], v46, s[{WS}:{WS+3}], s15 offen')
        A(f'buffer_store_dwordx4 v[24:27], v46, s[{WS}:{WS+3}], s6 offen offset:{WS_QP} sc1')
        self.stamp(1)
        A('v_lshlrev_b32 v5, 10, v0')
        A('s_lshl_b32 s14, s31, 15')
        A('s_mov_b32 exec_hi, 0')
        A(f's_mov_b32 s15, {spin}')
        lp = self.label('probe')
        A(f'{lp}:')
        A(f's_sleep {o["pollsleep"]}')
        A(f'buffer_load_dwordx2 v[28:29], v5, s[{WS}:{WS+3}], s14 offen offset:{WS_QP+1016} sc1')
        A('s_sub_u32 s15, s15, 1')
        A('s_cmp_eq_u32 s15, 0')
        A(f's_cbranch_scc1 {lp}_x')
        A('s_waitcnt vmcnt(0)')
        A('v_cmp_ne_u64 vcc, s[96:97], v[28:29]')
        A('s_and_b64 exec, exec, vcc')
        A(f's_cbranch_execnz {lp}')
        A(f'{lp}_x:')
        A('s_mov_b64 exec, -1')
        A('v_mov_b32 v6, 1')
        A('ds_write_b32 v7, v6')
        self.stamp(5, ('q',))
        A('L_h_qgather:')
        A(f'v_mov_b32 v7, {LDS_F}')
        A('s_lshl_b32 s14, s31, 15')
        A('s_lshl_b32 s15, s33, 11')
        A('s_add_u32 s14, s14, s15')
        self.lds_wait(7, 0)
        A(f's_mov_b32 s15, {spin}')
        lp = self.label('pollqd')
        if o['qlocal']:
            A(f's_add_u32 s8, s14, {WS_QL:#x}')
            A(f's_branch {lp}_f')
        A(f'{lp}:')
        A('s_mov_b32 s8, s14')
        A(f'{lp}_f:')
        for k in range(8):
            A(f'buffer_load_dwordx4 v[{64+8*k}:{67+8*k}], v1, s[{WS}:{WS+3}], s8 offen offset:{WS_QP} sc1')
            A(f'buffer_load_dwordx4 v[{68+8*k}:{71+8*k}], v1, s[{WS}:{WS+3}], s8 offen offset:{WS_QP+1024} sc1')
            if k < 7:
                A('s_add_u32 s8, s8, 4096')
        A('s_sub_u32 s15, s15, 1')
        A('s_cmp_eq_u32 s15, 0')
        A(f's_cbranch_scc1 {lp}_x')
        for k in range(16):
            A(f's_waitcnt vmcnt({15-k})')
            if k == 0:
                A(f'v_cmp_ne_u64 s[76:77], s[96:97], v[{66+4*k}:{67+4*k}]')
            else:
                A(f'v_cmp_ne_u64 vcc, s[96:97], v[{66+4*k}:{67+4*k}]')
                A('s_or_b64 s[76:77], s[76:77], vcc')
        A('s_and_b64 exec, exec, s[76:77]')
        A(f's_cbranch_execz {lp}_x')
        A('s_sleep 2')
        A(f's_branch {lp}')
        A(f'{lp}_x:')
        A('s_mov_b64 exec, -1')
        A('s_waitcnt vmcnt(0)')
        self.stamp(2)
        for k in range(1, 8):
            A(f'v_pk_add_f32 v[64:65], v[64:65], v[{64+8*k}:{65+8*k}]')
            A(f'v_pk_add_f32 v[68:69], v[68:69], v[{68+8*k}:{69+8*k}]')
        A('v_cvt_pk_bf16_f32 v16, v64, v65')
        A('v_cvt_pk_bf16_f32 v17, v68, v69')
        A('s_lshl_b32 s15, s33, 9')
        A('v_lshl_add_u32 v5, v0, 2, s15')
        A(f'ds_write_b32 v5, v16 offset:{LDS_Q}')
        A(f'ds_write_b32 v5, v17 offset:{LDS_Q+256}')
        A('s_waitcnt lgkmcnt(0)')
        self.stamp(3)
        A('s_barrier')
        A('s_cmp_lg_u32 s33, 1')
        A('s_cbranch_scc1 L_pref')
        A('v_mov_b32 v24, -1'); A('v_mov_b32 v25, -1'); A('v_mov_b32 v26, -1'); A('v_mov_b32 v27, -1')
        A('s_lshl_b32 s14, s3, 11')
        A(f's_add_u32 s14, s14, {WS_P1:#x}')
        for k in range(2):
            A(f'buffer_store_dwordx4 v[24:27], v1, s[{WS}:{WS+3}], s14 offen offset:{1024*k} sc1')
        A('s_lshl_b32 s14, s31, 2')
        A('s_add_u32 s14, s14, s34')
        A('s_lshl_b32 s14, s14, 11')
        A('s_lshl_b32 s15, s35, 8')
        A('s_add_u32 s14, s14, s15')
        A(f's_add_u32 s14, s14, {WS_P2:#x}')
        A('v_lshlrev_b32 v5, 2, v0')
        A(f'buffer_store_dword v24, v5, s[{WS}:{WS+3}], s14 offen sc1')
        A('s_cmp_ge_u32 s32, 16')
        A('s_cbranch_scc1 L_h1_nohv')
        A(f's_mul_i32 s14, s31, {HVS}')
        A(f's_add_u32 s14, s14, {WS_HV:#x}')
        A('s_lshl_b32 s15, s32, 7')
        A('v_add_u32 v5, s15, v1')
        A('s_lshl_b32 s15, s32, 4')
        A('s_add_u32 s15, s15, 2048')
        A('v_mov_b32 v6, s15')
        A('v_cmp_eq_u32 vcc, 8, v0')
        self.nop(2)
        A('v_cndmask_b32 v5, v5, v6, vcc')
        A('s_mov_b64 exec, 0x1ff')
        A(f'buffer_store_dwordx4 v[24:27], v5, s[{WS}:{WS+3}], s14 offen sc1')
        A('s_mov_b64 exec, -1')
        A('L_h1_nohv:')
        A('s_cmp_lg_u32 s32, 0')
        A('s_cbranch_scc1 L_h1_nocnt')
        A('s_lshl_b32 s14, s31, 10')
        A(f's_add_u32 s14, s14, {WS_CNT:#x}')
        A('v_mov_b32 v32, 0'); A('v_mov_b32 v33, 0'); A('v_mov_b32 v34, 0'); A('v_mov_b32 v35, 0')
        A(f'buffer_store_dwordx4 v[32:35], v1, s[{WS}:{WS+3}], s14 offen sc1')
        A('L_h1_nocnt:')
        A('s_getreg_b32 s8, hwreg(HW_REG_XCC_ID, 0, 4)')
        A('v_mov_b32 v28, s96')
        A('v_mov_b32 v29, s97')
        A('v_mov_b32 v30, s8')
        A('v_mov_b32 v31, 0')
        A('v_mov_b32 v5, 0')
        A('s_lshl_b32 s14, s3, 4')
        A(f's_add_u32 s14, s14, {WS_F:#x}')
        A('s_mov_b64 exec, 1')
        A('s_waitcnt vmcnt(0)')
        A(f'buffer_store_dwordx4 v[28:31], v5, s[{WS}:{WS+3}], s14 offen sc1')
        A('s_mov_b64 exec, -1')
        A(f's_mov_b32 s14, {WS_F:#x}')
        A(f's_mov_b32 s15, {spin}')
        lp = self.label('pollall')
        A(f'{lp}:')
        A('s_sleep 127')
        A('s_sleep 127')
        for k in range(4):
            A(f'buffer_load_dwordx2 v[{24+2*k}:{25+2*k}], v1, s[{WS}:{WS+3}], s14 offen offset:{1024*k} sc1')
        A('s_sub_u32 s15, s15, 1')
        A('s_cmp_eq_u32 s15, 0')
        A(f's_cbranch_scc1 {lp}_x')
        A('s_waitcnt vmcnt(0)')
        for k in range(4):
            if k == 0:
                A(f'v_cmp_ne_u64 s[76:77], s[96:97], v[{24+2*k}:{25+2*k}]')
            else:
                A(f'v_cmp_ne_u64 vcc, s[96:97], v[{24+2*k}:{25+2*k}]')
                A('s_or_b64 s[76:77], s[76:77], vcc')
        A('s_and_b64 exec, exec, s[76:77]')
        A(f's_cbranch_execnz {lp}')
        A(f'{lp}_x:')
        A('s_mov_b64 exec, -1')
        A('v_mov_b32 v6, 1')
        A('ds_write_b32 v7, v6 offset:4')
        A('s_lshl_b32 s14, s31, 9')
        A(f's_add_u32 s14, s14, {WS_F:#x}')
        A('s_mov_b32 exec_hi, 0')
        A(f'buffer_load_dwordx4 v[24:27], v1, s[{WS}:{WS+3}], s14 offen sc1')
        A('s_waitcnt vmcnt(0)')
        A('v_cmp_ne_u64 s[76:77], s[96:97], v[24:25]')
        A('v_cmp_ne_u32 vcc, s8, v26')
        A('s_or_b64 s[76:77], s[76:77], vcc')
        A('s_cselect_b32 s14, 0, 1')
        if not o['fast']:
            A('s_mov_b32 s14, 0')
        A('s_mov_b64 exec, -1')
        A('v_mov_b32 v6, s14')
        A('ds_write_b32 v7, v6 offset:8')

    def helper_tail(self):
        A = self.A
        o = self.o
        nt = o['nt']
        spin = o['spin']
        WOR, WOT, XR, B2R, XF = 64, 80, 108, 110, 128
        vOA, vMLA, vP1o, vP1m, vWw, vWr, vP2, vHw, vHo = 140, 141, 142, 143, 144, 145, 146, 147, 149
        A('s_setprio 3')
        self.srd(WO, 12, 0x400000)
        self.srd(W1, 16, 3584)
        self.srd(B1, 18, 3584)
        self.srd(W2, 20, 3584)
        self.srd(B2, 22, 2)
        self.srd(OUT, 24, 1024)
        A(f's_mov_b32 s9, {f2u(LOG2E):#x}')
        A('v_lshlrev_b32 v1, 4, v0')
        A('v_and_b32 v8, 7, v0')
        A('v_lshrrev_b32 v9, 3, v0')
        A('v_and_b32 v10, 31, v0')
        A('v_lshlrev_b32 v4, 12, v8')
        A('v_lshl_add_u32 v4, v9, 4, v4')
        A('s_lshl_b32 s8, s31, 2')
        A('s_add_u32 s8, s8, s34')
        A('s_lshl_b32 s14, s8, 17')
        A('s_lshl_b32 s15, s33, 15')
        A('s_add_u32 s14, s14, s15')
        A('s_lshl_b32 s15, s35, 7')
        A('s_add_u32 s14, s14, s15')
        for k in range(4):
            A(f'buffer_load_dwordx4 v[{WOR+4*k}:{WOR+4*k+3}], v4, s[{WO}:{WO+3}], s14 offen offset:{1024*k} {nt}')
        self.mlp_weights_load()
        A('v_lshlrev_b32 v5, 3, v8')
        A('s_and_b32 s14, s32, 15')
        A('s_lshl_b32 s14, s14, 6')
        A(f'buffer_load_dwordx2 v[{XR}:{XR+1}], v5, s[{X}:{X+3}], s14 offen')
        A('v_mov_b32 v5, 0')
        A(f'buffer_load_ushort v{B2R}, v5, s[{B2}:{B2+3}], 0 offen')
        A('s_lshl_b32 s14, s33, 9')
        A(f's_add_u32 s14, s14, {LDS_O}')
        A(f'v_lshl_add_u32 v{vOA}, v10, 4, s14')
        A('s_lshl_b32 s14, s33, 3')
        A(f's_add_u32 s14, s14, {LDS_ML}')
        A(f'v_mov_b32 v{vMLA}, s14')
        A(f'v_lshlrev_b32 v{vP1o}, 11, v9')
        A('s_lshl_b32 s14, s33, 7')
        A(f'v_lshl_add_u32 v{vP1o}, v8, 4, v{vP1o}')
        A(f'v_add_u32 v{vP1o}, s14, v{vP1o}')
        A('s_lshl_b32 s14, s33, 8')
        A(f's_add_u32 s14, s14, {LDS_W}')
        A(f'v_lshl_add_u32 v{vWw}, v9, 5, s14')
        A(f'v_lshlrev_b32 v{vWr}, 2, v0')
        A('v_lshlrev_b32 v4, 13, v9')
        A(f'v_lshl_add_u32 v{vP2}, v8, 4, v4')
        A('s_and_b32 s15, s32, 15')
        A('s_lshl_b32 s14, s15, 7')
        A(f's_add_u32 s6, s14, {WS_P2:#x}')
        A('s_add_u32 s7, s6, 4096')
        A(f's_mul_i32 s25, s31, {HVS}')
        A(f's_add_u32 s25, s25, {WS_HV:#x}')
        A('v_add_u32 v148, s14, v1')
        A('s_lshl_b32 s15, s15, 4')
        A('s_add_u32 s15, s15, 2048')
        A('v_mov_b32 v4, s15')
        A('v_cmp_eq_u32 s[48:49], 8, v0')
        self.nop(2)
        A('v_cndmask_b32 v148, v148, v4, s[48:49]')
        A('s_lshr_b32 s14, s2, 1')
        A('s_lshl_b32 s14, s14, 4')
        A('v_mov_b32 v4, s14')
        A(f'v_add_u32 v{vHw}, 0x800, v1')
        A('v_cmp_lt_u32 vcc, 15, v0')
        A(f'v_mov_b32 v{vHo}, {LDS_H}')
        A('s_nop 0')
        A(f'v_cndmask_b32 v{vHw}, v{vHw}, v4, vcc')
        A('s_lshl_b32 s14, s3, 11')
        A('s_lshl_b32 s15, s33, 9')
        A('s_add_u32 s14, s14, s15')
        A(f's_add_u32 s16, s14, {WS_P1:#x}')
        A('s_lshl_b32 s14, s31, 16')
        A('s_lshl_b32 s15, s34, 9')
        A('s_add_u32 s14, s14, s15')
        A(f's_add_u32 s10, s14, {WS_P1:#x}')
        A('s_add_u32 s11, s10, 16384')
        A('s_add_u32 s12, s10, 32768')
        A('s_add_u32 s13, s10, 49152')
        A('s_lshl_b32 s14, s8, 11')
        A('s_lshl_b32 s15, s35, 8')
        A('s_add_u32 s14, s14, s15')
        A(f's_add_u32 s17, s14, {WS_P2:#x}')
        A('s_waitcnt vmcnt(0)')
        A('s_mov_b32 s14, 0x05040100')
        A('s_mov_b32 s15, 0x07060302')
        for p in range(2):
            for dw in range(4):
                lo, hi = WOR + 8 * p + dw, WOR + 8 * p + 4 + dw
                A(f'v_perm_b32 v{WOT+8*p+2*dw}, v{hi}, v{lo}, s14')
                A(f'v_perm_b32 v{WOT+8*p+2*dw+1}, v{hi}, v{lo}, s15')
        self.mlp_weights_prep()
        for k in range(2):
            A(f'v_lshlrev_b32 v{XF+2*k}, 16, v{XR+k}')
            A(f'v_and_b32 v{XF+2*k+1}, 0xffff0000, v{XR+k}')
        A(f'v_lshlrev_b32 v{B2R}, 16, v{B2R}')
        A('v_cmp_lt_u32 s[18:19], 31, v0')
        if o['warm']:
            A('s_cmp_lg_u32 s33, 0')
            A('s_cbranch_scc1 L_nowarm')
            self.warm_pass(['h', 'a', 'b', 'c', 'd1', 'e', 'f', 'g'])
            self.srd(WS, 28, WS_SIZE)
            A('L_nowarm:')
        for k in range(4):
            A(f's_mov_b64 s[{72+2*k}:{73+2*k}], -1')
        A('s_waitcnt lgkmcnt(0)')
        A('s_barrier')
        self.seg_begin('a')
        self.stamp(4, (True,))
        NP = NPART
        ML, OO = 16, 28
        A(f'ds_read_b32 v14, v{vHo} offset:{LDS_F + 8 - LDS_H}')
        for w in range(NP):
            A(f'ds_read_b64 v[{ML+2*w}:{ML+2*w+1}], v{vMLA} offset:{32*w}')
        for w in range(NP):
            A(f'ds_read_b128 v[{OO+4*w}:{OO+4*w+3}], v{vOA} offset:{2048*w}')
        A(f's_waitcnt lgkmcnt({NP})')
        A(f'v_max3_f32 v12, v{ML}, v{ML+2}, v{ML+4}')
        A(f'v_max3_f32 v13, v{ML+6}, v{ML+8}, v{ML+10}')
        A('v_max_f32 v12, v12, v13')
        A('v_readfirstlane_b32 s24, v14')
        A('v_mul_f32 v13, s9, v12')
        for w in range(NP):
            A(f'v_fma_f32 v{ML+2*w}, v{ML+2*w}, s9, -v13')
        for w in range(NP):
            A(f'v_exp_f32 v{ML+2*w}, v{ML+2*w}')
        A(f'v_mul_f32 v13, v{ML}, v{ML+1}')
        for w in range(1, NP):
            A(f'v_fmac_f32 v13, v{ML+2*w}, v{ML+2*w+1}')
        A('s_waitcnt lgkmcnt(0)')
        for c in range(4):
            A(f'v_mul_f32 v{52+c}, v{ML}, v{OO+c}')
        for w in range(1, NP):
            for c in range(4):
                A(f'v_fmac_f32 v{52+c}, v{ML+2*w}, v{OO+4*w+c}')
        A('v_cvt_pk_bf16_f32 v52, v52, v53')
        A('v_cvt_pk_bf16_f32 v53, v54, v55')
        A('v_min_u32 v54, 0xfffffffe, v12')
        A('v_min_u32 v55, 0xfffffffe, v13')
        self.canon([52, 53])
        self.seg_end('a')
        A('s_mov_b32 exec_hi, 0')
        A('s_cmp_eq_u32 s24, 0')
        lb = self.label('st')
        A(f's_cbranch_scc1 {lb}')
        A(f'buffer_store_dwordx4 v[52:55], v1, s[{WS}:{WS+3}], s16 offen')
        A(f's_branch {lb}_x')
        A(f'{lb}:')
        A(f'buffer_store_dwordx4 v[52:55], v1, s[{WS}:{WS+3}], s16 offen sc1')
        A(f'{lb}_x:')
        self.stamp(5, (True,))
        GO = 16
        A(f's_mov_b32 s15, {spin}')
        lp = self.label('poll1')
        A(f'{lp}:')
        for k in range(4):
            A(f's_mov_b64 exec, s[{72+2*k}:{73+2*k}]')
            A(f's_cbranch_execz {lp}_l{k}')
            A(f'buffer_load_dwordx4 v[{GO+4*k}:{GO+4*k+3}], v{vP1o}, s[{WS}:{WS+3}], s{10+k} offen sc1')
            A(f'{lp}_l{k}:')
        A('s_sub_u32 s15, s15, 1')
        A('s_cmp_eq_u32 s15, 0')
        A(f's_cbranch_scc1 {lp}_x')
        A('s_waitcnt vmcnt(0)')
        for k in range(4):
            A(f's_mov_b64 exec, s[{72+2*k}:{73+2*k}]')
            A(f'v_max3_u32 v12, v{GO+4*k}, v{GO+4*k+1}, v{GO+4*k+2}')
            A(f'v_max_u32 v12, v12, v{GO+4*k+3}')
            A(f'v_cmp_eq_u32 s[{72+2*k}:{73+2*k}], -1, v12')
        A('s_or_b64 s[20:21], s[72:73], s[74:75]')
        A('s_or_b64 vcc, s[76:77], s[78:79]')
        A('s_or_b64 s[20:21], s[20:21], vcc')
        A(f's_cbranch_scc0 {lp}_x')
        A('s_bcnt1_i32_b64 s14, s[20:21]')
        A('s_cmp_gt_u32 s14, 16')
        A(f's_cbranch_scc1 {lp}_s')
        if o['sleep_few']:
            A(f's_sleep {o["sleep_few"]}')
        A(f's_branch {lp}')
        A(f'{lp}_s:')
        A(f's_sleep {o["sleep_many"]}')
        A(f's_branch {lp}')
        A(f'{lp}_x:')
        A('s_mov_b64 exec, -1')
        A('s_waitcnt vmcnt(0)')
        self.seg_begin('b')
        self.stamp(6, (True,))
        A(f'v_max3_f32 v12, v{GO+2}, v{GO+6}, v{GO+10}')
        A(f'v_max_f32 v12, v12, v{GO+14}')
        for k in range(2):
            A(f'v_lshlrev_b32 v{32+4*k}, 16, v{GO+4*k}')
            A(f'v_and_b32 v{33+4*k}, 0xffff0000, v{GO+4*k}')
        A('v_max_f32_dpp v12, v12, v12 row_ror:8 row_mask:0xf bank_mask:0xf')
        A('v_mov_b32 v13, v12')
        for k in range(2):
            A(f'v_lshlrev_b32 v{34+4*k}, 16, v{GO+4*k+1}')
            A(f'v_and_b32 v{35+4*k}, 0xffff0000, v{GO+4*k+1}')
        A('v_permlane16_swap_b32 v12, v13')
        for k in range(2, 4):
            A(f'v_lshlrev_b32 v{44+4*k}, 16, v{GO+4*k}')
            A(f'v_and_b32 v{45+4*k}, 0xffff0000, v{GO+4*k}')
        A('v_max_f32 v12, v12, v13')
        A('v_mov_b32 v13, v12')
        for k in range(2, 4):
            A(f'v_lshlrev_b32 v{46+4*k}, 16, v{GO+4*k+1}')
            A(f'v_and_b32 v{47+4*k}, 0xffff0000, v{GO+4*k+1}')
        A('v_permlane32_swap_b32 v12, v13')
        self.nop(2)
        A('v_max_f32 v12, v12, v13')
        A('v_mul_f32 v12, s9, v12')
        OU = [32, 36, 52, 56]
        for k in range(4):
            A(f'v_fma_f32 v{GO+4*k+2}, v{GO+4*k+2}, s9, -v12')
        for k in range(4):
            A(f'v_exp_f32 v{GO+4*k+2}, v{GO+4*k+2}')
        self.nop(1)
        A(f'v_mul_f32 v44, v{GO+2}, v{GO+3}')
        A(f'v_pk_mul_f32 v[40:41], v[{OU[0]}:{OU[0]+1}], v[{GO+2}:{GO+3}] op_sel_hi:[1,0]')
        A(f'v_pk_mul_f32 v[42:43], v[{OU[0]+2}:{OU[0]+3}], v[{GO+2}:{GO+3}] op_sel_hi:[1,0]')
        for k in range(1, 4):
            f = GO + 4 * k + 2
            A(f'v_fmac_f32 v44, v{f}, v{f+1}')
            A(f'v_pk_fma_f32 v[40:41], v[{OU[k]}:{OU[k]+1}], v[{f}:{f+1}], v[40:41] op_sel_hi:[1,0,1]')
            A(f'v_pk_fma_f32 v[42:43], v[{OU[k]+2}:{OU[k]+3}], v[{f}:{f+1}], v[42:43] op_sel_hi:[1,0,1]')
        self.nop(1)
        R5 = [44, 40, 41, 42, 43]
        T5 = [45, 46, 47, 48, 49]
        self.dpp('v_add_f32', R5, 'row_ror:8')
        self.swap_red('v_add_f32', R5, T5, 16)
        self.swap_red('v_add_f32', R5, T5, 32)
        A('v_rcp_f32 v44, v44')
        self.nop(1)
        for c in range(4):
            A(f'v_mul_f32 v{40+c}, v{40+c}, v44')
        A('v_cvt_pk_bf16_f32 v40, v40, v41')
        A('v_cvt_pk_bf16_f32 v41, v42, v43')
        for c in range(8):
            A(f'v_dot2_f32_bf16 v{16+c}, v40, v{WOT+c}, 0')
        for c in range(8):
            A(f'v_dot2_f32_bf16 v{16+c}, v41, v{WOT+8+c}, v{16+c}')
        R8 = list(range(16, 24))
        self.dpp('v_add_f32', R8, 'quad_perm:[1,0,3,2]')
        self.dpp('v_add_f32', R8, 'quad_perm:[2,3,0,1]')
        self.dpp('v_add_f32', R8, 'row_half_mirror')
        A(f'ds_write_b128 v{vWw}, v[16:19]')
        A(f'ds_write_b128 v{vWw}, v[20:23] offset:16')
        A('s_waitcnt lgkmcnt(0)')
        self.seg_end('b')
        A('s_barrier')
        A('s_cmp_lg_u32 s33, 0')
        A('s_cbranch_scc1 L_hop2')
        self.seg_begin('c')
        for w in range(4):
            A(f'ds_read_b32 v{16+w}, v{vWr} offset:{LDS_W + 256*w}')
        A('s_waitcnt lgkmcnt(0)')
        A('v_add_f32 v16, v16, v17')
        A('v_add_f32 v18, v18, v19')
        A('v_add_f32 v16, v16, v18')
        self.canon([16])
        self.seg_end('c')
        A(f'buffer_store_dword v16, v{vWr}, s[{WS}:{WS+3}], s17 offen sc1')
        A('L_hop2:')
        self.stamp(7, (True,))
        A('s_sub_u32 s14, s33, 1')
        A(f's_cmp_ge_u32 s14, {o["nred"]}')
        A('s_cbranch_scc1 L_hop2b')
        A('s_cmp_ge_u32 s32, 16')
        A('s_cbranch_scc1 L_hop2b')
        if o['nred'] > 1:
            A('s_cmp_eq_u32 s14, 0')
            A('s_cbranch_scc1 L_red')
            A('s_sleep 3')
            A('s_cmp_eq_u32 s14, 1')
            A('s_cbranch_scc1 L_red')
            A('s_sleep 3')
            A('L_red:')
        A(f's_mov_b32 s15, {spin}')
        lp = self.label('poll2a')
        A(f'{lp}:')
        for k in range(4):
            A(f'buffer_load_dwordx4 v[{16+4*k}:{19+4*k}], v{vP2}, s[{WS}:{WS+3}], s{6+(k>>1)} offen offset:{2048*(k&1)} sc1')
        A('s_sub_u32 s15, s15, 1')
        A('s_cmp_eq_u32 s15, 0')
        A(f's_cbranch_scc1 {lp}_x')
        A('s_waitcnt vmcnt(0)')
        A('v_max3_u32 v12, v16, v17, v18')
        A('v_max3_u32 v13, v19, v20, v21')
        A('v_max3_u32 v12, v12, v22, v23')
        A('v_max3_u32 v13, v13, v24, v25')
        A('v_max3_u32 v12, v12, v26, v27')
        A('v_max3_u32 v13, v13, v28, v29')
        A('v_max3_u32 v12, v12, v30, v31')
        A('v_max_u32 v12, v12, v13')
        A('v_cmp_eq_u32 vcc, -1, v12')
        A('s_and_b64 exec, exec, vcc')
        A(f's_cbranch_execnz {lp}')
        A(f'{lp}_x:')
        A('s_mov_b64 exec, -1')
        A('s_waitcnt vmcnt(0)')
        self.seg_begin('d1')
        A('v_pk_add_f32 v[16:17], v[16:17], v[20:21]')
        A('v_pk_add_f32 v[18:19], v[18:19], v[22:23]')
        A('v_pk_add_f32 v[24:25], v[24:25], v[28:29]')
        A('v_pk_add_f32 v[26:27], v[26:27], v[30:31]')
        A('v_pk_add_f32 v[16:17], v[16:17], v[24:25]')
        A('v_pk_add_f32 v[18:19], v[18:19], v[26:27]')
        R4 = [16, 17, 18, 19]
        self.nop(1)
        self.dpp('v_add_f32', R4, 'row_ror:8')
        self.swap_red('v_add_f32', R4, [20, 21, 22, 23], 16)
        self.swap_red('v_add_f32', R4, [20, 21, 22, 23], 32)
        self.rnd_bf16_pair(16, 17, 20)
        self.rnd_bf16_pair(18, 19, 21)
        A(f'v_pk_add_f32 v[16:17], v[16:17], v[{XF}:{XF+1}]')
        A(f'v_pk_add_f32 v[18:19], v[18:19], v[{XF+2}:{XF+3}]')
        self.rnd_bf16_pair(16, 17, 20)
        self.rnd_bf16_pair(18, 19, 21)
        A('v_readfirstlane_b32 s14, v16')
        self.nop(2)
        for c in range(4):
            A(f'v_subrev_f32 v{20+c}, s14, v{16+c}')
        A('v_add_f32 v25, v20, v21')
        A('v_mul_f32 v26, v20, v20')
        A('v_add_f32 v24, v22, v23')
        A('v_fmac_f32 v26, v21, v21')
        A('v_add_f32 v25, v25, v24')
        A('v_fmac_f32 v26, v22, v22')
        A('v_mov_b32 v24, s14')
        A('v_fmac_f32 v26, v23, v23')
        A('v_cndmask_b32 v16, v16, v24, s[48:49]')
        self.dpp('v_add_f32', [25, 26], 'quad_perm:[1,0,3,2]')
        self.dpp('v_add_f32', [25, 26], 'quad_perm:[2,3,0,1]')
        self.dpp('v_add_f32', [25, 26], 'row_half_mirror')
        self.canon([25, 26])
        A('v_cndmask_b32 v17, v17, v25, s[48:49]')
        A('v_cndmask_b32 v18, v18, v26, s[48:49]')
        self.seg_end('d1')
        A('s_mov_b64 exec, 0x1ff')
        A('s_cmp_eq_u32 s24, 0')
        lb = self.label('st')
        A(f's_cbranch_scc1 {lb}')
        A(f'buffer_store_dwordx4 v[16:19], v148, s[{WS}:{WS+3}], s25 offen')
        A(f's_branch {lb}_x')
        A(f'{lb}:')
        A(f'buffer_store_dwordx4 v[16:19], v148, s[{WS}:{WS+3}], s25 offen sc1')
        A(f'{lb}_x:')
        A('s_mov_b64 exec, -1')
        A('L_hop2b:')
        A('s_cmp_lg_u32 s33, 0')
        A('s_cbranch_scc1 L_b4')
        A('s_mov_b64 exec, 0x1ffff')
        A(f's_mov_b32 s15, {spin}')
        lp = self.label('poll2b')
        A(f'{lp}:')
        A(f'buffer_load_dwordx4 v[16:19], v{vHw}, s[{WS}:{WS+3}], s25 offen sc1')
        A('s_sub_u32 s15, s15, 1')
        A('s_cmp_eq_u32 s15, 0')
        A(f's_cbranch_scc1 {lp}_x')
        A('s_waitcnt vmcnt(0)')
        A('v_max3_u32 v12, v16, v17, v18')
        A('v_max_u32 v12, v12, v19')
        A('v_cmp_eq_u32 vcc, -1, v12')
        A('s_and_b64 exec, exec, vcc')
        A(f's_cbranch_execz {lp}_x')
        if o['sleep2b']:
            A(f's_sleep {o["sleep2b"]}')
        A(f's_branch {lp}')
        A(f'{lp}_x:')
        A('s_mov_b64 exec, -1')
        A('s_waitcnt vmcnt(0)')
        self.seg_begin('e')
        self.stamp(8, (True,))
        A('v_readlane_b32 s14, v16, 0')
        A('v_readlane_b32 s72, v16, 16')
        A('v_readlane_b32 s73, v17, 16')
        A('v_readlane_b32 s74, v18, 16')
        A('v_readlane_b32 s75, v19, 16')
        A('v_subrev_f32 v20, s14, v16')
        A('v_mul_f32 v21, 0x42000000, v20')
        A('v_fma_f32 v22, 2.0, v17, v21')
        A('v_fmac_f32 v18, v20, v22')
        A('v_add_f32 v17, v17, v21')
        A('s_bitcmp1_b32 s2, 0')
        A('s_cselect_b32 s72, s74, s72')
        A('s_cselect_b32 s73, s75, s73')
        self.dpp('v_add_f32', [18, 17], 'quad_perm:[1,0,3,2]')
        self.dpp('v_add_f32', [18, 17], 'quad_perm:[2,3,0,1]')
        self.dpp('v_add_f32', [18, 17], 'row_half_mirror')
        self.dpp('v_add_f32', [18, 17], 'row_mirror')
        A('v_mov_b32 v24, s72')
        A('v_mov_b32 v25, s73')
        A('v_readlane_b32 s76, v17, 0')
        A('v_readlane_b32 s77, v18, 0')
        inv = f2u(1.0 / 512)
        A(f'v_mov_b32 v48, {inv:#x}')
        self.nop(1)
        A('v_mul_f32 v49, s77, v48')
        A('v_mul_f32 v48, s76, v48')
        A('v_fma_f32 v49, -v48, v48, v49')
        A('v_max_f32 v49, 0, v49')
        A('v_add_f32 v48, s14, v48')
        mean, var = 48, 49
        self.ln_finish(mean, var, 12, 13, 14)
        self.ln_apply([24, 25], [36, 37], 12, 13, 14)
        A(f'v_sub_f32 v{mean}, v{mean}, v12')
        A(f'v_mul_f32 v{var}, v{var}, v13')
        A(f'v_mul_f32 v{mean}, v{mean}, v13')
        A(f'v_mul_f32 v{var}, v{var}, v13')
        self.ln_finish(mean, var, 12, 13, 14)
        self.ln_apply([36, 37], [36, 37], 12, 13, 14)
        A(f'ds_write_b64 v{vHo}, v[36:37]')
        A('s_waitcnt lgkmcnt(0)')
        self.seg_end('e')

    def final(self):
        A = self.A
        o = self.o
        B2R, vHo = 110, 149
        A('s_setprio 0')
        A('s_barrier')
        self.seg_begin('f')
        A(f'ds_read_b64 v[36:37], v{vHo}')
        A('s_waitcnt lgkmcnt(0)')
        self.stamp(9, (True,))
        YA = [30, 31]
        ch = [(d, p) for d in range(2) for p in range(2)]
        U = {c: 40 + 6 * n for n, c in enumerate(ch)}

        def each(f):
            for c in ch:
                f(c[0], c[1], U[c], U[c] + 2, U[c] + 4)
        each(lambda d, p, u, t, z: A(f'v_pk_mul_f32 v[{u}:{u+1}], v[{W1F+2*p}:{W1F+2*p+1}], v[36:37] op_sel:[0,{d}] op_sel_hi:[1,{d}]'))
        each(lambda d, p, u, t, z: self.rnd_bf16_pair(u, u + 1, t))
        each(lambda d, p, u, t, z: A(f'v_pk_add_f32 v[{u}:{u+1}], v[{u}:{u+1}], v[{B1F+2*p}:{B1F+2*p+1}]'))
        each(lambda d, p, u, t, z: self.rnd_bf16_pair(u, u + 1, t))
        each(lambda d, p, u, t, z: A(f'v_pk_mul_f32 v[{t}:{t+1}], v[{u}:{u+1}], v[{u}:{u+1}]'))
        each(lambda d, p, u, t, z: A(f'v_pk_fma_f32 v[{t}:{t+1}], v[{t}:{t+1}], v[{GK1}:{GK1+1}], v[{GK0}:{GK0+1}]'))
        each(lambda d, p, u, t, z: A(f'v_pk_mul_f32 v[{z}:{z+1}], v[{t}:{t+1}], v[{u}:{u+1}]'))
        each(lambda d, p, u, t, z: (A(f'v_exp_f32 v{z}, v{z}'), A(f'v_exp_f32 v{z+1}, v{z+1}')))
        each(lambda d, p, u, t, z: A(f'v_pk_add_f32 v[{z}:{z+1}], v[{z}:{z+1}], v[{GONE}:{GONE+1}]'))
        each(lambda d, p, u, t, z: (A(f'v_rcp_f32 v{z}, v{z}'), A(f'v_rcp_f32 v{z+1}, v{z+1}')))
        each(lambda d, p, u, t, z: A(f'v_pk_mul_f32 v[{u}:{u+1}], v[{u}:{u+1}], v[{z}:{z+1}]'))
        each(lambda d, p, u, t, z: A(f'v_cvt_pk_bf16_f32 v{u}, v{u}, v{u+1}'))
        for d in range(2):
            A(f'v_dot2_f32_bf16 v{YA[d]}, v{U[(d,0)]}, v{W2R}, 0')
        for d in range(2):
            A(f'v_dot2_f32_bf16 v{YA[d]}, v{U[(d,1)]}, v{W2R+1}, v{YA[d]}')
        self.nop(2)
        self.wave_sum_to_sgpr(YA, [76, 77])
        A('v_mov_b32 v16, s76')
        A('v_mov_b32 v17, s77')
        A('s_lshl_b32 s14, s30, 3')
        A(f's_add_u32 s14, s14, {LDS_Y}')
        A('v_mov_b32 v18, s14')
        A('ds_write_b64 v18, v[16:17]')
        A('s_waitcnt lgkmcnt(0)')
        self.seg_end('f')
        A('s_barrier')
        A('s_cmp_lg_u32 s30, 4')
        lend = self.label('hend')
        A(f's_cbranch_scc1 {lend}')
        self.seg_begin('g')
        A(f'v_mov_b32 v12, {LDS_Y}')
        for k in range(4):
            A(f'ds_read_b128 v[{40+4*k}:{43+4*k}], v12 offset:{16*k}')
        A('s_waitcnt lgkmcnt(0)')
        for k in range(4):
            A(f'v_pk_add_f32 v[{40+4*k}:{41+4*k}], v[{40+4*k}:{41+4*k}], v[{42+4*k}:{43+4*k}]')
        A('v_pk_add_f32 v[40:41], v[40:41], v[44:45]')
        A('v_pk_add_f32 v[48:49], v[48:49], v[52:53]')
        A('v_pk_add_f32 v[16:17], v[40:41], v[48:49]')
        self.rnd_bf16_pair(16, 17, 20)
        A(f'v_add_f32 v16, v16, v{B2R}')
        A(f'v_add_f32 v17, v17, v{B2R}')
        self.rnd_bf16_pair(16, 17, 20)
        A('v_pk_add_f32 v[16:17], v[16:17], v[24:25]')
        A('v_cvt_pk_bf16_f32 v16, v16, v17')
        A('s_lshl_b32 s14, s2, 2')
        A('v_mov_b32 v18, 0')
        self.seg_end('g')
        A('s_mov_b64 exec, 1')
        A(f'buffer_store_dword v16, v18, s[{OUT}:{OUT+3}], s14 offen')
        A('s_cmp_lg_u32 s2, 0')
        A(f's_cbranch_scc1 {lend}')
        A('v_mov_b32 v20, s96')
        A('v_mov_b32 v21, s97')
        A(f's_mov_b32 s14, {WS_E:#x}')
        A(f'buffer_store_dwordx2 v[20:21], v18, s[{WS}:{WS+3}], s14 offen sc1')
        A(f'{lend}:')
        self.stamp(10)
        self.write_stamps(11)


if __name__ == '__main__':
    out = sys.argv[1]
    kw = json.loads(sys.argv[2]) if len(sys.argv) > 2 else {}
    open(out, 'w').write(Gen(**kw).build())
```

```python
import sys, json, struct

KN = 'sequential_preLN__gqa_block_cached__mixer_token_mlp__decode'
HEADER = open('cdna_kernels/' + KN + '.s.ref').read().split('; Override launch')[0]


def f2u(x):
    return struct.unpack('<I', struct.pack('<f', x))[0]


LOG2E = 1.4426950408889634
SCALE = 128 ** -0.5
GC0 = -2.0 * (2.0 / 3.141592653589793) ** 0.5 * LOG2E
GC1 = GC0 * 0.044715

WS_QP = 0x0
WS_E = 0x40000
WS_F = 0x41000
WS_P1 = 0x42000
WS_P2 = 0x110000
WS_HV = 0x120000
HVS = 2048 + 256 + 128
WS_CNT = 0x128000
WS_QL = 0x140000
WS_SIZE = 0x20000000
STAMP_OFF = 0x10000000
TAGC = 0x9E3779B97F4A7C15
NPART = 6
LDS_Q = 0
LDS_O = 1024
LDS_ML = LDS_O + NPART * 2048
LDS_W = LDS_ML + 256
LDS_H = LDS_W + 1024
LDS_Y = LDS_H + 2048
LDS_F = LDS_Y + 64
LDS_TOTAL = LDS_F + 16

X, WQ, WS, WO, W1, B1, W2, B2, OUT = 36, 40, 44, 48, 52, 56, 60, 64, 68
W1F, B1F, W2R, RAW, GK0, GK1, GONE = 224, 228, 232, 234, 238, 240, 242


DESC = '''; ---------------------------------------------------------------------------------------------------------------
; ---------------------------------------------------------------------------------------------------------------'''


class Gen:
    def __init__(self, **kw):
        self.L = []
        self.o = dict(ring=12, pre=2, pre0=2, stamps=False, nt='nt', headmap='mod', pollsleep=8, spin=200000,
                      tc=8, sleep_many=1, sleep_few=0, cprio=2, sleep2b=0, sleep_most=32, ts=28, stageA=16, warm=False, fast=True, qlocal=False, nred=3, dist=8, lateprio=0)
        self.o.update(kw)
        self.lab = 0
        self.role = 'S'

    def A(self, s):
        self.L.append(s)

    def nop(self, n):
        if n > 0:
            self.A(f's_nop {n-1}')

    def label(self, base):
        self.lab += 1
        return f'L_{base}_{self.lab}'

    def srd(self, r, ptr, size):
        A = self.A
        A(f's_mov_b32 s{r}, s{ptr}')
        A(f's_and_b32 s{r+1}, s{ptr+1}, 0xffff')
        A(f's_mov_b32 s{r+2}, {size:#x}')
        A(f's_mov_b32 s{r+3}, 0x20000')

    def sreg(self, idx):
        return 80 + 2 * idx if idx < 8 else [98, 100, 22][idx - 8]

    def stamp(self, idx, sets=None):
        st = self.o['stamps']
        if not st:
            return
        if sets is not None and st not in sets:
            return
        r = self.sreg(idx)
        self.A(f's_memrealtime s[{r}:{r+1}]')

    def dpp(self, op, regs, ctrl, rm='0xf'):
        n = len(regs)
        if n < 3:
            self.nop(3 - n)
        for r in regs:
            self.A(f'{op}_dpp v{r}, v{r}, v{r} {ctrl} row_mask:{rm} bank_mask:0xf')

    def swap_red(self, op, regs, tmps, width):
        A = self.A
        for r, t in zip(regs, tmps):
            A(f'v_mov_b32 v{t}, v{r}')
        self.nop(2)
        for r, t in zip(regs, tmps):
            A(f'v_permlane{width}_swap_b32 v{r}, v{t}')
        if len(regs) < 3:
            self.nop(2)
        for r, t in zip(regs, tmps):
            A(f'{op} v{r}, v{r}, v{t}')

    def wave_sum_to_sgpr(self, regs, sregs):
        A = self.A
        self.dpp('v_add_f32', regs, 'quad_perm:[1,0,3,2]')
        self.dpp('v_add_f32', regs, 'quad_perm:[2,3,0,1]')
        self.dpp('v_add_f32', regs, 'row_half_mirror')
        self.dpp('v_add_f32', regs, 'row_mirror')
        self.dpp('v_add_f32', regs, 'row_bcast:15', '0xa')
        self.dpp('v_add_f32', regs, 'row_bcast:31', '0xc')
        self.nop(1)
        for r, s in zip(regs, sregs):
            A(f'v_readlane_b32 s{s}, v{r}, 63')
        self.nop(2)

    def rnd_bf16(self, dst, src):
        self.A(f'v_cvt_pk_bf16_f32 v{dst}, v{src}, v{src}')
        self.A(f'v_lshlrev_b32 v{dst}, 16, v{dst}')

    def rnd_bf16_pair(self, a, b, t):
        self.A(f'v_cvt_pk_bf16_f32 v{t}, v{a}, v{b}')
        self.A(f'v_lshlrev_b32 v{a}, 16, v{t}')
        self.A(f'v_and_b32 v{b}, 0xffff0000, v{t}')

    def ln_moments(self, vals, piv, t, s_a, s_b):
        A = self.A
        d = t[:8]
        s1, s2 = t[8], t[9]
        for k in range(0, 8, 2):
            A(f'v_pk_add_f32 v[{d[k]}:{d[k+1]}], v[{vals[k]}:{vals[k+1]}], v[{piv}:{piv+1}] neg_lo:[0,1] neg_hi:[0,1]')
        A(f'v_pk_mul_f32 v[{s1}:{s2}], v[{d[0]}:{d[1]}], v[{d[0]}:{d[1]}]')
        for k in range(2, 8, 2):
            A(f'v_pk_fma_f32 v[{s1}:{s2}], v[{d[k]}:{d[k+1]}], v[{d[k]}:{d[k+1]}], v[{s1}:{s2}]')
        A(f'v_pk_add_f32 v[{d[0]}:{d[1]}], v[{d[0]}:{d[1]}], v[{d[2]}:{d[3]}]')
        A(f'v_pk_add_f32 v[{d[4]}:{d[5]}], v[{d[4]}:{d[5]}], v[{d[6]}:{d[7]}]')
        A(f'v_add_f32 v{s2}, v{s1}, v{s2}')
        A(f'v_pk_add_f32 v[{d[0]}:{d[1]}], v[{d[0]}:{d[1]}], v[{d[4]}:{d[5]}]')
        A(f'v_add_f32 v{s1}, v{d[0]}, v{d[1]}')
        self.wave_sum_to_sgpr([s2, s1], [s_b, s_a])
        inv = f2u(1.0 / 512)
        A(f'v_mov_b32 v{s1}, {inv:#x}')
        A(f'v_mul_f32 v{s2}, s{s_b}, v{s1}')
        A(f'v_mul_f32 v{s1}, s{s_a}, v{s1}')
        A(f'v_fma_f32 v{s2}, -v{s1}, v{s1}, v{s2}')
        A(f'v_max_f32 v{s2}, 0, v{s2}')
        A(f'v_add_f32 v{s1}, v{s1}, v{piv}')

    def ln_finish(self, mean, var, vm, vr, t):
        A = self.A
        A(f'v_cvt_pk_bf16_f32 v{t}, v{mean}, v{var}')
        A(f'v_lshlrev_b32 v{vm}, 16, v{t}')
        A(f'v_and_b32 v{vr}, 0xffff0000, v{t}')
        A(f'v_add_f32 v{vr}, {f2u(1e-5):#x}, v{vr}')
        self.rnd_bf16(vr, vr)
        A(f'v_sqrt_f32 v{vr}, v{vr}')
        self.nop(1)
        self.rnd_bf16(vr, vr)
        A(f'v_rcp_f32 v{vr}, v{vr}')
        self.nop(1)

    def ln_apply(self, vals, outs, vm, vr, t):
        A = self.A
        for k in range(0, len(vals), 2):
            a, b = outs[k], outs[k + 1]
            A(f'v_sub_f32 v{a}, v{vals[k]}, v{vm}')
            A(f'v_sub_f32 v{b}, v{vals[k+1]}, v{vm}')
            self.rnd_bf16_pair(a, b, t)
            A(f'v_mul_f32 v{a}, v{a}, v{vr}')
            A(f'v_mul_f32 v{b}, v{b}, v{vr}')
            self.rnd_bf16_pair(a, b, t)

    def lds_wait(self, vaddr, off, vt=11, st=15):
        A = self.A
        lp = self.label('ldsw')
        A(f's_mov_b32 s{st}, {self.o["spin"]*20}')
        A(f'{lp}:')
        A(f'ds_read_b32 v{vt}, v{vaddr} offset:{off}')
        A(f's_sub_u32 s{st}, s{st}, 1')
        A(f's_cmp_eq_u32 s{st}, 0')
        A(f's_cbranch_scc1 {lp}_x')
        A('s_waitcnt lgkmcnt(0)')
        A(f'v_cmp_eq_u32 vcc, 0, v{vt}')
        A(f's_cbranch_vccz {lp}_x')
        A('s_sleep 1')
        A(f's_branch {lp}')
        A(f'{lp}_x:')
        A('s_waitcnt lgkmcnt(0)')

    def seg_begin(self, name):
        self.A(f'L_seg_{name}:')

    def seg_end(self, name):
        if self.o['warm']:
            self.A(f's_cbranch_execz L_ret_{name}')

    def warm_pass(self, names):
        if not self.o['warm']:
            return
        A = self.A
        A('s_mov_b64 exec, 0')
        for n in names:
            A(f's_branch L_seg_{n}')
            A(f'L_ret_{n}:')
        A('s_mov_b64 exec, -1')

    def head_to_rows(self, dst, src):
        for r in range(4):
            self.A(f'v_mov_b32_dpp v{dst}, v{src} row_newbcast:{4*r} row_mask:{1 << r:#x} bank_mask:0xf')

    def canon(self, regs):
        for r in regs:
            self.A(f'v_min_u32 v{r}, 0xfffffffe, v{r}')

    def sel_masks(self, m0, m1):
        A = self.A
        A('v_and_b32 v4, 1, v0')
        A('v_lshlrev_b32 v4, 4, v4')
        A('v_mov_b32 v5, 0xffff')
        A('v_lshlrev_b32 v5, v4, v5')
        A('v_and_b32 v4, 2, v0')
        A('v_cmp_eq_u32 vcc, 0, v4')
        A('v_mov_b32 v6, 0')
        A('s_nop 0')
        A(f'v_cndmask_b32 v{m0}, v6, v5, vcc')
        A(f'v_cndmask_b32 v{m1}, v5, v6, vcc')

    def build(self):
        A = self.A
        o = self.o
        A(HEADER.rstrip('\n'))
        A(DESC)
        A(f'; @launch grid=(256,1,1) block=(512,1,1) lds={LDS_TOTAL}')
        A('.amdgcn_target "amdgcn-amd-amdhsa--gfx950"')
        A('.text')
        A(f'.globl {KN}_kernel')
        A('.p2align 8')
        A(f'.type {KN}_kernel,@function')
        A(f'{KN}_kernel:')
        A('s_cmp_ge_u32 s2, 256')
        A('s_cbranch_scc1 L_end')
        A('s_load_dwordx16 s[4:19], s[0:1], 0')
        A('s_load_dwordx8 s[20:27], s[0:1], 64')
        A('s_load_dwordx2 s[28:29], s[0:1], 96')
        self.stamp(0)
        A('v_lshrrev_b32 v1, 6, v0')
        A('v_and_b32 v0, 63, v0')
        A('v_readfirstlane_b32 s30, v1')
        if o['headmap'] == 'mod':
            A('s_and_b32 s31, s2, 7')
            A('s_lshr_b32 s32, s2, 3')
        elif o['headmap'] == 'rot':
            A('s_lshr_b32 s32, s2, 3')
            A('s_add_u32 s31, s2, s32')
            A('s_and_b32 s31, s31, 7')
        elif o['headmap'] == 'x4':
            A('s_lshr_b32 s31, s2, 3')
            A('s_lshr_b32 s32, s31, 3')
            A('s_and_b32 s31, s31, 7')
            A('s_and_b32 s3, s2, 7')
            A('s_lshl_b32 s3, s3, 2')
            A('s_add_u32 s32, s32, s3')
        elif o['headmap'] == 'div':
            A('s_lshr_b32 s31, s2, 5')
            A('s_and_b32 s32, s2, 31')
        else:
            m = int(o['headmap'])
            A(f's_and_b32 s31, s2, {7 & ~(m-1)}')
            A('s_lshr_b32 s32, s2, 3')
            A(f's_and_b32 s3, s32, {m-1}')
            A('s_or_b32 s31, s31, s3')
            A(f's_and_b32 s32, s32, {31 & ~(m-1)}')
            A(f's_and_b32 s3, s2, {m-1}')
            A('s_or_b32 s32, s32, s3')
        A('s_lshl_b32 s3, s31, 5')
        A('s_add_u32 s3, s3, s32')
        A('s_sub_u32 s33, s30, 4')
        A('s_lshr_b32 s34, s32, 3')
        A('s_and_b32 s35, s32, 7')
        A('s_cmp_lt_u32 s33, 2')
        A('s_cbranch_scc1 L_hq')
        A('s_cmp_ge_u32 s30, 4')
        A('s_cbranch_scc1 L_cover')
        TC = o['tc']
        TS = o['ts']
        o['pool'] = 128 - 4 * TS - 2 * TC
        assert TC % 2 == 0 and o['pool'] % 4 == 0 and (o['pool'] == 0 or o['pool'] >= 12) and TS >= TC
        self.streamer(TS, TC, False)
        A('s_waitcnt lgkmcnt(0)')
        A('s_barrier')
        self.srd(W1, 16, 3584)
        self.srd(B1, 18, 3584)
        self.srd(W2, 20, 3584)
        self.mlp_weights_load()
        self.srd(WS, 28, WS_SIZE)
        self.srd(OUT, 24, 1024)
        A('s_barrier')
        A('s_waitcnt vmcnt(0)')
        A(f'v_mov_b32 v149, {LDS_H}')
        self.mlp_weights_prep()
        A('s_branch L_b4')
        A('L_cover:')
        self.streamer(TC, TC, True)
        self.srd(X, 4, 1024)
        self.srd(WS, 28, WS_SIZE)
        A('s_branch L_pref')
        A('L_hq:')
        self.helper_q()
        A('L_pref:')
        self.helper_tail()
        A('L_b4:')
        self.final()
        A('L_end:')
        A('s_endpgm')
        A('.section .rodata,"a"')
        A('.p2align 6')
        A(f'.amdhsa_kernel {KN}_kernel')
        A('  .amdhsa_next_free_vgpr 256')
        A('  .amdhsa_next_free_sgpr 102')
        A('  .amdhsa_accum_offset 256')
        A('  .amdhsa_group_segment_fixed_size 0')
        A('  .amdhsa_kernarg_size 104')
        A('  .amdhsa_user_sgpr_count 2')
        A('  .amdhsa_user_sgpr_kernarg_segment_ptr 1')
        A('  .amdhsa_system_sgpr_workgroup_id_x 1')
        A('  .amdhsa_float_denorm_mode_32 3')
        A('.end_amdhsa_kernel')
        return '\n'.join(self.L) + '\n'

    def write_stamps(self, n):
        if not self.o['stamps']:
            return
        A = self.A
        if self.o.get('dbgstamps'):
            A('s_waitcnt lgkmcnt(0)')
            A('s_mov_b64 exec, 1')
            self.srd(76, 26, 256)
            A('v_mov_b32 v1, 0')
            def amax(sreg, off, inv):
                A(f'v_mov_b32 v2, s{sreg}')
                if inv: A('v_not_b32 v2, v2')
                A(f'buffer_atomic_umax v2, v1, s[76:79], 0 offen offset:{off} sc1')
                A('s_nop 1')
            amax(self.sreg(10), 0, False)
            amax(self.sreg(0), 4, True)
            A('s_cmp_ge_u32 s30, 4')
            A('s_cbranch_scc1 L_dbg_x')
            amax(self.sreg(4), 8, False)
            amax(self.sreg(4), 12, True)
            amax(self.sreg(2), 16, False)
            amax(self.sreg(3), 20, False)
            amax(self.sreg(3), 24, True)
            A('L_dbg_x:')
            A('s_waitcnt vmcnt(0)')
            return
        A('s_waitcnt lgkmcnt(0)')
        A('s_mov_b64 exec, 1')
        A('s_lshl_b32 s33, s2, 3')
        A('s_add_u32 s33, s33, s30')
        A('s_lshl_b32 s33, s33, 7')
        A(f's_add_u32 s33, s33, {STAMP_OFF:#x}')
        self.srd(76, 28, WS_SIZE)
        A('v_mov_b32 v1, 0')
        for k in range(n):
            A(f'v_mov_b32 v2, s{self.sreg(k)}')
            A(f'v_mov_b32 v3, s{self.sreg(k)+1}')
            A(f'buffer_store_dwordx2 v[2:3], v1, s[76:79], s33 offen offset:{8*k}')
            A('s_nop 1')
        A('s_waitcnt vmcnt(0)')

    def mlp_weights_load(self):
        A = self.A
        A('v_lshlrev_b32 v4, 3, v0')
        A('s_lshl_b32 s14, s30, 9')
        A(f'buffer_load_dwordx2 v[{RAW}:{RAW+1}], v4, s[{W1}:{W1+3}], s14 offen')
        A(f'buffer_load_dwordx2 v[{RAW+2}:{RAW+3}], v4, s[{B1}:{B1+3}], s14 offen')
        A(f'buffer_load_dwordx2 v[{W2R}:{W2R+1}], v4, s[{W2}:{W2+3}], s14 offen')

    def mlp_weights_prep(self):
        A = self.A
        for k in range(2):
            A(f'v_lshlrev_b32 v{W1F+2*k}, 16, v{RAW+k}')
            A(f'v_and_b32 v{W1F+2*k+1}, 0xffff0000, v{RAW+k}')
            A(f'v_lshlrev_b32 v{B1F+2*k}, 16, v{RAW+2+k}')
            A(f'v_and_b32 v{B1F+2*k+1}, 0xffff0000, v{RAW+2+k}')
            A(f'v_mov_b32 v{GK0+k}, {f2u(GC0):#x}')
            A(f'v_mov_b32 v{GK1+k}, {f2u(GC1):#x}')
            A(f'v_mov_b32 v{GONE+k}, 1.0')

    def streamer(self, T, TC, cover):
        A = self.A
        o = self.o
        R = min(o['ring'], 2 * T)
        nt = o['nt']
        N = 2 * T
        RB = 64
        assert RB + 16 * R <= 256
        vK, vV = 1, 2
        Q = 4
        C = [20, 24]
        G = 28
        S2 = 30
        vmax, vl, vnm = 46, 47, 3
        ACC = 48
        D = 56
        M0, M1 = 60, 61
        TA = [30, 32, 34, 36]
        U = [28, 29, 62, 63]
        KT = [56, 57, 58, 59, 62, 63]
        stp = None if not cover else ()

        def tile_of(t):
            return 6 * t if t < TC else 6 * TC + 4 * (t - TC)

        A('v_and_b32 v4, 3, v0')
        A('v_lshlrev_b32 v4, 10, v4')
        A('v_bfe_u32 v5, v0, 2, 2')
        A('v_lshlrev_b32 v5, 8, v5')
        A('v_lshrrev_b32 v6, 4, v0')
        A('v_lshlrev_b32 v6, 4, v6')
        A(f'v_add3_u32 v{vK}, v4, v5, v6')
        A(f'v_lshlrev_b32 v{vV}, 4, v0')
        A('s_lshl_b32 s44, s31, 24')
        A('s_lshl_b32 s45, s32, 19')
        A('s_add_u32 s44, s44, s45')
        if cover:
            A(f's_setprio {o["cprio"]}')
            A('s_sub_u32 s46, s30, 2')
        else:
            A('s_mov_b32 s46, s30')
        A('s_lshl_b32 s45, s46, 12')
        A('s_add_u32 s44, s44, s45')
        A('s_waitcnt lgkmcnt(0)')
        self.srd(36, 6, 0x8000000)
        self.srd(40, 8, 0x8000000)

        seq = []
        prep_after = set()
        for g0 in range(0, T + 4, 4):
            for j in range(4):
                if g0 + j < T: seq.append(('k', g0 + j))
                if 0 <= g0 - 4 + j < T: seq.append(('v', g0 - 4 + j))
            if g0 < T: prep_after.add(len(seq) - 1)
        assert len(seq) == N

        def issue(n):
            r = RB + (n % R) * 16
            kind, t = seq[n]
            A(f's_add_u32 s45, s44, {tile_of(t)*4096:#x}')
            for j in range(4):
                if kind == 'k':
                    A(f'buffer_load_dwordx4 v[{r+4*j}:{r+4*j+3}], v{vK}, s[36:39], s45 offen offset:{64*j} {nt}')
                else:
                    A(f'buffer_load_dwordx4 v[{r+4*j}:{r+4*j+3}], v{vV}, s[40:43], s45 offen offset:{1024*j} {nt}')

        pre0, pre = o['pre0'], o['pre']
        self.stamp(6, ('q',))
        for n in range(pre0):
            issue(n)
        self.stamp(7, ('q',))
        A('s_barrier')
        self.stamp(8, ('q',))
        for n in range(pre0, pre):
            issue(n)
        A('s_mov_b32 s48, 0x11111111'); A('s_mov_b32 s49, 0x11111111')
        A('s_mov_b32 s50, 0x22222222'); A('s_mov_b32 s51, 0x22222222')
        A('s_mov_b32 s52, 0x44444444'); A('s_mov_b32 s53, 0x44444444')
        A('s_mov_b32 s54, 0x88888888'); A('s_mov_b32 s55, 0x88888888')
        A(f's_mov_b32 s56, {f2u(SCALE):#x}')
        A(f's_mov_b32 s57, {f2u(LOG2E):#x}')
        self.sel_masks(M0, M1)
        A(f'v_mov_b32 v{vmax}, 0xff800000')
        A(f'v_mov_b32 v{vl}, 0')
        for k in range(8):
            A(f'v_mov_b32 v{ACC+k}, 0')
        A('v_bfe_u32 v62, v0, 2, 2')
        A('v_lshlrev_b32 v62, 8, v62')
        A('v_lshrrev_b32 v63, 4, v0')
        A('v_lshl_add_u32 v62, v63, 4, v62')
        for n in range(pre, R):
            A(f's_waitcnt vmcnt({4*(pre-1)})')
            if n == pre: self.stamp(9, ('q',))
            issue(n)
        self.stamp(1)
        A('s_barrier')
        for j in range(4):
            A(f'ds_read_b128 v[{Q+4*j}:{Q+4*j+3}], v62 offset:{LDS_Q + 64*j}')
        self.stamp(2)
        A('s_waitcnt lgkmcnt(0)')

        def kpost(t):
            c = C[t & 1]
            tt = t & 3
            part = (t // 4) * 4 + 4 > T
            if tt == 0 and not part:
                A(f'v_cvt_pk_bf16_f32 v{G}, v{c}, v{c+1}')
                A(f'v_cvt_pk_bf16_f32 v{G+1}, v{c+2}, v{c+3}')
            else:
                if tt == 0:
                    A(f'v_mov_b32 v{G}, 0xff80ff80')
                    A(f'v_mov_b32 v{G+1}, 0xff80ff80')
                A(f'v_cvt_pk_bf16_f32 v{KT[4]}, v{c}, v{c+1}')
                A(f'v_cvt_pk_bf16_f32 v{KT[5]}, v{c+2}, v{c+3}')
                sm = 48 + 2 * tt
                A(f'v_cndmask_b32 v{G}, v{G}, v{KT[4]}, s[{sm}:{sm+1}]')
                A(f'v_cndmask_b32 v{G+1}, v{G+1}, v{KT[5]}, s[{sm}:{sm+1}]')

        upto = [R - 1]
        extra = [0]

        def wait_for(n):
            A(f's_waitcnt vmcnt({4*(upto[0]-n) + extra[0]})')

        def finish_l():
            self.dpp('v_add_f32', [vl], 'quad_perm:[1,0,3,2]')
            self.dpp('v_add_f32', [vl], 'quad_perm:[2,3,0,1]')
            self.swap_red('v_add_f32', [vl], [62], 16)
            self.swap_red('v_add_f32', [vl], [62], 32)
            A('s_lshl_b32 s45, s46, 11')
            A(f's_add_u32 s45, s45, {LDS_O}')
            A('v_lshlrev_b32 v28, 5, v0')
            A('v_add_u32 v28, s45, v28')
            A('s_lshl_b32 s45, s46, 5')
            A(f's_add_u32 s45, s45, {LDS_ML}')
            A('v_bfe_u32 v29, v0, 2, 2')
            A('v_lshlrev_b32 v29, 3, v29')
            A('v_add_u32 v29, s45, v29')
            A(f'ds_write_b64 v29, v[{vmax}:{vl}]')

        pool = (not cover) and o['pool'] > 0
        PBASE = 128 - o['pool']
        PQ = o['pool'] // 4 - 2
        NPOOL = 32 * PQ
        if pool:
            busy = {(N - 1 - k) % R for k in range(5)}
            free = [x for x in range(R) if x not in busy]
            PS = [(RB + 16 * free[2 * k], RB + 16 * free[2 * k + 1]) for k in range(3)]
        AI = [26, 27]
        vZ = 25

        def atomic(k):
            A('s_mov_b64 exec, 1')
            A(f'v_mov_b32 v{AI[k & 1]}, 1')
            A(f'buffer_atomic_add v{AI[k & 1]}, v{vZ}, s[60:63], s58 offen sc0 sc1')
            A('s_mov_b64 exec, -1')

        def pool_loads(k):
            kr, vr = PS[k % 3]
            for j in range(4):
                A(f'buffer_load_dwordx4 v[{kr+4*j}:{kr+4*j+3}], v{vK}, s[36:39], s45 offen offset:{64*j} {nt}')
            for j in range(4):
                A(f'buffer_load_dwordx4 v[{vr+4*j}:{vr+4*j+3}], v{vV}, s[40:43], s45 offen offset:{1024*j} {nt}')

        def pool_issue(k):
            A(f'v_readfirstlane_b32 s45, v{AI[k & 1]}')
            A(f's_cmp_lt_u32 s45, {NPOOL}')
            A('s_cselect_b32 s59, s59, 0')
            A(f's_mov_b32 s{64 + k % 3}, s59')
            if PQ & (PQ - 1) == 0:
                A(f's_lshr_b32 s47, s45, {PQ.bit_length() - 1}')
                A(f's_and_b32 s45, s45, {PQ - 1}')
            else:
                A(f's_mul_hi_u32 s47, s45, {(1 << 32) // PQ + 1:#x}')
                A(f's_mul_i32 s48, s47, {PQ}')
                A('s_sub_u32 s45, s45, s48')
            A('s_lshl_b32 s47, s47, 19')
            A('s_lshl_b32 s45, s45, 14')
            A('s_add_u32 s45, s45, s47')
            A('s_add_u32 s45, s45, s67')
            A('s_cmp_lg_u32 s59, 0')
            A('s_cselect_b32 s45, s45, 0x10000000')
            A('s_cselect_b32 s58, s58, 0x30000000')
            atomic(k + 1)
            pool_loads(k)

        def pool_prologue(rem):
            if rem == 3:
                self.srd(60, 28, WS_SIZE)
                A('s_lshl_b32 s58, s31, 2')
                A('s_add_u32 s58, s58, s30')
                A('s_lshl_b32 s58, s58, 8')
                A(f's_add_u32 s58, s58, {WS_CNT:#x}')
                A('s_lshl_b32 s67, s31, 24')
                A('s_lshl_b32 s45, s30, 12')
                A('s_add_u32 s67, s67, s45')
                A(f's_add_u32 s67, s67, {(PBASE + 8) * 4096:#x}')
                A('s_mov_b32 s59, 1')
                A('s_mov_b32 s64, 1')
                A('s_mov_b32 s65, 1')
                A(f'v_mov_b32 v{vZ}, 0')
                A(f's_add_u32 s45, s44, {PBASE * 4096:#x}')
                pool_loads(0)
                extra[0] += 8
            elif rem == 1:
                A(f'v_mov_b32 v24, {LDS_F}')
                self.lds_wait(24, 4, vt=23, st=45)
                atomic(2)
                A(f's_add_u32 s45, s44, {(PBASE + 4) * 4096:#x}')
                pool_loads(1)
                extra[0] += 9

        def pool_loop():
            PC = 20
            PU = [38, 39, 40, 41]
            lp = self.label('pool')
            A(f'{lp}:')
            for u in range(6):
                kr, vr = PS[u % 3]
                A('s_waitcnt vmcnt(8)')
                A(f's_cmp_eq_u32 s{64 + u % 3}, 0')
                A(f's_cbranch_scc1 {lp}_x')
                for j in range(4):
                    cc = '0' if j == 0 else f'v[{PC}:{PC+3}]'
                    A(f'v_mfma_f32_16x16x32_bf16 v[{PC}:{PC+3}], v[{kr+4*j}:{kr+4*j+3}], v[{Q+4*j}:{Q+4*j+3}], {cc}')
                pool_issue(u + 2)
                A(f'v_cvt_pk_bf16_f32 v{PU[0]}, v{PC}, v{PC+1}')
                A(f'v_cvt_pk_bf16_f32 v{PU[2]}, v{PC+2}, v{PC+3}')
                A(f'v_and_b32 v{PU[1]}, 0xffff0000, v{PU[0]}')
                A(f'v_lshlrev_b32 v{PU[0]}, 16, v{PU[0]}')
                A(f'v_and_b32 v{PU[3]}, 0xffff0000, v{PU[2]}')
                A(f'v_lshlrev_b32 v{PU[2]}, 16, v{PU[2]}')
                for k in range(4):
                    A(f'v_mul_f32 v{PU[k]}, s56, v{PU[k]}')
                self.rnd_bf16_pair(PU[0], PU[1], PC)
                self.rnd_bf16_pair(PU[2], PU[3], PC + 1)
                A(f'v_max3_f32 v{PC}, v{PU[0]}, v{PU[1]}, v{PU[2]}')
                A(f'v_max_f32 v{PC}, v{PC}, v{PU[3]}')
                A(f'v_cmp_gt_f32 vcc, v{PC}, v{vmax}')
                A(f's_cbranch_vccz {lp}_k{u}')
                self.swap_red('v_max_f32', [PC], [PC + 1], 16)
                self.swap_red('v_max_f32', [PC], [PC + 1], 32)
                A(f'v_max_f32 v{PC}, v{PC}, v{vmax}')
                A(f'v_sub_f32 v{PC+1}, v{vmax}, v{PC}')
                A(f'v_mul_f32 v{PC+1}, s57, v{PC+1}')
                A(f'v_exp_f32 v{PC+1}, v{PC+1}')
                A(f'v_mov_b32 v{vmax}, v{PC}')
                A(f'v_mul_f32 v{vnm}, s57, v{PC}')
                A(f'v_sub_f32 v{vnm}, 0, v{vnm}')
                A(f'v_mul_f32 v{vl}, v{vl}, v{PC+1}')
                self.head_to_rows(PC + 2, PC + 1)
                for k in range(8):
                    A(f'v_mul_f32 v{ACC+k}, v{ACC+k}, v{PC+2}')
                A(f'{lp}_k{u}:')
                for k in range(4):
                    A(f'v_fma_f32 v{PU[k]}, v{PU[k]}, s57, v{vnm}')
                for k in range(4):
                    A(f'v_exp_f32 v{PU[k]}, v{PU[k]}')
                self.nop(1)
                for k in range(4):
                    A(f'v_cvt_pk_bf16_f32 v{D+k}, v{PU[k]}, v{PU[k]}')
                for k in range(4):
                    A(f'v_and_b32 v{TA[k]}, v{D+k}, v{M0}')
                    A(f'v_and_b32 v{TA[k]+1}, v{D+k}, v{M1}')
                A(f'v_add_f32 v{PU[0]}, v{PU[0]}, v{PU[1]}')
                A(f'v_add_f32 v{PU[2]}, v{PU[2]}, v{PU[3]}')
                for k in range(4):
                    A(f'v_mfma_f32_16x16x16_bf16 v[{ACC}:{ACC+3}], v[{TA[k]}:{TA[k]+1}], v[{vr+4*k}:{vr+4*k+1}], v[{ACC}:{ACC+3}]')
                    A(f'v_mfma_f32_16x16x16_bf16 v[{ACC+4}:{ACC+7}], v[{TA[k]}:{TA[k]+1}], v[{vr+4*k+2}:{vr+4*k+3}], v[{ACC+4}:{ACC+7}]')
                A(f'v_add_f32 v{PU[0]}, v{PU[0]}, v{PU[2]}')
                A(f'v_fmac_f32 v{vl}, 0.25, v{PU[0]}')
            A(f's_branch {lp}')
            A(f'{lp}_x:')

        UU = [38, 39, 40, 41]
        X0 = 42

        def group_prep():
            lb = self.label('grp')
            A(f'v_lshlrev_b32 v{UU[0]}, 16, v{G}')
            A(f'v_and_b32 v{UU[1]}, 0xffff0000, v{G}')
            A(f'v_lshlrev_b32 v{UU[2]}, 16, v{G+1}')
            A(f'v_and_b32 v{UU[3]}, 0xffff0000, v{G+1}')
            for k in range(4):
                A(f'v_mul_f32 v{UU[k]}, s56, v{UU[k]}')
            self.rnd_bf16_pair(UU[0], UU[1], X0)
            self.rnd_bf16_pair(UU[2], UU[3], X0 + 1)
            A(f'v_max3_f32 v{X0}, v{UU[0]}, v{UU[1]}, v{UU[2]}')
            A(f'v_max_f32 v{X0}, v{X0}, v{UU[3]}')
            A(f'v_cmp_gt_f32 vcc, v{X0}, v{vmax}')
            A(f's_cbranch_vccz {lb}')
            self.dpp('v_max_f32', [X0], 'quad_perm:[1,0,3,2]')
            self.dpp('v_max_f32', [X0], 'quad_perm:[2,3,0,1]')
            self.swap_red('v_max_f32', [X0], [X0 + 1], 16)
            self.swap_red('v_max_f32', [X0], [X0 + 1], 32)
            A(f'v_max_f32 v{X0}, v{X0}, v{vmax}')
            A(f'v_sub_f32 v{X0+1}, v{vmax}, v{X0}')
            A(f'v_mul_f32 v{X0+1}, s57, v{X0+1}')
            A(f'v_exp_f32 v{X0+1}, v{X0+1}')
            A(f'v_mov_b32 v{vmax}, v{X0}')
            A(f'v_mul_f32 v{vnm}, s57, v{X0}')
            A(f'v_sub_f32 v{vnm}, 0, v{vnm}')
            A(f'v_mul_f32 v{vl}, v{vl}, v{X0+1}')
            self.head_to_rows(X0 + 2, X0 + 1)
            for k in range(8):
                A(f'v_mul_f32 v{ACC+k}, v{ACC+k}, v{X0+2}')
            A(f'{lb}:')
            for k in range(4):
                A(f'v_fma_f32 v{UU[k]}, v{UU[k]}, s57, v{vnm}')
            for k in range(4):
                A(f'v_exp_f32 v{UU[k]}, v{UU[k]}')
            self.nop(1)
            for k in range(4):
                A(f'v_cvt_pk_bf16_f32 v{D+k}, v{UU[k]}, v{UU[k]}')
            A(f'v_add_f32 v{UU[0]}, v{UU[0]}, v{UU[1]}')
            A(f'v_add_f32 v{UU[2]}, v{UU[2]}, v{UU[3]}')
            A(f'v_add_f32 v{vl}, v{vl}, v{UU[0]}')
            A(f'v_add_f32 v{vl}, v{vl}, v{UU[2]}')

        pend = None
        for n in range(N):
            kind, t = seq[n]
            r = RB + (n % R) * 16
            tt = t & 3
            if not cover and o['lateprio'] and n == o['lateprio']:
                lb = self.label('lp')
                A('s_cmp_eq_u32 s30, 0')
                A(f's_cbranch_scc1 {lb}')
                A('s_setprio 1')
                A(f'{lb}:')
            if pool and n >= N - 4:
                pool_prologue(N - 1 - n)
            if kind == 'k':
                c = C[t & 1]
                wait_for(n)
                for j in range(4):
                    cc = '0' if j == 0 else f'v[{c}:{c+3}]'
                    A(f'v_mfma_f32_16x16x32_bf16 v[{c}:{c+3}], v[{r+4*j}:{r+4*j+3}], v[{Q+4*j}:{Q+4*j+3}], {cc}')
            else:
                if n == N - 1 and not pool:
                    finish_l()
                qp = f'quad_perm:[{tt},{tt},{tt},{tt}] row_mask:0xf bank_mask:0xf'
                for k in range(4):
                    A(f'v_and_b32_dpp v{TA[k]}, v{D+k}, v{M0} {qp}')
                    A(f'v_and_b32_dpp v{TA[k]+1}, v{D+k}, v{M1} {qp}')
                wait_for(n)
                self.nop(1)
                for k in range(4):
                    A(f'v_mfma_f32_16x16x16_bf16 v[{ACC}:{ACC+3}], v[{TA[k]}:{TA[k]+1}], v[{r+4*k}:{r+4*k+1}], v[{ACC}:{ACC+3}]')
                    A(f'v_mfma_f32_16x16x16_bf16 v[{ACC+4}:{ACC+7}], v[{TA[k]}:{TA[k]+1}], v[{r+4*k+2}:{r+4*k+3}], v[{ACC+4}:{ACC+7}]')
            tgt = min(n + max(min(o['dist'], R), R - (n + 1) // 2), N - 1)
            if tgt > upto[0]:
                assert tgt == upto[0] + 1
                issue(tgt)
                upto[0] = tgt
            elif kind == 'k':
                self.nop(5)
            if pend is not None:
                kpost(pend)
                pend = None
            if kind == 'k':
                pend = t
            if n in prep_after:
                if pend is not None:
                    self.nop(4)
                    kpost(pend)
                    pend = None
                group_prep()
                if n == max(prep_after):
                    self.stamp(3)
        if pool:
            self.stamp(5)
            pool_loop()
            self.seg_begin('h')
            finish_l()
        else:
            if not cover: self.seg_begin('h')
            self.nop(7)
        self.stamp(4, None if not cover else ())
        A(f'ds_write_b128 v28, v[{ACC}:{ACC+3}]')
        A(f'ds_write_b128 v28, v[{ACC+4}:{ACC+7}] offset:16')
        if not cover: self.seg_end('h')

    def helper_q(self):
        A = self.A
        o = self.o
        nt = o['nt']
        spin = o['spin']
        A('s_setprio 3')
        A('v_lshlrev_b32 v1, 4, v0')
        A('v_and_b32 v2, 15, v0')
        A('v_lshrrev_b32 v3, 4, v0')
        A('s_lshr_b32 s99, s32, 2')
        A('s_waitcnt lgkmcnt(0)')
        A(f's_load_dwordx2 s[96:97], s[28:29], {WS_E:#x}')
        A('s_mov_b32 s0, s99')
        A('s_and_b32 s1, s32, 3')
        self.srd(X, 4, 1024)
        self.srd(WQ, 10, 0x400000)
        A('s_cmp_lg_u32 s33, 0')
        A('s_cbranch_scc1 L_h_b0')
        XA, XB, XP, WQR = 8, 12, 20, 64
        A('v_lshlrev_b32 v4, 17, v3')
        A('v_lshl_add_u32 v4, v2, 4, v4')
        A('s_lshl_b32 s14, s0, 19')
        A('s_lshl_b32 s15, s31, 2')
        A('s_add_u32 s15, s15, s1')
        A('s_lshl_b32 s15, s15, 8')
        A('s_add_u32 s14, s14, s15')
        A(f'buffer_load_dwordx4 v[{XA}:{XA+3}], v1, s[{X}:{X+3}], 0 offen')
        A('v_lshlrev_b32 v6, 5, v3')
        A('s_lshl_b32 s15, s0, 7')
        A(f'buffer_load_dwordx4 v[{XB}:{XB+3}], v6, s[{X}:{X+3}], s15 offen')
        A(f'buffer_load_dwordx4 v[{XB+4}:{XB+7}], v6, s[{X}:{X+3}], s15 offen offset:16')
        A('v_mov_b32 v5, 0')
        A(f'buffer_load_dword v{XP}, v5, s[{X}:{X+3}], 0 offen')
        for k in range(16):
            A(f'buffer_load_dwordx4 v[{WQR+4*k}:{WQR+4*k+3}], v4, s[{WQ}:{WQ+3}], s14 offen {nt}')
            A('s_add_u32 s14, s14, 8192')
        A(f'v_mov_b32 v7, {LDS_F}')
        A('ds_write_b32 v7, v5')
        A('ds_write_b32 v7, v5 offset:4')
        A('s_waitcnt lgkmcnt(0)')
        A('L_h_b0:')
        self.stamp(4, ('q',))
        A('s_barrier')
        self.srd(WS, 28, WS_SIZE)
        A('s_waitcnt lgkmcnt(0)')
        A(f's_add_u32 s96, s96, {TAGC & 0xffffffff:#x}')
        A(f's_addc_u32 s97, s97, {TAGC >> 32:#x}')
        A('s_cmp_lg_u32 s33, 0')
        A('s_cbranch_scc1 L_h_qgather')
        self.sel_masks(44, 45)
        A('v_lshlrev_b32 v46, 6, v2')
        A('v_lshl_add_u32 v46, v3, 4, v46')
        A('s_lshl_b32 s6, s31, 15')
        A('s_lshl_b32 s15, s0, 12')
        A('s_add_u32 s6, s6, s15')
        A('s_lshl_b32 s15, s1, 10')
        A('s_add_u32 s6, s6, s15')
        A('v_and_b32 v5, 1, v3')
        A('v_cmp_eq_u32 s[72:73], 1, v5')
        A('v_cmp_lt_u32 s[74:75], 1, v3')
        A('v_mov_b32 v26, s96')
        A('v_mov_b32 v27, s97')
        A('s_waitcnt vmcnt(16)')
        self.stamp(6, ('q',))
        V8 = list(range(28, 36))
        for k in range(4):
            A(f'v_lshlrev_b32 v{V8[2*k]}, 16, v{XA+k}')
            A(f'v_and_b32 v{V8[2*k+1]}, 0xffff0000, v{XA+k}')
        A(f'v_lshlrev_b32 v{XP}, 16, v{XP}')
        A(f'v_mov_b32 v{XP+1}, v{XP}')
        TT = list(range(48, 58))
        self.ln_moments(V8, XP, TT, 76, 77)
        self.ln_finish(TT[8], TT[9], 22, 23, 24)
        self.stamp(7, ('q',))
        V16 = list(range(28, 44))
        for k in range(8):
            A(f'v_lshlrev_b32 v{V16[2*k]}, 16, v{XB+k}')
            A(f'v_and_b32 v{V16[2*k+1]}, 0xffff0000, v{XB+k}')
        self.ln_apply(V16, V16, 22, 23, 24)
        QA = 48
        for k in range(16):
            a = 56 + 2 * (k & 3)
            A(f'v_cvt_pk_bf16_f32 v24, v{V16[k]}, v{V16[k]}')
            A(f'v_and_b32 v{a}, v24, v44')
            A(f'v_and_b32 v{a+1}, v24, v45')
            A(f's_waitcnt vmcnt({15 - k})')
            if k == 0: self.stamp(8, ('q',))
            if k == 15: self.stamp(9, ('q',))
            self.nop(1)
            c0 = '0' if k == 0 else f'v[{QA}:{QA+3}]'
            c1 = '0' if k == 0 else f'v[{QA+4}:{QA+7}]'
            A(f'v_mfma_f32_16x16x16_bf16 v[{QA}:{QA+3}], v[{a}:{a+1}], v[{WQR+4*k}:{WQR+4*k+1}], {c0}')
            A(f'v_mfma_f32_16x16x16_bf16 v[{QA+4}:{QA+7}], v[{a}:{a+1}], v[{WQR+4*k+2}:{WQR+4*k+3}], {c1}')
        self.nop(8)
        for k in range(4):
            A(f'v_cndmask_b32 v{QA+k}, v{QA+k}, v{QA+4+k}, s[74:75]')
        A(f'v_cndmask_b32 v24, v{QA}, v{QA+2}, s[72:73]')
        A(f'v_cndmask_b32 v25, v{QA+1}, v{QA+3}, s[72:73]')
        if o['qlocal']:
            A(f's_add_u32 s15, s6, {WS_QL:#x}')
            A(f'buffer_store_dwordx4 v[24:27], v46, s[{WS}:{WS+3}], s15 offen')
        A(f'buffer_store_dwordx4 v[24:27], v46, s[{WS}:{WS+3}], s6 offen offset:{WS_QP} sc1')
        self.stamp(1)
        A('v_lshlrev_b32 v5, 10, v0')
        A('s_lshl_b32 s14, s31, 15')
        A('s_mov_b32 exec_hi, 0')
        A(f's_mov_b32 s15, {spin}')
        lp = self.label('probe')
        A(f'{lp}:')
        A(f's_sleep {o["pollsleep"]}')
        A(f'buffer_load_dwordx2 v[28:29], v5, s[{WS}:{WS+3}], s14 offen offset:{WS_QP+1016} sc1')
        A('s_sub_u32 s15, s15, 1')
        A('s_cmp_eq_u32 s15, 0')
        A(f's_cbranch_scc1 {lp}_x')
        A('s_waitcnt vmcnt(0)')
        A('v_cmp_ne_u64 vcc, s[96:97], v[28:29]')
        A('s_and_b64 exec, exec, vcc')
        A(f's_cbranch_execnz {lp}')
        A(f'{lp}_x:')
        A('s_mov_b64 exec, -1')
        A('v_mov_b32 v6, 1')
        A('ds_write_b32 v7, v6')
        self.stamp(5, ('q',))
        A('L_h_qgather:')
        A(f'v_mov_b32 v7, {LDS_F}')
        A('s_lshl_b32 s14, s31, 15')
        A('s_lshl_b32 s15, s33, 11')
        A('s_add_u32 s14, s14, s15')
        self.lds_wait(7, 0)
        A(f's_mov_b32 s15, {spin}')
        lp = self.label('pollqd')
        if o['qlocal']:
            A(f's_add_u32 s8, s14, {WS_QL:#x}')
            A(f's_branch {lp}_f')
        A(f'{lp}:')
        A('s_mov_b32 s8, s14')
        A(f'{lp}_f:')
        for k in range(8):
            A(f'buffer_load_dwordx4 v[{64+8*k}:{67+8*k}], v1, s[{WS}:{WS+3}], s8 offen offset:{WS_QP} sc1')
            A(f'buffer_load_dwordx4 v[{68+8*k}:{71+8*k}], v1, s[{WS}:{WS+3}], s8 offen offset:{WS_QP+1024} sc1')
            if k < 7:
                A('s_add_u32 s8, s8, 4096')
        A('s_sub_u32 s15, s15, 1')
        A('s_cmp_eq_u32 s15, 0')
        A(f's_cbranch_scc1 {lp}_x')
        for k in range(16):
            A(f's_waitcnt vmcnt({15-k})')
            if k == 0:
                A(f'v_cmp_ne_u64 s[76:77], s[96:97], v[{66+4*k}:{67+4*k}]')
            else:
                A(f'v_cmp_ne_u64 vcc, s[96:97], v[{66+4*k}:{67+4*k}]')
                A('s_or_b64 s[76:77], s[76:77], vcc')
        A('s_and_b64 exec, exec, s[76:77]')
        A(f's_cbranch_execz {lp}_x')
        A('s_sleep 2')
        A(f's_branch {lp}')
        A(f'{lp}_x:')
        A('s_mov_b64 exec, -1')
        A('s_waitcnt vmcnt(0)')
        self.stamp(2)
        for k in range(1, 8):
            A(f'v_pk_add_f32 v[64:65], v[64:65], v[{64+8*k}:{65+8*k}]')
            A(f'v_pk_add_f32 v[68:69], v[68:69], v[{68+8*k}:{69+8*k}]')
        A('v_cvt_pk_bf16_f32 v16, v64, v65')
        A('v_cvt_pk_bf16_f32 v17, v68, v69')
        A('s_lshl_b32 s15, s33, 9')
        A('v_lshl_add_u32 v5, v0, 2, s15')
        A(f'ds_write_b32 v5, v16 offset:{LDS_Q}')
        A(f'ds_write_b32 v5, v17 offset:{LDS_Q+256}')
        A('s_waitcnt lgkmcnt(0)')
        self.stamp(3)
        A('s_barrier')
        A('s_cmp_lg_u32 s33, 1')
        A('s_cbranch_scc1 L_pref')
        A('v_mov_b32 v24, -1'); A('v_mov_b32 v25, -1'); A('v_mov_b32 v26, -1'); A('v_mov_b32 v27, -1')
        A('s_lshl_b32 s14, s3, 11')
        A(f's_add_u32 s14, s14, {WS_P1:#x}')
        for k in range(2):
            A(f'buffer_store_dwordx4 v[24:27], v1, s[{WS}:{WS+3}], s14 offen offset:{1024*k} sc1')
        A('s_lshl_b32 s14, s31, 2')
        A('s_add_u32 s14, s14, s34')
        A('s_lshl_b32 s14, s14, 11')
        A('s_lshl_b32 s15, s35, 8')
        A('s_add_u32 s14, s14, s15')
        A(f's_add_u32 s14, s14, {WS_P2:#x}')
        A('v_lshlrev_b32 v5, 2, v0')
        A(f'buffer_store_dword v24, v5, s[{WS}:{WS+3}], s14 offen sc1')
        A('s_cmp_ge_u32 s32, 16')
        A('s_cbranch_scc1 L_h1_nohv')
        A(f's_mul_i32 s14, s31, {HVS}')
        A(f's_add_u32 s14, s14, {WS_HV:#x}')
        A('s_lshl_b32 s15, s32, 7')
        A('v_add_u32 v5, s15, v1')
        A('s_lshl_b32 s15, s32, 4')
        A('s_add_u32 s15, s15, 2048')
        A('v_mov_b32 v6, s15')
        A('v_cmp_eq_u32 vcc, 8, v0')
        self.nop(2)
        A('v_cndmask_b32 v5, v5, v6, vcc')
        A('s_mov_b64 exec, 0x1ff')
        A(f'buffer_store_dwordx4 v[24:27], v5, s[{WS}:{WS+3}], s14 offen sc1')
        A('s_mov_b64 exec, -1')
        A('L_h1_nohv:')
        A('s_cmp_lg_u32 s32, 0')
        A('s_cbranch_scc1 L_h1_nocnt')
        A('s_lshl_b32 s14, s31, 10')
        A(f's_add_u32 s14, s14, {WS_CNT:#x}')
        A('v_mov_b32 v32, 0'); A('v_mov_b32 v33, 0'); A('v_mov_b32 v34, 0'); A('v_mov_b32 v35, 0')
        A(f'buffer_store_dwordx4 v[32:35], v1, s[{WS}:{WS+3}], s14 offen sc1')
        A('L_h1_nocnt:')
        A('s_getreg_b32 s8, hwreg(HW_REG_XCC_ID, 0, 4)')
        A('v_mov_b32 v28, s96')
        A('v_mov_b32 v29, s97')
        A('v_mov_b32 v30, s8')
        A('v_mov_b32 v31, 0')
        A('v_mov_b32 v5, 0')
        A('s_lshl_b32 s14, s3, 4')
        A(f's_add_u32 s14, s14, {WS_F:#x}')
        A('s_mov_b64 exec, 1')
        A('s_waitcnt vmcnt(0)')
        A(f'buffer_store_dwordx4 v[28:31], v5, s[{WS}:{WS+3}], s14 offen sc1')
        A('s_mov_b64 exec, -1')
        A(f's_mov_b32 s14, {WS_F:#x}')
        A(f's_mov_b32 s15, {spin}')
        lp = self.label('pollall')
        A(f'{lp}:')
        A('s_sleep 127')
        A('s_sleep 127')
        for k in range(4):
            A(f'buffer_load_dwordx2 v[{24+2*k}:{25+2*k}], v1, s[{WS}:{WS+3}], s14 offen offset:{1024*k} sc1')
        A('s_sub_u32 s15, s15, 1')
        A('s_cmp_eq_u32 s15, 0')
        A(f's_cbranch_scc1 {lp}_x')
        A('s_waitcnt vmcnt(0)')
        for k in range(4):
            if k == 0:
                A(f'v_cmp_ne_u64 s[76:77], s[96:97], v[{24+2*k}:{25+2*k}]')
            else:
                A(f'v_cmp_ne_u64 vcc, s[96:97], v[{24+2*k}:{25+2*k}]')
                A('s_or_b64 s[76:77], s[76:77], vcc')
        A('s_and_b64 exec, exec, s[76:77]')
        A(f's_cbranch_execnz {lp}')
        A(f'{lp}_x:')
        A('s_mov_b64 exec, -1')
        A('v_mov_b32 v6, 1')
        A('ds_write_b32 v7, v6 offset:4')
        A('s_lshl_b32 s14, s31, 9')
        A(f's_add_u32 s14, s14, {WS_F:#x}')
        A('s_mov_b32 exec_hi, 0')
        A(f'buffer_load_dwordx4 v[24:27], v1, s[{WS}:{WS+3}], s14 offen sc1')
        A('s_waitcnt vmcnt(0)')
        A('v_cmp_ne_u64 s[76:77], s[96:97], v[24:25]')
        A('v_cmp_ne_u32 vcc, s8, v26')
        A('s_or_b64 s[76:77], s[76:77], vcc')
        A('s_cselect_b32 s14, 0, 1')
        if not o['fast']:
            A('s_mov_b32 s14, 0')
        A('s_mov_b64 exec, -1')
        A('v_mov_b32 v6, s14')
        A('ds_write_b32 v7, v6 offset:8')

    def helper_tail(self):
        A = self.A
        o = self.o
        nt = o['nt']
        spin = o['spin']
        WOR, WOT, XR, B2R, XF = 64, 80, 108, 110, 128
        vOA, vMLA, vP1o, vP1m, vWw, vWr, vP2, vHw, vHo = 140, 141, 142, 143, 144, 145, 146, 147, 149
        A('s_setprio 3')
        self.srd(WO, 12, 0x400000)
        self.srd(W1, 16, 3584)
        self.srd(B1, 18, 3584)
        self.srd(W2, 20, 3584)
        self.srd(B2, 22, 2)
        self.srd(OUT, 24, 1024)
        A(f's_mov_b32 s9, {f2u(LOG2E):#x}')
        A('v_lshlrev_b32 v1, 4, v0')
        A('v_and_b32 v8, 7, v0')
        A('v_lshrrev_b32 v9, 3, v0')
        A('v_and_b32 v10, 31, v0')
        A('v_lshlrev_b32 v4, 12, v8')
        A('v_lshl_add_u32 v4, v9, 4, v4')
        A('s_lshl_b32 s8, s31, 2')
        A('s_add_u32 s8, s8, s34')
        A('s_lshl_b32 s14, s8, 17')
        A('s_lshl_b32 s15, s33, 15')
        A('s_add_u32 s14, s14, s15')
        A('s_lshl_b32 s15, s35, 7')
        A('s_add_u32 s14, s14, s15')
        for k in range(4):
            A(f'buffer_load_dwordx4 v[{WOR+4*k}:{WOR+4*k+3}], v4, s[{WO}:{WO+3}], s14 offen offset:{1024*k} {nt}')
        self.mlp_weights_load()
        A('v_lshlrev_b32 v5, 3, v8')
        A('s_and_b32 s14, s32, 15')
        A('s_lshl_b32 s14, s14, 6')
        A(f'buffer_load_dwordx2 v[{XR}:{XR+1}], v5, s[{X}:{X+3}], s14 offen')
        A('v_mov_b32 v5, 0')
        A(f'buffer_load_ushort v{B2R}, v5, s[{B2}:{B2+3}], 0 offen')
        A('s_lshl_b32 s14, s33, 9')
        A(f's_add_u32 s14, s14, {LDS_O}')
        A(f'v_lshl_add_u32 v{vOA}, v10, 4, s14')
        A('s_lshl_b32 s14, s33, 3')
        A(f's_add_u32 s14, s14, {LDS_ML}')
        A(f'v_mov_b32 v{vMLA}, s14')
        A(f'v_lshlrev_b32 v{vP1o}, 11, v9')
        A('s_lshl_b32 s14, s33, 7')
        A(f'v_lshl_add_u32 v{vP1o}, v8, 4, v{vP1o}')
        A(f'v_add_u32 v{vP1o}, s14, v{vP1o}')
        A('s_lshl_b32 s14, s33, 8')
        A(f's_add_u32 s14, s14, {LDS_W}')
        A(f'v_lshl_add_u32 v{vWw}, v9, 5, s14')
        A(f'v_lshlrev_b32 v{vWr}, 2, v0')
        A('v_lshlrev_b32 v4, 13, v9')
        A(f'v_lshl_add_u32 v{vP2}, v8, 4, v4')
        A('s_and_b32 s15, s32, 15')
        A('s_lshl_b32 s14, s15, 7')
        A(f's_add_u32 s6, s14, {WS_P2:#x}')
        A('s_add_u32 s7, s6, 4096')
        A(f's_mul_i32 s25, s31, {HVS}')
        A(f's_add_u32 s25, s25, {WS_HV:#x}')
        A('v_add_u32 v148, s14, v1')
        A('s_lshl_b32 s15, s15, 4')
        A('s_add_u32 s15, s15, 2048')
        A('v_mov_b32 v4, s15')
        A('v_cmp_eq_u32 s[48:49], 8, v0')
        self.nop(2)
        A('v_cndmask_b32 v148, v148, v4, s[48:49]')
        A('s_lshr_b32 s14, s2, 1')
        A('s_lshl_b32 s14, s14, 4')
        A('v_mov_b32 v4, s14')
        A(f'v_add_u32 v{vHw}, 0x800, v1')
        A('v_cmp_lt_u32 vcc, 15, v0')
        A(f'v_mov_b32 v{vHo}, {LDS_H}')
        A('s_nop 0')
        A(f'v_cndmask_b32 v{vHw}, v{vHw}, v4, vcc')
        A('s_lshl_b32 s14, s3, 11')
        A('s_lshl_b32 s15, s33, 9')
        A('s_add_u32 s14, s14, s15')
        A(f's_add_u32 s16, s14, {WS_P1:#x}')
        A('s_lshl_b32 s14, s31, 16')
        A('s_lshl_b32 s15, s34, 9')
        A('s_add_u32 s14, s14, s15')
        A(f's_add_u32 s10, s14, {WS_P1:#x}')
        A('s_add_u32 s11, s10, 16384')
        A('s_add_u32 s12, s10, 32768')
        A('s_add_u32 s13, s10, 49152')
        A('s_lshl_b32 s14, s8, 11')
        A('s_lshl_b32 s15, s35, 8')
        A('s_add_u32 s14, s14, s15')
        A(f's_add_u32 s17, s14, {WS_P2:#x}')
        A('s_waitcnt vmcnt(0)')
        A('s_mov_b32 s14, 0x05040100')
        A('s_mov_b32 s15, 0x07060302')
        for p in range(2):
            for dw in range(4):
                lo, hi = WOR + 8 * p + dw, WOR + 8 * p + 4 + dw
                A(f'v_perm_b32 v{WOT+8*p+2*dw}, v{hi}, v{lo}, s14')
                A(f'v_perm_b32 v{WOT+8*p+2*dw+1}, v{hi}, v{lo}, s15')
        self.mlp_weights_prep()
        for k in range(2):
            A(f'v_lshlrev_b32 v{XF+2*k}, 16, v{XR+k}')
            A(f'v_and_b32 v{XF+2*k+1}, 0xffff0000, v{XR+k}')
        A(f'v_lshlrev_b32 v{B2R}, 16, v{B2R}')
        A('v_cmp_lt_u32 s[18:19], 31, v0')
        if o['warm']:
            A('s_cmp_lg_u32 s33, 0')
            A('s_cbranch_scc1 L_nowarm')
            self.warm_pass(['h', 'a', 'b', 'c', 'd1', 'e', 'f', 'g'])
            self.srd(WS, 28, WS_SIZE)
            A('L_nowarm:')
        for k in range(4):
            A(f's_mov_b64 s[{72+2*k}:{73+2*k}], -1')
        A('s_waitcnt lgkmcnt(0)')
        A('s_barrier')
        self.seg_begin('a')
        self.stamp(4, (True,))
        NP = NPART
        ML, OO = 16, 28
        A(f'ds_read_b32 v14, v{vHo} offset:{LDS_F + 8 - LDS_H}')
        for w in range(NP):
            A(f'ds_read_b64 v[{ML+2*w}:{ML+2*w+1}], v{vMLA} offset:{32*w}')
        for w in range(NP):
            A(f'ds_read_b128 v[{OO+4*w}:{OO+4*w+3}], v{vOA} offset:{2048*w}')
        A(f's_waitcnt lgkmcnt({NP})')
        A(f'v_max3_f32 v12, v{ML}, v{ML+2}, v{ML+4}')
        A(f'v_max3_f32 v13, v{ML+6}, v{ML+8}, v{ML+10}')
        A('v_max_f32 v12, v12, v13')
        A('v_readfirstlane_b32 s24, v14')
        A('v_mul_f32 v13, s9, v12')
        for w in range(NP):
            A(f'v_fma_f32 v{ML+2*w}, v{ML+2*w}, s9, -v13')
        for w in range(NP):
            A(f'v_exp_f32 v{ML+2*w}, v{ML+2*w}')
        A(f'v_mul_f32 v13, v{ML}, v{ML+1}')
        for w in range(1, NP):
            A(f'v_fmac_f32 v13, v{ML+2*w}, v{ML+2*w+1}')
        A('s_waitcnt lgkmcnt(0)')
        for c in range(4):
            A(f'v_mul_f32 v{52+c}, v{ML}, v{OO+c}')
        for w in range(1, NP):
            for c in range(4):
                A(f'v_fmac_f32 v{52+c}, v{ML+2*w}, v{OO+4*w+c}')
        A('v_cvt_pk_bf16_f32 v52, v52, v53')
        A('v_cvt_pk_bf16_f32 v53, v54, v55')
        A('v_min_u32 v54, 0xfffffffe, v12')
        A('v_min_u32 v55, 0xfffffffe, v13')
        self.canon([52, 53])
        self.seg_end('a')
        A('s_mov_b32 exec_hi, 0')
        A('s_cmp_eq_u32 s24, 0')
        lb = self.label('st')
        A(f's_cbranch_scc1 {lb}')
        A(f'buffer_store_dwordx4 v[52:55], v1, s[{WS}:{WS+3}], s16 offen')
        A(f's_branch {lb}_x')
        A(f'{lb}:')
        A(f'buffer_store_dwordx4 v[52:55], v1, s[{WS}:{WS+3}], s16 offen sc1')
        A(f'{lb}_x:')
        self.stamp(5, (True,))
        GO = 16
        A(f's_mov_b32 s15, {spin}')
        lp = self.label('poll1')
        A(f'{lp}:')
        for k in range(4):
            A(f's_mov_b64 exec, s[{72+2*k}:{73+2*k}]')
            A(f's_cbranch_execz {lp}_l{k}')
            A(f'buffer_load_dwordx4 v[{GO+4*k}:{GO+4*k+3}], v{vP1o}, s[{WS}:{WS+3}], s{10+k} offen sc1')
            A(f'{lp}_l{k}:')
        A('s_sub_u32 s15, s15, 1')
        A('s_cmp_eq_u32 s15, 0')
        A(f's_cbranch_scc1 {lp}_x')
        A('s_waitcnt vmcnt(0)')
        for k in range(4):
            A(f's_mov_b64 exec, s[{72+2*k}:{73+2*k}]')
            A(f'v_max3_u32 v12, v{GO+4*k}, v{GO+4*k+1}, v{GO+4*k+2}')
            A(f'v_max_u32 v12, v12, v{GO+4*k+3}')
            A(f'v_cmp_eq_u32 s[{72+2*k}:{73+2*k}], -1, v12')
        A('s_or_b64 s[20:21], s[72:73], s[74:75]')
        A('s_or_b64 vcc, s[76:77], s[78:79]')
        A('s_or_b64 s[20:21], s[20:21], vcc')
        A(f's_cbranch_scc0 {lp}_x')
        A('s_bcnt1_i32_b64 s14, s[20:21]')
        A('s_cmp_gt_u32 s14, 16')
        A(f's_cbranch_scc1 {lp}_s')
        if o['sleep_few']:
            A(f's_sleep {o["sleep_few"]}')
        A(f's_branch {lp}')
        A(f'{lp}_s:')
        A(f's_sleep {o["sleep_many"]}')
        A(f's_branch {lp}')
        A(f'{lp}_x:')
        A('s_mov_b64 exec, -1')
        A('s_waitcnt vmcnt(0)')
        self.seg_begin('b')
        self.stamp(6, (True,))
        A(f'v_max3_f32 v12, v{GO+2}, v{GO+6}, v{GO+10}')
        A(f'v_max_f32 v12, v12, v{GO+14}')
        for k in range(2):
            A(f'v_lshlrev_b32 v{32+4*k}, 16, v{GO+4*k}')
            A(f'v_and_b32 v{33+4*k}, 0xffff0000, v{GO+4*k}')
        A('v_max_f32_dpp v12, v12, v12 row_ror:8 row_mask:0xf bank_mask:0xf')
        A('v_mov_b32 v13, v12')
        for k in range(2):
            A(f'v_lshlrev_b32 v{34+4*k}, 16, v{GO+4*k+1}')
            A(f'v_and_b32 v{35+4*k}, 0xffff0000, v{GO+4*k+1}')
        A('v_permlane16_swap_b32 v12, v13')
        for k in range(2, 4):
            A(f'v_lshlrev_b32 v{44+4*k}, 16, v{GO+4*k}')
            A(f'v_and_b32 v{45+4*k}, 0xffff0000, v{GO+4*k}')
        A('v_max_f32 v12, v12, v13')
        A('v_mov_b32 v13, v12')
        for k in range(2, 4):
            A(f'v_lshlrev_b32 v{46+4*k}, 16, v{GO+4*k+1}')
            A(f'v_and_b32 v{47+4*k}, 0xffff0000, v{GO+4*k+1}')
        A('v_permlane32_swap_b32 v12, v13')
        self.nop(2)
        A('v_max_f32 v12, v12, v13')
        A('v_mul_f32 v12, s9, v12')
        OU = [32, 36, 52, 56]
        for k in range(4):
            A(f'v_fma_f32 v{GO+4*k+2}, v{GO+4*k+2}, s9, -v12')
        for k in range(4):
            A(f'v_exp_f32 v{GO+4*k+2}, v{GO+4*k+2}')
        self.nop(1)
        A(f'v_mul_f32 v44, v{GO+2}, v{GO+3}')
        A(f'v_pk_mul_f32 v[40:41], v[{OU[0]}:{OU[0]+1}], v[{GO+2}:{GO+3}] op_sel_hi:[1,0]')
        A(f'v_pk_mul_f32 v[42:43], v[{OU[0]+2}:{OU[0]+3}], v[{GO+2}:{GO+3}] op_sel_hi:[1,0]')
        for k in range(1, 4):
            f = GO + 4 * k + 2
            A(f'v_fmac_f32 v44, v{f}, v{f+1}')
            A(f'v_pk_fma_f32 v[40:41], v[{OU[k]}:{OU[k]+1}], v[{f}:{f+1}], v[40:41] op_sel_hi:[1,0,1]')
            A(f'v_pk_fma_f32 v[42:43], v[{OU[k]+2}:{OU[k]+3}], v[{f}:{f+1}], v[42:43] op_sel_hi:[1,0,1]')
        self.nop(1)
        R5 = [44, 40, 41, 42, 43]
        T5 = [45, 46, 47, 48, 49]
        self.dpp('v_add_f32', R5, 'row_ror:8')
        self.swap_red('v_add_f32', R5, T5, 16)
        self.swap_red('v_add_f32', R5, T5, 32)
        A('v_rcp_f32 v44, v44')
        self.nop(1)
        for c in range(4):
            A(f'v_mul_f32 v{40+c}, v{40+c}, v44')
        A('v_cvt_pk_bf16_f32 v40, v40, v41')
        A('v_cvt_pk_bf16_f32 v41, v42, v43')
        for c in range(8):
            A(f'v_dot2_f32_bf16 v{16+c}, v40, v{WOT+c}, 0')
        for c in range(8):
            A(f'v_dot2_f32_bf16 v{16+c}, v41, v{WOT+8+c}, v{16+c}')
        R8 = list(range(16, 24))
        self.dpp('v_add_f32', R8, 'quad_perm:[1,0,3,2]')
        self.dpp('v_add_f32', R8, 'quad_perm:[2,3,0,1]')
        self.dpp('v_add_f32', R8, 'row_half_mirror')
        A(f'ds_write_b128 v{vWw}, v[16:19]')
        A(f'ds_write_b128 v{vWw}, v[20:23] offset:16')
        A('s_waitcnt lgkmcnt(0)')
        self.seg_end('b')
        A('s_barrier')
        A('s_cmp_lg_u32 s33, 0')
        A('s_cbranch_scc1 L_hop2')
        self.seg_begin('c')
        for w in range(4):
            A(f'ds_read_b32 v{16+w}, v{vWr} offset:{LDS_W + 256*w}')
        A('s_waitcnt lgkmcnt(0)')
        A('v_add_f32 v16, v16, v17')
        A('v_add_f32 v18, v18, v19')
        A('v_add_f32 v16, v16, v18')
        self.canon([16])
        self.seg_end('c')
        A(f'buffer_store_dword v16, v{vWr}, s[{WS}:{WS+3}], s17 offen sc1')
        A('L_hop2:')
        self.stamp(7, (True,))
        A('s_sub_u32 s14, s33, 1')
        A(f's_cmp_ge_u32 s14, {o["nred"]}')
        A('s_cbranch_scc1 L_hop2b')
        A('s_cmp_ge_u32 s32, 16')
        A('s_cbranch_scc1 L_hop2b')
        if o['nred'] > 1:
            A('s_cmp_eq_u32 s14, 0')
            A('s_cbranch_scc1 L_red')
            A('s_sleep 3')
            A('s_cmp_eq_u32 s14, 1')
            A('s_cbranch_scc1 L_red')
            A('s_sleep 3')
            A('L_red:')
        A(f's_mov_b32 s15, {spin}')
        lp = self.label('poll2a')
        A(f'{lp}:')
        for k in range(4):
            A(f'buffer_load_dwordx4 v[{16+4*k}:{19+4*k}], v{vP2}, s[{WS}:{WS+3}], s{6+(k>>1)} offen offset:{2048*(k&1)} sc1')
        A('s_sub_u32 s15, s15, 1')
        A('s_cmp_eq_u32 s15, 0')
        A(f's_cbranch_scc1 {lp}_x')
        A('s_waitcnt vmcnt(0)')
        A('v_max3_u32 v12, v16, v17, v18')
        A('v_max3_u32 v13, v19, v20, v21')
        A('v_max3_u32 v12, v12, v22, v23')
        A('v_max3_u32 v13, v13, v24, v25')
        A('v_max3_u32 v12, v12, v26, v27')
        A('v_max3_u32 v13, v13, v28, v29')
        A('v_max3_u32 v12, v12, v30, v31')
        A('v_max_u32 v12, v12, v13')
        A('v_cmp_eq_u32 vcc, -1, v12')
        A('s_and_b64 exec, exec, vcc')
        A(f's_cbranch_execnz {lp}')
        A(f'{lp}_x:')
        A('s_mov_b64 exec, -1')
        A('s_waitcnt vmcnt(0)')
        self.seg_begin('d1')
        A('v_pk_add_f32 v[16:17], v[16:17], v[20:21]')
        A('v_pk_add_f32 v[18:19], v[18:19], v[22:23]')
        A('v_pk_add_f32 v[24:25], v[24:25], v[28:29]')
        A('v_pk_add_f32 v[26:27], v[26:27], v[30:31]')
        A('v_pk_add_f32 v[16:17], v[16:17], v[24:25]')
        A('v_pk_add_f32 v[18:19], v[18:19], v[26:27]')
        R4 = [16, 17, 18, 19]
        self.nop(1)
        self.dpp('v_add_f32', R4, 'row_ror:8')
        self.swap_red('v_add_f32', R4, [20, 21, 22, 23], 16)
        self.swap_red('v_add_f32', R4, [20, 21, 22, 23], 32)
        self.rnd_bf16_pair(16, 17, 20)
        self.rnd_bf16_pair(18, 19, 21)
        A(f'v_pk_add_f32 v[16:17], v[16:17], v[{XF}:{XF+1}]')
        A(f'v_pk_add_f32 v[18:19], v[18:19], v[{XF+2}:{XF+3}]')
        self.rnd_bf16_pair(16, 17, 20)
        self.rnd_bf16_pair(18, 19, 21)
        A('v_readfirstlane_b32 s14, v16')
        self.nop(2)
        for c in range(4):
            A(f'v_subrev_f32 v{20+c}, s14, v{16+c}')
        A('v_add_f32 v25, v20, v21')
        A('v_mul_f32 v26, v20, v20')
        A('v_add_f32 v24, v22, v23')
        A('v_fmac_f32 v26, v21, v21')
        A('v_add_f32 v25, v25, v24')
        A('v_fmac_f32 v26, v22, v22')
        A('v_mov_b32 v24, s14')
        A('v_fmac_f32 v26, v23, v23')
        A('v_cndmask_b32 v16, v16, v24, s[48:49]')
        self.dpp('v_add_f32', [25, 26], 'quad_perm:[1,0,3,2]')
        self.dpp('v_add_f32', [25, 26], 'quad_perm:[2,3,0,1]')
        self.dpp('v_add_f32', [25, 26], 'row_half_mirror')
        self.canon([25, 26])
        A('v_cndmask_b32 v17, v17, v25, s[48:49]')
        A('v_cndmask_b32 v18, v18, v26, s[48:49]')
        self.seg_end('d1')
        A('s_mov_b64 exec, 0x1ff')
        A('s_cmp_eq_u32 s24, 0')
        lb = self.label('st')
        A(f's_cbranch_scc1 {lb}')
        A(f'buffer_store_dwordx4 v[16:19], v148, s[{WS}:{WS+3}], s25 offen')
        A(f's_branch {lb}_x')
        A(f'{lb}:')
        A(f'buffer_store_dwordx4 v[16:19], v148, s[{WS}:{WS+3}], s25 offen sc1')
        A(f'{lb}_x:')
        A('s_mov_b64 exec, -1')
        A('L_hop2b:')
        A('s_cmp_lg_u32 s33, 0')
        A('s_cbranch_scc1 L_b4')
        A('s_mov_b64 exec, 0x1ffff')
        A(f's_mov_b32 s15, {spin}')
        lp = self.label('poll2b')
        A(f'{lp}:')
        A(f'buffer_load_dwordx4 v[16:19], v{vHw}, s[{WS}:{WS+3}], s25 offen sc1')
        A('s_sub_u32 s15, s15, 1')
        A('s_cmp_eq_u32 s15, 0')
        A(f's_cbranch_scc1 {lp}_x')
        A('s_waitcnt vmcnt(0)')
        A('v_max3_u32 v12, v16, v17, v18')
        A('v_max_u32 v12, v12, v19')
        A('v_cmp_eq_u32 vcc, -1, v12')
        A('s_and_b64 exec, exec, vcc')
        A(f's_cbranch_execz {lp}_x')
        if o['sleep2b']:
            A(f's_sleep {o["sleep2b"]}')
        A(f's_branch {lp}')
        A(f'{lp}_x:')
        A('s_mov_b64 exec, -1')
        A('s_waitcnt vmcnt(0)')
        self.seg_begin('e')
        self.stamp(8, (True,))
        A('v_readlane_b32 s14, v16, 0')
        A('v_readlane_b32 s72, v16, 16')
        A('v_readlane_b32 s73, v17, 16')
        A('v_readlane_b32 s74, v18, 16')
        A('v_readlane_b32 s75, v19, 16')
        A('v_subrev_f32 v20, s14, v16')
        A('v_mul_f32 v21, 0x42000000, v20')
        A('v_fma_f32 v22, 2.0, v17, v21')
        A('v_fmac_f32 v18, v20, v22')
        A('v_add_f32 v17, v17, v21')
        A('s_bitcmp1_b32 s2, 0')
        A('s_cselect_b32 s72, s74, s72')
        A('s_cselect_b32 s73, s75, s73')
        self.dpp('v_add_f32', [18, 17], 'quad_perm:[1,0,3,2]')
        self.dpp('v_add_f32', [18, 17], 'quad_perm:[2,3,0,1]')
        self.dpp('v_add_f32', [18, 17], 'row_half_mirror')
        self.dpp('v_add_f32', [18, 17], 'row_mirror')
        A('v_mov_b32 v24, s72')
        A('v_mov_b32 v25, s73')
        A('v_readlane_b32 s76, v17, 0')
        A('v_readlane_b32 s77, v18, 0')
        inv = f2u(1.0 / 512)
        A(f'v_mov_b32 v48, {inv:#x}')
        self.nop(1)
        A('v_mul_f32 v49, s77, v48')
        A('v_mul_f32 v48, s76, v48')
        A('v_fma_f32 v49, -v48, v48, v49')
        A('v_max_f32 v49, 0, v49')
        A('v_add_f32 v48, s14, v48')
        mean, var = 48, 49
        self.ln_finish(mean, var, 12, 13, 14)
        self.ln_apply([24, 25], [36, 37], 12, 13, 14)
        A(f'v_sub_f32 v{mean}, v{mean}, v12')
        A(f'v_mul_f32 v{var}, v{var}, v13')
        A(f'v_mul_f32 v{mean}, v{mean}, v13')
        A(f'v_mul_f32 v{var}, v{var}, v13')
        self.ln_finish(mean, var, 12, 13, 14)
        self.ln_apply([36, 37], [36, 37], 12, 13, 14)
        A(f'ds_write_b64 v{vHo}, v[36:37]')
        A('s_waitcnt lgkmcnt(0)')
        self.seg_end('e')

    def final(self):
        A = self.A
        o = self.o
        B2R, vHo = 110, 149
        A('s_setprio 0')
        A('s_barrier')
        self.seg_begin('f')
        A(f'ds_read_b64 v[36:37], v{vHo}')
        A('s_waitcnt lgkmcnt(0)')
        self.stamp(9, (True,))
        YA = [30, 31]
        ch = [(d, p) for d in range(2) for p in range(2)]
        U = {c: 40 + 6 * n for n, c in enumerate(ch)}

        def each(f):
            for c in ch:
                f(c[0], c[1], U[c], U[c] + 2, U[c] + 4)
        each(lambda d, p, u, t, z: A(f'v_pk_mul_f32 v[{u}:{u+1}], v[{W1F+2*p}:{W1F+2*p+1}], v[36:37] op_sel:[0,{d}] op_sel_hi:[1,{d}]'))
        each(lambda d, p, u, t, z: self.rnd_bf16_pair(u, u + 1, t))
        each(lambda d, p, u, t, z: A(f'v_pk_add_f32 v[{u}:{u+1}], v[{u}:{u+1}], v[{B1F+2*p}:{B1F+2*p+1}]'))
        each(lambda d, p, u, t, z: self.rnd_bf16_pair(u, u + 1, t))
        each(lambda d, p, u, t, z: A(f'v_pk_mul_f32 v[{t}:{t+1}], v[{u}:{u+1}], v[{u}:{u+1}]'))
        each(lambda d, p, u, t, z: A(f'v_pk_fma_f32 v[{t}:{t+1}], v[{t}:{t+1}], v[{GK1}:{GK1+1}], v[{GK0}:{GK0+1}]'))
        each(lambda d, p, u, t, z: A(f'v_pk_mul_f32 v[{z}:{z+1}], v[{t}:{t+1}], v[{u}:{u+1}]'))
        each(lambda d, p, u, t, z: (A(f'v_exp_f32 v{z}, v{z}'), A(f'v_exp_f32 v{z+1}, v{z+1}')))
        each(lambda d, p, u, t, z: A(f'v_pk_add_f32 v[{z}:{z+1}], v[{z}:{z+1}], v[{GONE}:{GONE+1}]'))
        each(lambda d, p, u, t, z: (A(f'v_rcp_f32 v{z}, v{z}'), A(f'v_rcp_f32 v{z+1}, v{z+1}')))
        each(lambda d, p, u, t, z: A(f'v_pk_mul_f32 v[{u}:{u+1}], v[{u}:{u+1}], v[{z}:{z+1}]'))
        each(lambda d, p, u, t, z: A(f'v_cvt_pk_bf16_f32 v{u}, v{u}, v{u+1}'))
        for d in range(2):
            A(f'v_dot2_f32_bf16 v{YA[d]}, v{U[(d,0)]}, v{W2R}, 0')
        for d in range(2):
            A(f'v_dot2_f32_bf16 v{YA[d]}, v{U[(d,1)]}, v{W2R+1}, v{YA[d]}')
        self.nop(2)
        self.wave_sum_to_sgpr(YA, [76, 77])
        A('v_mov_b32 v16, s76')
        A('v_mov_b32 v17, s77')
        A('s_lshl_b32 s14, s30, 3')
        A(f's_add_u32 s14, s14, {LDS_Y}')
        A('v_mov_b32 v18, s14')
        A('ds_write_b64 v18, v[16:17]')
        A('s_waitcnt lgkmcnt(0)')
        self.seg_end('f')
        A('s_barrier')
        A('s_cmp_lg_u32 s30, 4')
        lend = self.label('hend')
        A(f's_cbranch_scc1 {lend}')
        self.seg_begin('g')
        A(f'v_mov_b32 v12, {LDS_Y}')
        for k in range(4):
            A(f'ds_read_b128 v[{40+4*k}:{43+4*k}], v12 offset:{16*k}')
        A('s_waitcnt lgkmcnt(0)')
        for k in range(4):
            A(f'v_pk_add_f32 v[{40+4*k}:{41+4*k}], v[{40+4*k}:{41+4*k}], v[{42+4*k}:{43+4*k}]')
        A('v_pk_add_f32 v[40:41], v[40:41], v[44:45]')
        A('v_pk_add_f32 v[48:49], v[48:49], v[52:53]')
        A('v_pk_add_f32 v[16:17], v[40:41], v[48:49]')
        self.rnd_bf16_pair(16, 17, 20)
        A(f'v_add_f32 v16, v16, v{B2R}')
        A(f'v_add_f32 v17, v17, v{B2R}')
        self.rnd_bf16_pair(16, 17, 20)
        A('v_pk_add_f32 v[16:17], v[16:17], v[24:25]')
        A('v_cvt_pk_bf16_f32 v16, v16, v17')
        A('s_lshl_b32 s14, s2, 2')
        A('v_mov_b32 v18, 0')
        self.seg_end('g')
        A('s_mov_b64 exec, 1')
        A(f'buffer_store_dword v16, v18, s[{OUT}:{OUT+3}], s14 offen')
        A('s_cmp_lg_u32 s2, 0')
        A(f's_cbranch_scc1 {lend}')
        A('v_mov_b32 v20, s96')
        A('v_mov_b32 v21, s97')
        A(f's_mov_b32 s14, {WS_E:#x}')
        A(f'buffer_store_dwordx2 v[20:21], v18, s[{WS}:{WS+3}], s14 offen sc1')
        A(f'{lend}:')
        self.stamp(10)
        self.write_stamps(11)


if __name__ == '__main__':
    out = sys.argv[1]
    kw = json.loads(sys.argv[2]) if len(sys.argv) > 2 else {}
    open(out, 'w').write(Gen(**kw).build())
```

```python
import sys
KN = 'sequential_preLN__gqa_block_cached__mixer_token_mlp__decode'

def gen(nwg=256, waves=4, depth=8, nt='nt', headmap='div', idle=0, unroll=True, order='kv', vlag=0, useagpr=False):
    L = []
    A = L.append
    threads = (waves + idle) * 64
    A(f'; @launch grid=({nwg},1,1) block=({threads},1,1) lds=0')
    A('.amdgcn_target "amdgcn-amd-amdhsa--gfx950"')
    A('.text')
    A(f'.globl {KN}_kernel')
    A('.p2align 8')
    A(f'.type {KN}_kernel,@function')
    A(f'{KN}_kernel:')
    A(f's_cmp_ge_u32 s2, {nwg}')
    A('s_cbranch_scc1 L_end')
    A('s_memrealtime s[40:41]')
    A('s_load_dwordx4 s[4:7], s[0:1], 8')
    A('s_load_dwordx2 s[16:17], s[0:1], 96')
    A('v_lshrrev_b32 v1, 6, v0')
    A('s_nop 0')
    A('v_readfirstlane_b32 s20, v1')
    A('v_and_b32 v0, 63, v0')
    A(f's_cmp_ge_u32 s20, {waves}')
    A('s_cbranch_scc1 L_end')
    wg_per_head = nwg // 8
    keys_per_wg = 65536 // wg_per_head
    T = keys_per_wg // waves // 16
    if headmap == 'div':
        A(f's_lshr_b32 s21, s2, {wg_per_head.bit_length()-1}')
        A(f's_and_b32 s22, s2, {wg_per_head-1}')
    else:
        A('s_and_b32 s21, s2, 7')
        A('s_lshr_b32 s22, s2, 3')
    A('s_lshl_b32 s23, s21, 24')
    A(f's_mul_i32 s24, s22, {keys_per_wg*256}')
    A('s_add_u32 s23, s23, s24')
    A(f's_mul_i32 s24, s20, 4096')
    A('s_add_u32 s23, s23, s24')
    A(f's_mul_i32 s29, s2, {rotmul*4096*waves}')
    A('s_waitcnt lgkmcnt(0)')
    A('s_mov_b32 s8, s4'); A('s_mov_b32 s9, s5'); A('s_mov_b32 s10, 0x8000000'); A('s_mov_b32 s11, 0x20000')
    A('s_mov_b32 s12, s6'); A('s_mov_b32 s13, s7'); A('s_mov_b32 s14, 0x8000000'); A('s_mov_b32 s15, 0x20000')
    A('v_lshlrev_b32 v3, 4, v0')
    A('v_and_b32 v2, 15, v0'); A('v_lshlrev_b32 v2, 8, v2')
    A('v_lshrrev_b32 v4, 4, v0'); A('v_lshlrev_b32 v4, 4, v4'); A('v_add_u32 v2, v2, v4')
    step = 4096 * waves
    if order == 'kv':
        seq = [('k', i) for i in range(T)] + [('v', i) for i in range(T)]
    elif order == 'q':
        seq = []
        H = T // 2
        for i in range(H):
            seq += [('k', i), ('v', i), ('k', H + i), ('v', H + i)]
    elif order == 'kk':
        H = T // 2
        seq = []
        for i in range(H): seq += [('k', i), ('k', H + i)]
        for i in range(H): seq += [('v', i), ('v', H + i)]
    elif order == 'u':
        seq = []
        for g0 in range(0, T, vlag):
            seq += [('k', i) for i in range(g0, g0 + vlag)] + [('v', i) for i in range(g0, g0 + vlag)]
    else:
        seq = []
        for i in range(T + vlag):
            if i < T: seq.append(('k', i))
            if i - vlag >= 0: seq.append(('v', i - vlag))
    base = 8
    rp = 'a' if useagpr else 'v'
    if useagpr: base = 0
    def issue(n):
        kind, i = seq[n]
        r = base + (n % depth) * 16
        if rotmul:
            A(f's_add_u32 s26, s29, {i*step + (voff*step if kind == "v" else 0)}')
            A(f's_and_b32 s26, s26, {T*step - 1}')
            A('s_add_u32 s26, s26, s23')
        else:
            A(f's_add_u32 s26, s23, {i*step}')
        for j in range(4):
            if kind == 'k':
                if kcontig == 1:
                    A(f'buffer_load_dwordx4 {rp}[{r+4*j}:{r+4*j+3}], v3, s[8:11], s26 offen offset:{j*1024} {nt}')
                elif kcontig == 2:
                    A(f'buffer_load_dwordx4 {rp}[{r+4*j}:{r+4*j+3}], v2, s[8:11], s26 offen offset:{[0,128,64,192][j]} {nt}')
                else:
                    A(f'buffer_load_dwordx4 {rp}[{r+4*j}:{r+4*j+3}], v2, s[8:11], s26 offen offset:{j*64} {nt}')
            else:
                A(f'buffer_load_dwordx4 {rp}[{r+4*j}:{r+4*j+3}], v3, s[12:15], s26 offen offset:{j*1024} {nt}')
    N = len(seq)
    if fine:
        base_issue = issue
        def issue(n):
            if n % 2 == 1: return
            (k0, i0), (k1, i1) = seq[n], seq[n + 1]
            r0 = base + (n % depth) * 16; r1 = base + ((n + 1) % depth) * 16
            A(f's_add_u32 s26, s23, {i0*step}')
            A(f's_add_u32 s27, s23, {i1*step}')
            for j in range(4):
                for (kk, rr, ss) in ((k0, r0, 26), (k1, r1, 27)):
                    if kk == 'k':
                        A(f'buffer_load_dwordx4 {rp}[{rr+4*j}:{rr+4*j+3}], v2, s[8:11], s{ss} offen offset:{j*64} {nt}')
                    else:
                        A(f'buffer_load_dwordx4 {rp}[{rr+4*j}:{rr+4*j+3}], v3, s[12:15], s{ss} offen offset:{j*1024} {nt}')
    for n in range(depth): issue(n)
    for n in range(N):
        rem = min(depth - 1, N - 1 - n)
        if fine:
            if n % 2 == 1: continue
            rem = min(depth - 2, N - 2 - n)
        A(f's_waitcnt vmcnt({rem*4})')
        if n + depth < N: issue(n + depth)
    nv = base + depth * 16
    if not stop: A('s_memrealtime s[42:43]')
    A('s_waitcnt lgkmcnt(0)')
    A(f's_mul_i32 s28, s2, {waves}')
    A('s_add_u32 s28, s28, s20')
    A('s_lshl_b32 s28, s28, 4')
    A('s_add_u32 s16, s16, 0x10000000')
    A('s_addc_u32 s17, s17, 0')
    A('s_mov_b32 s18, 0x100000'); A('s_mov_b32 s19, 0x20000')
    A('v_mov_b32 v4, s40'); A('v_mov_b32 v5, s41'); A('v_mov_b32 v6, s42'); A('v_mov_b32 v7, s43')
    A('v_mov_b32 v1, s28')
    A('v_cmp_eq_u32 vcc, 0, v0')
    A('s_and_saveexec_b64 s[30:31], vcc')
    A('buffer_store_dwordx4 v[4:7], v1, s[16:19], 0 offen')
    A('s_waitcnt vmcnt(0)')
    A('L_end:')
    A('s_endpgm')
    A('.section .rodata,"a"')
    A('.p2align 6')
    A(f'.amdhsa_kernel {KN}_kernel')
    if useagpr:
        A(f'  .amdhsa_next_free_vgpr {8+nv}')
        A(f'  .amdhsa_accum_offset 8')
    else:
        nv8 = (nv + 7) // 8 * 8
        assert nv8 <= 256
        A(f'  .amdhsa_next_free_vgpr {nv8}')
        A(f'  .amdhsa_accum_offset {nv8}')
    A('  .amdhsa_next_free_sgpr 48')
    A('  .amdhsa_group_segment_fixed_size 0')
    A('  .amdhsa_kernarg_size 104')
    A('  .amdhsa_user_sgpr_count 2')
    A('  .amdhsa_user_sgpr_kernarg_segment_ptr 1')
    A('  .amdhsa_system_sgpr_workgroup_id_x 1')
    A('.end_amdhsa_kernel')
    return '\n'.join(L) + '\n'

if __name__ == '__main__':
    import json
    cfgs = json.loads(sys.argv[1])
    for name, c in cfgs.items():
        open(f'work/{name}.s', 'w').write(gen(**c))
```
